```python
import torch

def _softmax(x, axis=-1):
    return torch.softmax(x, dim=axis)
def _gelu(x):
    return torch.nn.functional.gelu(x, approximate="tanh")
def _silu(x):
    return torch.nn.functional.silu(x)
def _sigmoid(x):
    return torch.sigmoid(x)
def _layernorm(x, axis=-1, eps=1e-5):
    m = x.mean(dim=axis, keepdim=True)
    v = x.var(dim=axis, keepdim=True, unbiased=False)
    return (x - m) / torch.sqrt(v + eps)
def _scatter_add(tgt, idx, src, axis=0):
    return tgt.clone().index_add_(axis, idx, src)
def _segment_sum(src, seg, n):
    out = torch.zeros((n,) + src.shape[1:], dtype=src.dtype)
    return out.index_add_(0, seg, src)
def _pad(x, pw):
    flat = tuple(v for pair in reversed(pw) for v in pair)
    return torch.nn.functional.pad(x, flat)

kernel_name = 'gated_mix__linear_kernel_hedgehog__sliding_block__prompt'

def setup_inputs():

    _w = (lambda a: (lambda t: t.to(torch.bfloat16) if t.is_floating_point() else t)(torch.as_tensor(a)))
    def _A_setup():
        B, S, D, H = 1, 2048, 512, 32
        Dh = D // H
        return {
            "x": _w((lambda *s: torch.randn(*s, dtype=torch.bfloat16) * 0.05)(B, S, D)),
            "wqkv": _w((lambda *s: torch.randn(*s, dtype=torch.bfloat16) * 1.6)(D, 3 * D)),
            "w_phi": _w((lambda *s: torch.randn(*s, dtype=torch.bfloat16) * 1.6)(H, Dh, Dh) * (Dh ** -0.5)),
            "wo": _w((lambda *s: torch.randn(*s, dtype=torch.bfloat16) * 0.1)(D, D)),
        }
    _A_in = _A_setup()

    def _B_setup():
        B, S, D = 1, 2048, 512
        return {
            "x": _w((lambda *s: torch.randn(*s, dtype=torch.bfloat16) * 0.05)(B, S, D)),
            "wqkv": _w((lambda *s: torch.randn(*s, dtype=torch.bfloat16) * 0.8)(D, 3 * D)),
            "wo": _w((lambda *s: torch.randn(*s, dtype=torch.bfloat16) * 0.05)(D, D)),
        }
    _B_in = _B_setup()

    return {
        "A_x": _A_in["x"],
        "A_wqkv": _A_in["wqkv"],
        "A_w_phi": _A_in["w_phi"],
        "A_wo": _A_in["wo"],
        "B_x": _B_in["x"],
        "B_wqkv": _B_in["wqkv"],
        "B_wo": _B_in["wo"],
        "gate_w": _w((lambda *s: torch.randn(*s, dtype=torch.bfloat16) * 0.05)(512) * 16.0),
    }

def reference(A_x, A_wqkv, A_w_phi, A_wo, B_x, B_wqkv, B_wo, gate_w):
    def _A_ref(x, wqkv, w_phi, wo):
        B, S, D = x.shape
        H = 32; Dh = D // H
        qkv = (lambda x, *d: x.permute(*d))((x @ wqkv).reshape(B, S, 3, H, Dh), 2, 0, 3, 1, 4)
        q, k, v = qkv[0], qkv[1], qkv[2]
        pq = torch.einsum("bhsd,hdf->bhsf", q, w_phi)
        pk = torch.einsum("bhsd,hdf->bhsf", k, w_phi)
        phi_q = torch.concatenate([_softmax(pq, axis=-1), _softmax(-pq, axis=-1)], axis=-1)
        phi_k = torch.concatenate([_softmax(pk, axis=-1), _softmax(-pk, axis=-1)], axis=-1)
        kv = torch.einsum("bhsf,bhsd->bhfd", phi_k, v)
        z  = torch.einsum("bhsf->bhf", phi_k)
        num = torch.einsum("bhqf,bhfd->bhqd", phi_q, kv)
        den = torch.einsum("bhqf,bhf->bhq", phi_q, z)[..., None] + 1e-6
        o = num / den
        return (lambda x, *d: x.permute(*d))(o, 0, 2, 1, 3).reshape(B, S, D) @ wo

    def _B_ref(x, wqkv, wo):
        B, S, D = x.shape
        H = 32; Dh = D // H; W = 256
        qkv = (lambda x, *d: x.permute(*d))((x @ wqkv).reshape(B, S, 3, H, Dh), 2, 0, 3, 1, 4)
        q, k, v = qkv[0], qkv[1], qkv[2]
        scores = torch.einsum("bhqd,bhkd->bhqk", q, k) * (Dh ** -0.5)
        idx = torch.arange(S)
        mask = (idx[:, None] - idx[None, :] >= 0) & (idx[:, None] - idx[None, :] < W)
        scores = torch.where(mask[None, None], scores, -1e9)
        p = _softmax(scores, axis=-1)
        o = torch.einsum("bhqk,bhkd->bhqd", p, v)
        return (lambda x, *d: x.permute(*d))(o, 0, 2, 1, 3).reshape(B, S, D) @ wo

    x = A_x
    g = _sigmoid((x * gate_w).sum(-1, keepdims=True))
    a = _A_ref(x, A_wqkv, A_w_phi, A_wo)
    b = _B_ref(x, B_wqkv, B_wo)
    return g * a + (1 - g) * b
```

```python
import sys, math
NAME = "gated_mix__linear_kernel_hedgehog__sliding_block__prompt_kernel"

class Asm:
    def __init__(self):
        self.L = []; self.nlab = 0; self.q = []
    def __call__(self, s):
        for line in s.split("\n"):
            line = line.strip()
            if not line: continue
            self.L.append(line if line.endswith(":") else "    " + line)
    def c(self, s): self.L.append("    ; " + s)
    def label(self, b="L"):
        self.nlab += 1; return f"{b}_{self.nlab}"
    def vm(self, s, tag=None):
        self(s); self.q.append(tag)
    def mark(self, tag):
        self.q.append(("mark", tag))
    def cnt_after(self, tag):
        idx = None
        for i, t in enumerate(self.q):
            if t == tag or t == ("mark", tag): idx = i
        assert idx is not None, tag
        return sum(1 for t in self.q[idx+1:] if not (isinstance(t, tuple) and t[0] == "mark"))
    def text(self): return "\n".join(self.L) + "\n"

def vr(b, n=1): return f"v{b}" if n == 1 else f"v[{b}:{b+n-1}]"
def sr(b, n=1): return f"s{b}" if n == 1 else f"s[{b}:{b+n-1}]"

XB, OWN, RING, MISC = 0, 65536, 81920, 147456
WPHI, GATEW, ONES, GL = MISC, MISC + 2048, MISC + 3072, MISC + 4096
LDS_BYTES = 163840
PHI_S, VA_S = XB, XB + 16384
WS_FLAG = 0x10000
def FL(i): return WS_FLAG + i * 32768
WS_KVF  = 0x50000
WS_PART = 0x100000
WS_KVB  = 0x500000
WS_O    = 0x900000
WS_DBG  = 0xD00000
WS_SIZE = 0x1000000
LOG2E = 1.4426950408889634
import struct
def f32(x): return "0x%08x" % struct.unpack("<I", struct.pack("<f", x))[0]

sX, sWA, sWB, sWS, sWOA, sWOB, sOUT, sM1, sM2 = 4, 8, 12, 16, 20, 24, 28, 32, 36
sW, sRW, sH, sHG, sRB, sROT, sNON, sW1K, sQB, sRETRY = 40, 41, 42, 43, 44, 45, 46, 47, 48, 49
sT0, sT1, sT2, sT3, sT4, sT5 = 50, 51, 52, 53, 54, 55
sEX = 56
sP = 58
sL2E = 60
sSPIN = 61
sRB3, sCB = 62, 63
sMASK = 64
sTS = 96
vL, vL16 = 1, 2
vXD, vWDX, vWDY, vWRD = 3, 4, 5, 6
vXR = 8
vWPHI = 12
vM = 16
vT = 24
vACC0, vACC1 = 32, 48
vWF = 64
vE = 96
vX = 128

SPIN_MAX = 200000

def gen(opts=None):
    o = dict(truemax=False, stamps=False, force_fallback=False)
    o.update(opts or {})
    a = Asm()
    nstamp = [0]
    def stamp():
        if not o["stamps"]: return
        i = nstamp[0]; nstamp[0] += 1
        a(f"s_memtime s[{sTS}:{sTS+1}]\ns_waitcnt lgkmcnt(0)\nv_writelane_b32 v7, s{sTS}, {i}")
    def srd(d, src, nbytes):
        a(f"s_mov_b32 s{d}, s{src}\ns_and_b32 s{d+1}, s{src+1}, 0xffff\ns_mov_b32 s{d+2}, {nbytes}\ns_mov_b32 s{d+3}, 0x20000")
    def only_wave(cond_code):
        lab = a.label("Lskip"); a(cond_code); a(f"s_cbranch_scc0 {lab}"); return lab

    a("s_cmp_ge_u32 s2, 256\ns_cbranch_scc1 L_exit")
    a("s_load_dwordx4 s[64:67], s[0:1], 0")
    a("s_load_dwordx4 s[68:71], s[0:1], 16")
    a("s_load_dwordx4 s[72:75], s[0:1], 40")
    a("s_load_dwordx4 s[76:79], s[0:1], 56")
    a("s_load_dwordx2 s[80:81], s[0:1], 80")
    if o["stamps"]:
        a("v_mov_b32 v7, 0")
        a(f"s_memrealtime s[98:99]")
    a(f"v_lshrrev_b32 v{vT}, 6, v0\nv_and_b32 v{vL}, 63, v0")
    a(f"s_and_b32 s{sHG}, s2, 7\nv_readfirstlane_b32 s{sW}, v{vT}\ns_lshr_b32 s{sRB}, s2, 3")
    a(f"v_lshlrev_b32 v{vL16}, 4, v{vL}")
    a(f"s_add_u32 s{sROT}, s{sRB}, s{sHG}\ns_and_b32 s{sROT}, s{sROT}, 7")
    a(f"s_and_b32 s{sRW}, s{sW}, 1\ns_lshr_b32 s{sH}, s{sW}, 1\ns_lshl_b32 s{sW1K}, s{sW}, 10")
    t0, t1, t2, t3, t4, t5 = vT, vT+1, vT+2, vT+3, vT+4, vT+5
    a(f"v_lshrrev_b32 v{t0}, 3, v{vL}\nv_and_b32 v{t1}, 7, v{vL}\nv_lshrrev_b32 v{t2}, 4, v{vL}")
    a(f"s_lshl_b32 s{sT0}, s{sW}, 3")
    a(f"v_add_u32 v{t0}, s{sT0}, v{t0}")
    a(f"v_lshrrev_b32 v{t3}, 1, v{t0}\nv_and_b32 v{t3}, 7, v{t3}\nv_xor_b32 v{t3}, v{t3}, v{t1}\nv_lshlrev_b32 v{t3}, 4, v{t3}")
    a(f"s_lshl_b32 s{sT1}, s{sRB}, 6\nv_add_u32 v{t4}, s{sT1}, v{t0}\nv_lshl_add_u32 v{vXD}, v{t4}, 10, v{t3}")
    a(f"v_and_b32 v{t2}, 1, v{t2}\nv_lshlrev_b32 v{t3}, 1, v{t2}\nv_xor_b32 v{t3}, v{t3}, v{t1}\nv_lshlrev_b32 v{t3}, 4, v{t3}")
    a(f"v_mul_u32_u24 v{t4}, 3072, v{t0}\ns_lshl_b32 s{sT1}, s{sHG}, 7\nv_add3_u32 v{vWDX}, v{t4}, v{t3}, s{sT1}")
    a(f"v_xor_b32 v{vWDY}, 64, v{vWDX}")
    a("s_waitcnt lgkmcnt(0)")
    srd(sX, 64, 2097152); srd(sWA, 66, 1572864)
    passes = [((sWA, 1024), (sWA, 2048)), ((sWB, 1024), (sWB, 2048)), ((sWA, 0), (sWB, 0))]
    def issue_chunk(n):
        if n < 24:
            p, i = divmod(n, 8)
            a(f"s_add_u32 s{sT0}, s{sROT}, {i}\ns_and_b32 s{sT0}, s{sT0}, 7\ns_mul_i32 s{sT1}, s{sT0}, {64*3072}")
            if p == 0:
                a(f"s_lshl_b32 s{sT0}, s{sT0}, 7\ns_add_u32 m0, s{sW1K}, {XB + i*8192}\ns_nop 0")
                a.vm(f"buffer_load_dwordx4 v{vXD}, {sr(sX,4)}, s{sT0} offen lds", ("x", n))
            for b in range(2):
                d, off = passes[p][b]
                a(f"s_add_u32 m0, s{sW1K}, {RING + (n%4)*16384 + b*8192}\ns_add_u32 s{sT2}, s{sT1}, {off}")
                a.vm(f"buffer_load_dwordx4 v{vWDX if b == 0 else vWDY}, {sr(d,4)}, s{sT2} offen lds", ("w", n, b))
        else:
            kq = n - 24
            for b in range(2):
                a(f"s_add_u32 m0, s{sW1K}, {RING + (n%4)*16384 + b*8192}\ns_mov_b32 s{sT2}, {(kq*128 + b*64)*1024}")
                a.vm(f"buffer_load_dwordx4 v{vXD}, {sr(sWOA,4)}, s{sT2} offen lds", ("w", n, b))
    srd(sM1, 68, 16384); srd(sM2, 76, 1024)
    lab = only_wave(f"s_cmp_lt_u32 s{sW}, 2")
    a(f"s_lshl_b32 s{sT0}, s{sHG}, 11\ns_add_u32 s{sT0}, s{sT0}, s{sW1K}\ns_add_u32 m0, s{sW1K}, {WPHI}\ns_nop 0")
    a(f"buffer_load_dwordx4 v{vL16}, {sr(sM1,4)}, s{sT0} offen lds")
    a(f"{lab}:")
    lab = only_wave(f"s_cmp_eq_u32 s{sW}, 2")
    a(f"s_lshl_b32 s{sT0}, s{sROT}, 7\nv_add_u32 v{t3}, s{sT0}, v{vL16}\nv_and_b32 v{t3}, 1023, v{t3}\ns_mov_b32 m0, {GATEW}\ns_nop 0")
    a(f"buffer_load_dwordx4 v{t3}, {sr(sM2,4)}, 0 offen lds")
    a(f"{lab}:")
    for n in range(4): issue_chunk(n)
    a("s_load_dword s82, s[80:81], 0")
    srd(sWB, 72, 1572864); srd(sWS, 80, WS_SIZE); srd(sWOA, 70, 524288); srd(sWOB, 74, 524288); srd(sOUT, 78, 2097152)
    a(f"s_getpc_b64 s[{sP}:{sP+1}]\nL_pc:")
    a(f"s_sub_u32 s{sM1}, s{sP}, L_pc-{NAME}\ns_subb_u32 s{sM1+1}, s{sP+1}, 0\ns_and_b32 s{sM1+1}, s{sM1+1}, 0xffff\ns_mov_b32 s{sM1+2}, L_codeend-{NAME}")
    lab = only_wave(f"s_cmp_eq_u32 s{sW}, 7")
    a(f"v_and_b32 v{t3}, 7, v{vL}\nv_lshlrev_b32 v{t3}, 7, v{t3}\ns_lshl_b32 s{sT0}, s{sRB}, 10")
    a(f"buffer_load_dword v{vE+31}, v{t3}, {sr(sM1,4)}, s{sT0} offen")
    a(f"{lab}:")
    l32, half = vT+6, vT+7
    a(f"v_and_b32 v{l32}, 31, v{vL}\nv_lshrrev_b32 v{half}, 5, v{vL}")
    a(f"s_lshl_b32 s{sT0}, s{sRW}, 5\nv_add_u32 v{t0}, s{sT0}, v{l32}")
    a(f"v_lshrrev_b32 v{t1}, 1, v{t0}\nv_and_b32 v{t1}, 7, v{t1}\nv_xor_b32 v{t1}, v{t1}, v{half}\nv_lshlrev_b32 v{t1}, 4, v{t1}")
    a(f"v_lshl_add_u32 v{vXR}, v{t0}, 7, v{t1}")
    for s in range(1, 4): a(f"v_xor_b32 v{vXR+s}, {s*32}, v{vXR}")
    a(f"v_bfe_u32 v{t0}, v{vL}, 4, 1\nv_bfe_u32 v{t1}, v{vL}, 2, 2\nv_and_b32 v{t2}, 3, v{vL}")
    a(f"v_lshrrev_b32 v{t3}, 1, v{t1}\nv_lshl_add_u32 v{t3}, v{t0}, 1, v{t3}\nv_xor_b32 v{t3}, s{sH}, v{t3}\nv_lshlrev_b32 v{t3}, 5, v{t3}")
    a(f"v_lshl_add_u32 v{t5}, v{half}, 3, v{t1}\nv_lshl_add_u32 v{t3}, v{t5}, 7, v{t3}\nv_lshl_add_u32 v{t3}, v{t2}, 3, v{t3}")
    a(f"v_lshl_add_u32 v{t3}, v{t0}, 13, v{t3}\nv_add_u32 v{vWRD}, {RING}, v{t3}")
    lab = only_wave(f"s_cmp_eq_u32 s{sW}, 3")
    for i in range(4): a(f"v_mov_b32 v{vE+i}, 0x3f803f80")
    a(f"v_add_u32 v{t3}, {ONES}, v{vL16}\nds_write_b128 v{t3}, {vr(vE,4)}")
    a(f"{lab}:")
    a("s_waitcnt lgkmcnt(0)")
    a(f"s_mul_i32 s{sNON}, s82, 0x9E3779B1\ns_add_u32 s{sNON}, s{sNON}, 0x7F4A7C15")
    a(f"s_mov_b32 s{sL2E}, {f32(LOG2E)}")
    a(f"s_lshl_b32 s{sQB}, s{sRB}, 1\ns_add_u32 s{sQB}, s{sQB}, s{sRW}")
    a(f"s_lshl_b32 s{sRB3}, s{sHG}, 2\ns_lshr_b32 s{sT0}, s{sRB}, 3\ns_add_u32 s{sRB3}, s{sRB3}, s{sT0}\ns_and_b32 s{sCB}, s{sRB}, 7")
    for r in range(16):
        m = 0
        for l in range(64):
            key = 8*(r//4) + 4*(l//32) + r % 4
            if key <= l % 32: m |= 1 << l
        a(f"s_mov_b32 s{sMASK+2*r}, 0x{m & 0xffffffff:08x}\ns_mov_b32 s{sMASK+2*r+1}, 0x{m >> 32:08x}")
    a(f"v_mov_b32 v{t0}, 0xffff\nv_mov_b32 v{t1}, 0xffff0000")
    for i in range(8):
        a(f"v_cndmask_b32 v{t2}, 0, v{t0}, {sr(sMASK+4*i,2)}\nv_cndmask_b32 v{t3}, 0, v{t1}, {sr(sMASK+4*i+2,2)}\nv_or_b32 v{vM+i}, v{t2}, v{t3}")
    stamp()

    def read_frags(n):
        p, i = divmod(n, 8)
        if p == 0:
            for s in range(4):
                a(f"ds_read_b128 {vr(vX + i*16 + s*4, 4)}, v{vXR+s} offset:{XB + i*8192}")
        for s in range(4):
            for t in range(2):
                a(f"ds_read_b64_tr_b16 {vr(vWF + (n%2)*16 + s*4 + t*2, 2)}, v{vWRD} offset:{(n%4)*16384 + (16*s+4*t)*128}")
    def flag_store(fi):
        lab = only_wave(f"s_cmp_eq_u32 s{sW}, 0")
        flag_store_body(fi)
        a(f"{lab}:")
    def flag_store_body(fi):
        a(f"s_lshl_b32 s{sT0}, s2, 7\ns_add_u32 s{sT0}, s{sT0}, {FL(fi)}\nv_mov_b32 v{vT}, s{sNON}\nv_mov_b32 v{vT+1}, 0")
        a(f"s_mov_b64 exec, 1\nbuffer_store_dword v{vT}, v{vT+1}, {sr(sWS,4)}, s{sT0} offen sc1\ns_mov_b64 exec, -1")
    def poll(fi, nl, voff, soff_code):
        lp, ld = a.label("Lpoll"), a.label("Lpd")
        a(soff_code); a(f"s_add_u32 s{sT0}, s{sT0}, {FL(fi)}\ns_mov_b32 s{sSPIN}, 0")
        a(f"s_mov_b32 exec_lo, 0x{(1<<nl)-1:x}\ns_mov_b32 exec_hi, 0")
        a(f"{lp}:\nbuffer_load_dword v{vT}, v{voff}, {sr(sWS,4)}, s{sT0} offen sc1")
        a(f"s_add_u32 s{sSPIN}, s{sSPIN}, 1\ns_cmp_gt_u32 s{sSPIN}, {SPIN_MAX}\ns_cbranch_scc1 {ld}")
        a(f"s_waitcnt vmcnt(0)\nv_cmp_ne_u32 vcc, s{sNON}, v{vT}\ns_cbranch_vccnz {lp}")
        a(f"{ld}:\ns_waitcnt vmcnt(0)\ns_mov_b64 exec, -1")

    def softmax16(S, P, t):
        a(f"v_max3_f32 v{t}, v{S}, v{S+1}, v{S+2}\nv_max3_f32 v{t+1}, v{S+3}, v{S+4}, v{S+5}")
        a(f"v_max3_f32 v{t}, v{t}, v{S+6}, v{S+7}\nv_max3_f32 v{t+1}, v{t+1}, v{S+8}, v{S+9}")
        a(f"v_max3_f32 v{t}, v{t}, v{S+10}, v{S+11}\nv_max3_f32 v{t+1}, v{t+1}, v{S+12}, v{S+13}")
        a(f"v_max3_f32 v{t}, v{t}, v{S+14}, v{S+15}\nv_max_f32 v{t}, v{t}, v{t+1}")
        a(f"v_mul_f32 v{t}, s{sL2E}, v{t}")
        for r in range(16): a(f"v_fma_f32 v{S+r}, v{S+r}, s{sL2E}, -v{t}")
        for r in range(16): a(f"v_exp_f32 v{S+r}, v{S+r}")
        a(f"v_add_f32 v{t}, v{S}, v{S+1}\nv_add_f32 v{t+1}, v{S+2}, v{S+3}")
        for r in range(4, 16, 2): a(f"v_add_f32 v{t}, v{t}, v{S+r}\nv_add_f32 v{t+1}, v{t+1}, v{S+r+1}")
        a(f"v_add_f32 v{t}, v{t}, v{t+1}\nv_rcp_f32 v{t}, v{t}\ns_nop 0")
        for r in range(16): a(f"v_mul_f32 v{S+r}, v{S+r}, v{t}")
        for i in range(8): a(f"v_cvt_pk_bf16_f32 v{P+i}, v{S+2*i}, v{S+2*i+1}")

    vGACC, vGF = vE, vE + 16
    def epi1a():
        a.c("epilogue 1a: phi_k")
        acc = vACC0
        kf, vf, S, P = vT, vT+4, vE, vE+16
        lab = only_wave(f"s_cmp_lt_u32 s{sW}, 2")
        a(f"v_mul_f32 v{kf}, s{sL2E}, v{vGACC}\nv_exp_f32 v{kf}, -v{kf}\ns_nop 0\nv_add_f32 v{kf}, 1.0, v{kf}\nv_rcp_f32 v{kf}, v{kf}")
        a(f"v_and_b32 v{kf+1}, 31, v{vL}\ns_lshl_b32 s{sT0}, s{sRW}, 7\ns_add_u32 s{sT0}, s{sT0}, {GL}\nv_lshl_add_u32 v{kf+1}, v{kf+1}, 2, s{sT0}")
        a(f"ds_write_b32 v{kf+1}, v{kf}")
        a(f"{lab}:")
        for i in range(4): a(f"v_cvt_pk_bf16_f32 v{kf+i}, v{acc+2*i}, v{acc+2*i+1}")
        for i in range(4): a(f"v_cvt_pk_bf16_f32 v{vf+i}, v{acc+8+2*i}, v{acc+8+2*i+1}")
        a(f"v_mfma_f32_32x32x16_bf16 {vr(S,16)}, {vr(vWPHI,4)}, {vr(kf,4)}, 0")
        ad = vE + 24
        a(f"v_and_b32 v{ad}, 31, v{vL}\nv_lshrrev_b32 v{ad+1}, 5, v{vL}\nv_lshl_add_u32 v{ad}, v{ad}, 1, v{ad+1}")
        a(f"s_lshl_b32 s{sT0}, s{sH}, 7\ns_lshl_b32 s{sT1}, s{sRW}, 6\ns_add_u32 s{sT0}, s{sT0}, s{sT1}\nv_add_u32 v{ad}, s{sT0}, v{ad}")
        a(f"v_lshlrev_b32 v{ad+1}, 4, v{ad}\nv_lshlrev_b32 v{ad}, 5, v{ad}")
        a(f"ds_write_b128 v{ad+1}, {vr(vf,4)} offset:{VA_S}")
        a("s_nop 4")
        softmax16(S, P, vE+26)
        a(f"ds_write_b128 v{ad}, {vr(P,4)} offset:{PHI_S}\nds_write_b128 v{ad}, {vr(P+4,4)} offset:{PHI_S+16}")
    def epi1b():
        a.c("epilogue 1b: kv partial (one wave per head)")
        a(f"s_lshr_b32 s{sT0}, s{sH}, 1")
        lab = only_wave(f"s_cmp_eq_u32 s{sT0}, s{sRW}")
        g, r, c, hf, ap, av = vT, vT+1, vT+2, vT+3, vT+4, vT+5
        a(f"v_bfe_u32 v{g}, v{vL}, 4, 1\nv_bfe_u32 v{r}, v{vL}, 2, 2\nv_and_b32 v{c}, 3, v{vL}\nv_lshrrev_b32 v{hf}, 5, v{vL}")
        a(f"v_lshl_add_u32 v{r}, v{hf}, 3, v{r}")
        a(f"v_and_b32 v{ap}, 1, v{c}\nv_lshlrev_b32 v{ap}, 5, v{ap}\nv_lshl_add_u32 v{ap}, v{g}, 4, v{ap}")
        a(f"v_lshrrev_b32 v{hf}, 1, v{c}\nv_lshl_add_u32 v{ap}, v{hf}, 3, v{ap}\nv_lshl_add_u32 v{ap}, v{r}, 6, v{ap}")
        a(f"s_lshl_b32 s{sT0}, s{sH}, 12\nv_add_u32 v{ap}, s{sT0}, v{ap}")
        a(f"v_lshlrev_b32 v{av}, 5, v{r}\nv_lshl_add_u32 v{av}, v{c}, 3, v{av}\ns_lshl_b32 s{sT0}, s{sH}, 11\ns_add_u32 s{sT0}, s{sT0}, {VA_S}\nv_add_u32 v{av}, s{sT0}, v{av}")
        a(f"v_cmp_eq_u32 {sr(sP,2)}, 1, v{g}\nv_mov_b32 v{hf}, {ONES}\nv_mov_b32 v{c}, 512\ns_nop 0")
        a(f"v_cndmask_b32 v{av}, v{av}, v{hf}, {sr(sP,2)}\nv_cndmask_b32 v{c}, v{c}, 0, {sr(sP,2)}")
        F = vE
        for ks in range(4):
            for t in range(2):
                a(f"ds_read_b64_tr_b16 {vr(F+ks*8+t*2,2)}, v{ap} offset:{PHI_S + (16*ks+4*t)*64}")
                a(f"ds_read_b64_tr_b16 {vr(F+ks*8+4+t*2,2)}, v{av} offset:{t*128}")
            if ks < 3: a(f"v_add_u32 v{av}, v{av}, v{c}")
        a("s_waitcnt lgkmcnt(0)")
        D = vACC0
        for ks in range(4):
            a(f"v_mfma_f32_32x32x16_bf16 {vr(D,16)}, {vr(F+ks*8,4)}, {vr(F+ks*8+4,4)}, {'0' if ks == 0 else vr(D,16)}")
        a(f"v_and_b32 v{g}, 31, v{vL}\nv_lshrrev_b32 v{hf}, 5, v{vL}\nv_mul_u32_u24 v{hf}, {4*12288}, v{hf}\nv_lshl_add_u32 v{ap}, v{g}, 4, v{hf}")
        a(f"s_lshl_b32 s{sT0}, s{sHG}, 5\ns_lshl_b32 s{sT1}, s{sH}, 3\ns_add_u32 s{sT0}, s{sT0}, s{sT1}\ns_mul_i32 s{sT0}, s{sT0}, 12288")
        a(f"s_mul_i32 s{sT1}, s{sRB}, 384\ns_add_u32 s{sT0}, s{sT0}, s{sT1}\ns_add_u32 s{sT0}, s{sT0}, {WS_PART}")
        a("s_mov_b32 exec_lo, 0x1ffff\ns_mov_b32 exec_hi, 0x1ffff\ns_nop 3")
        for fq in range(4):
            a(f"buffer_store_dwordx4 {vr(D+4*fq,4)}, v{ap}, {sr(sWS,4)}, s{sT0} offen sc1")
            if fq < 3: a(f"s_add_u32 s{sT0}, s{sT0}, 12288")
        a("s_mov_b64 exec, -1")
        a(f"{lab}:")
        a.mark("part")
    def epi2():
        a.c("epilogue 2: K_B, V_B")
        acc = vACC1
        kf, vf, ak, av = vE, vE+4, vE+8, vE+9
        for i in range(4): a(f"v_cvt_pk_bf16_f32 v{kf+i}, v{acc+2*i}, v{acc+2*i+1}")
        for i in range(4): a(f"v_cvt_pk_bf16_f32 v{vf+i}, v{acc+8+2*i}, v{acc+8+2*i+1}")
        a(f"v_lshrrev_b32 v{av}, 5, v{vL}\nv_lshlrev_b32 v{av}, 6, v{av}\nv_xor_b32 v{av}, v{av}, v{vL16}")
        a(f"s_lshl_b32 s{sT0}, s{sRW}, 13\ns_lshl_b32 s{sT1}, s{sH}, 11\ns_add_u32 s{sT0}, s{sT0}, s{sT1}")
        a(f"s_lshl_b32 s{sT1}, s{sHG}, 19\ns_lshl_b32 s{sT2}, s{sRB}, 14\ns_add_u32 s{sT1}, s{sT1}, s{sT2}\ns_add_u32 s{sT1}, s{sT1}, s{sT0}\ns_add_u32 s{sT1}, s{sT1}, {WS_KVB}")
        a.vm(f"buffer_store_dwordx4 {vr(kf,4)}, v{vL16}, {sr(sWS,4)}, s{sT1} offen sc1", "kvb0")
        a.vm(f"buffer_store_dwordx4 {vr(vf,4)}, v{av}, {sr(sWS,4)}, s{sT1} offen offset:1024 sc1", "kvb")
        a(f"s_add_u32 s{sT0}, s{sT0}, {OWN}\nv_add_u32 v{ak}, s{sT0}, v{vL16}\nv_add_u32 v{av}, s{sT0}, v{av}")
        a(f"ds_write_b128 v{ak}, {vr(kf,4)}\nds_write_b128 v{av}, {vr(vf,4)} offset:1024")
    def hop1():
        a.c("hop 1: wave 3 reduces slice rb over 32 producers")
        lab = only_wave(f"s_cmp_eq_u32 s{sW}, 3")
        vo = vT+1
        a(f"v_lshlrev_b32 v{vo}, 10, v{vL}")
        poll(0, 32, vo, f"s_lshl_b32 s{sT0}, s{sHG}, 7")
        a(f"v_and_b32 v{vo}, 31, v{vL}\nv_lshrrev_b32 v{vT+2}, 5, v{vL}\nv_mul_u32_u24 v{vT+2}, 384, v{vT+2}\nv_lshl_add_u32 v{vo}, v{vo}, 4, v{vT+2}")
        a(f"s_lshl_b32 s{sT0}, s{sHG}, 5\ns_add_u32 s{sT0}, s{sT0}, s{sRB}\ns_lshl_b32 s{sT3}, s{sT0}, 8\ns_mul_i32 s{sT0}, s{sT0}, 12288\ns_add_u32 s{sT0}, s{sT0}, {WS_PART}")
        a("s_mov_b32 exec_lo, 0x1ffff\ns_mov_b32 exec_hi, 0x1ffff")
        A4 = vT+4
        for bt in range(2):
            for i in range(8):
                ii = bt*8 + i
                a(f"buffer_load_dwordx4 {vr(vE+4*i,4)}, v{vo}, {sr(sWS,4)}, s{sT0} offen offset:{(ii%4)*768} sc1")
                if ii % 4 == 3: a(f"s_add_u32 s{sT0}, s{sT0}, 3072")
            a("s_waitcnt vmcnt(0)")
            for i in range(8):
                for j in range(4):
                    if bt == 0 and i == 0: a(f"v_mov_b32 v{A4+j}, v{vE+j}")
                    else: a(f"v_add_f32 v{A4+j}, v{A4+j}, v{vE+4*i+j}")
        a("s_mov_b64 exec, -1")
        for j in range(4): a(f"v_mov_b32 v{vE+j}, v{A4+j}")
        a("s_nop 1")
        for j in range(4): a(f"v_permlane32_swap_b32 v{A4+j}, v{vE+j}")
        a("s_nop 1")
        for j in range(4): a(f"v_add_f32 v{A4+j}, v{A4+j}, v{vE+j}")
        a(f"v_cvt_pk_bf16_f32 v{vE}, v{A4}, v{A4+1}\nv_cvt_pk_bf16_f32 v{vE+1}, v{A4+2}, v{A4+3}")
        a(f"v_lshlrev_b32 v{vo}, 3, v{vL}\ns_add_u32 s{sT3}, s{sT3}, {WS_KVF}\ns_mov_b64 exec, 0x1ffff")
        a(f"buffer_store_dwordx2 {vr(vE,2)}, v{vo}, {sr(sWS,4)}, s{sT3} offen sc1\ns_mov_b64 exec, -1\ns_waitcnt vmcnt(0)")
        flag_store_body(2)
        a(f"{lab}:")

    a(f"s_waitcnt vmcnt({a.cnt_after(('w',0,1))})\ns_barrier")
    stamp()
    read_frags(0)
    g, r, c, hf, ad = vT, vT+1, vT+2, vT+3, vT+4
    a(f"v_bfe_u32 v{g}, v{vL}, 4, 1\nv_bfe_u32 v{r}, v{vL}, 2, 2\nv_bfe_u32 v{c}, v{vL}, 1, 1\nv_lshrrev_b32 v{hf}, 5, v{vL}")
    a(f"v_lshl_add_u32 v{r}, v{hf}, 2, v{r}\nv_lshlrev_b32 v{ad}, 5, v{r}\nv_lshl_add_u32 v{ad}, v{g}, 4, v{ad}\nv_lshl_add_u32 v{ad}, v{c}, 3, v{ad}")
    a(f"s_lshl_b32 s{sT0}, s{sH}, 9\ns_add_u32 s{sT0}, s{sT0}, {WPHI}\nv_add_u32 v{ad}, s{sT0}, v{ad}")
    a(f"ds_read_b64_tr_b16 {vr(vWPHI,2)}, v{ad}\nds_read_b64_tr_b16 {vr(vWPHI+2,2)}, v{ad} offset:256")
    a(f"v_bfe_u32 v{g}, v{vL}, 2, 1\nv_mul_u32_u24 v{g}, 0x8000, v{g}\nv_lshl_or_b32 v{g}, v{g}, 16, v{g}")
    vGA = vT + 7
    a(f"v_lshlrev_b32 v{vGA}, 4, v{hf}\nv_add_u32 v{vGA}, {GATEW}, v{vGA}")
    a("s_waitcnt lgkmcnt(0)")
    for i in range(4): a(f"v_xor_b32 v{vWPHI+i}, v{vWPHI+i}, v{g}")
    for n in range(24):
        p, i = divmod(n, 8)
        a.c(f"---- iteration {n}")
        w = a.cnt_after(("w", n+1, 1)) if n < 23 else None
        if n == 13: w = min(w, a.cnt_after("part"))
        if n == 20: w = min(w, a.cnt_after("kvb"))
        a(f"s_waitcnt vmcnt({w}) lgkmcnt(0)" if w is not None else "s_waitcnt lgkmcnt(0)")
        a("s_barrier")
        if n == 13: flag_store(0)
        if n == 20: flag_store(1)
        if n == 20:
            a(f"v_lshrrev_b32 v{vT}, 3, v{vL}\ns_lshl_b32 s{sT0}, s{sW}, 3\nv_add_u32 v{vT}, s{sT0}, v{vT}")
            a(f"v_bfe_u32 v{vT+1}, v{vL}, 4, 1\nv_lshlrev_b32 v{vT+1}, 2, v{vT+1}\nv_and_b32 v{vT+2}, 7, v{vL}\nv_xor_b32 v{vT+1}, v{vT+1}, v{vT+2}")
            a(f"v_lshlrev_b32 v{vT+1}, 4, v{vT+1}\nv_lshl_add_u32 v{vT}, v{vT}, 10, v{vT+1}\ns_lshl_b32 s{sT0}, s{sCB}, 7\nv_add_u32 v{vXD}, s{sT0}, v{vT}")
        issue_chunk(n + 4)
        if n < 23: read_frags(n + 1)
        if p == 0:
            labg = only_wave(f"s_cmp_lt_u32 s{sW}, 2")
            for s in range(4): a(f"ds_read_b128 {vr(vGF+4*s,4)}, v{vGA} offset:{i*128 + s*32}")
            a(f"{labg}:")
        acc = vACC0 if p != 1 else vACC1
        for s in range(4):
            cc = "0" if (i == 0 and s == 0) else vr(acc, 16)
            a(f"v_mfma_f32_32x32x16_bf16 {vr(acc,16)}, {vr(vWF+(n%2)*16+s*4,4)}, {vr(vX+i*16+s*4,4)}, {cc}")
        if p == 0:
            labg = only_wave(f"s_cmp_lt_u32 s{sW}, 2")
            a("s_waitcnt lgkmcnt(0)")
            for s in range(4):
                cc = "0" if (i == 0 and s == 0) else vr(vGACC, 16)
                a(f"v_mfma_f32_32x32x16_bf16 {vr(vGACC,16)}, {vr(vGF+4*s,4)}, {vr(vX+i*16+s*4,4)}, {cc}")
            a(f"{labg}:")
        if n in (7, 15): stamp()
        if n == 8: epi1a()
        if n == 9: epi1b()
        if n == 16: epi2()
        if n == 18: hop1()
    stamp()
    a.c("epilogue 3")
    vQ, vPHI, vG = 8, 12, 3
    vPHI = 64
    vNEG, vSA, vSB, vO = 128, 144, 160, 176
    vP, vPF = 192, 200
    vKA, vKB, vVA, vVB = 208, 212, 216, 224
    vAK, vAK8, vAV, vAVI, vAV0 = 232, 233, 234, 235, 236
    vKV = 72
    a(f"v_and_b32 v{vT}, 31, v{vL}\ns_lshl_b32 s{sT0}, s{sRW}, 7\ns_add_u32 s{sT0}, s{sT0}, {GL}\nv_lshl_add_u32 v{vT}, v{vT}, 2, s{sT0}")
    vG = 5
    a(f"ds_read_b32 v{vG}, v{vT}")
    a(f"s_mov_b32 s{sT1}, {f32(0.25*LOG2E)}\ns_nop 7")
    acc = vACC0
    for i in range(4): a(f"v_cvt_pk_bf16_f32 v{vT+i}, v{acc+2*i}, v{acc+2*i+1}")
    for r in range(8): a(f"v_mul_f32 v{acc+8+r}, s{sT1}, v{acc+8+r}")
    a(f"v_mfma_f32_32x32x16_bf16 {vr(vE,16)}, {vr(vWPHI,4)}, {vr(vT,4)}, 0")
    for i in range(4): a(f"v_cvt_pk_bf16_f32 v{vQ+i}, v{acc+8+2*i}, v{acc+8+2*i+1}")
    for r in range(16): a(f"v_mov_b32 v{vNEG+r}, 0")
    softmax16(vE, vPHI, vE+26)
    g, r, c, hf = vT, vT+1, vT+2, vT+3
    a(f"s_lshl_b32 s{sT0}, s{sRW}, 13\ns_lshl_b32 s{sT1}, s{sH}, 11\ns_add_u32 s{sT0}, s{sT0}, s{sT1}")
    a(f"v_add_u32 v{vAK}, s{sT0}, v{vL16}\nv_add_u32 v{vAK8}, 65536, v{vAK}")
    a(f"v_bfe_u32 v{g}, v{vL}, 4, 1\nv_bfe_u32 v{r}, v{vL}, 2, 2\nv_bfe_u32 v{c}, v{vL}, 1, 1\nv_lshrrev_b32 v{hf}, 5, v{vL}")
    a(f"v_xor_b32 v{hf}, v{hf}, v{c}\nv_lshl_add_u32 v{r}, v{hf}, 2, v{r}\nv_lshlrev_b32 v{r}, 4, v{r}\nv_lshl_add_u32 v{r}, v{c}, 9, v{r}")
    a(f"v_and_b32 v{c}, 1, v{vL}\nv_lshl_add_u32 v{r}, v{c}, 3, v{r}\ns_add_u32 s{sT0}, s{sT0}, 1024\nv_add_u32 v{r}, s{sT0}, v{r}")
    a(f"v_cmp_eq_u32 {sr(sP,2)}, 1, v{g}\nv_mov_b32 v{hf}, {ONES+128}\nv_mov_b32 v{c}, 8192\ns_nop 0")
    a(f"v_cndmask_b32 v{vAV0}, v{r}, v{hf}, {sr(sP,2)}\nv_cndmask_b32 v{vAVI}, v{c}, 0, {sr(sP,2)}")
    stamp()
    lab = only_wave(f"s_cmp_eq_u32 s{sW}, 0")
    a(f"s_sub_u32 s{sT1}, s{sRB}, 4\nv_add_u32 v{vT+1}, s{sT1}, v{vL}\nv_max_i32 v{vT+1}, 0, v{vT+1}\nv_lshlrev_b32 v{vT+1}, 10, v{vT+1}")
    poll(1, 4, vT+1, f"s_lshl_b32 s{sT0}, s{sHG}, 7")
    a(f"{lab}:")
    a("s_waitcnt lgkmcnt(0)\ns_barrier")
    stamp()
    a(f"s_lshl_b32 s{sT1}, s{sHG}, 19\ns_lshl_b32 s{sT2}, s{sRB}, 14\ns_add_u32 s{sT1}, s{sT1}, s{sT2}\ns_add_u32 s{sT1}, s{sT1}, s{sW1K}\ns_add_u32 s{sT1}, s{sT1}, {WS_KVB}")
    labh = a.label("Lhalo")
    for s in range(7, -1, -1):
        if s % 2 == 1: a(f"s_cmp_lt_u32 s{sRB}, {4 - s//2}\ns_cbranch_scc1 {labh}")
        a(f"s_add_u32 m0, s{sW1K}, {s*8192}\ns_sub_u32 s{sT1}, s{sT1}, 8192")
        a(f"buffer_load_dwordx4 v{vL16}, {sr(sWS,4)}, s{sT1} offen sc1 lds")
    a(f"{labh}:\ns_waitcnt vmcnt(0)\ns_barrier")
    stamp()
    a(f"s_mov_b32 s{sRETRY}, 0")
    if o["truemax"] or o["force_fallback"]: a("s_branch L_maxpath")
    a("L_attn:")
    def rdK(dst, j):
        a(f"ds_read_b128 {vr(dst,4)}, v{vAK8}" if j == 8 else f"ds_read_b128 {vr(dst,4)}, v{vAK} offset:{j*8192}")
    def rdV(dst, ad):
        for mf in range(2):
            for t in range(2): a(f"ds_read_b64_tr_b16 {vr(dst+4*mf+2*t,2)}, v{ad} offset:{256*mf+128*t}")
    def qk(S, K): a(f"v_mfma_f32_32x32x16_bf16 {vr(S,16)}, {vr(K,4)}, {vr(vQ,4)}, {vr(vNEG,16)}")
    def pv(V, P, first=False): a(f"v_mfma_f32_32x32x16_bf16 {vr(vO,16)}, {vr(V,4)}, {vr(P,4)}, {'0' if first else vr(vO,16)}")
    rdK(vKA, 8); rdK(vKB, 0)
    a(f"v_lshl_add_u32 v{vAV}, v{vAVI}, 3, v{vAV0}")
    rdV(vVA, vAV); rdV(vVB, vAV0)
    a("s_waitcnt lgkmcnt(8)")
    qk(vSA, vKA); qk(vSB, vKB)
    rdK(vKA, 7)
    a("s_nop 10")
    for r in range(16): a(f"v_cndmask_b32 v{vSA+r}, v{vSB+r}, v{vSA+r}, {sr(sMASK+2*r,2)}")
    a("s_waitcnt lgkmcnt(0)")
    qk(vSB, vKA)
    rdK(vKA, 6)
    for r in range(16): a(f"v_exp_f32 v{vSA+r}, v{vSA+r}")
    for i in range(8): a(f"v_cvt_pk_bf16_f32 v{vPF+i}, v{vSA+2*i}, v{vSA+2*i+1}")
    for i in range(8): a(f"v_and_b32 v{vP+i}, v{vPF+i}, v{vM+i}")
    for i in range(8): a(f"v_xor_b32 v{vPF+i}, v{vPF+i}, v{vP+i}")
    pv(vVA, vP, True); pv(vVA+4, vP+4)
    lab = only_wave(f"s_cmp_ge_u32 s{sQB}, 8")
    pv(vVB, vPF); pv(vVB+4, vPF+4)
    a(f"{lab}:")
    a(f"v_sub_u32 v{vAV}, v{vAV}, v{vAVI}")
    rdV(vVA, vAV)
    cur, nxt = vSB, vSA
    vc, vn = vVA, vVB
    for j in range(7, 0, -1):
        a.c(f"block {j}")
        a(f"s_cmp_lt_u32 s{sQB}, {8-j}\ns_cbranch_scc1 L_attn_end")
        a("s_waitcnt lgkmcnt(0)")
        if j > 1:
            qk(nxt, vKA)
            if j > 2: rdK(vKA, j-2)
            a(f"v_sub_u32 v{vAV}, v{vAV}, v{vAVI}")
            rdV(vn, vAV)
        P = vP if j % 2 else vPF
        for r in range(8): a(f"v_exp_f32 v{cur+r}, v{cur+r}")
        for i in range(4): a(f"v_cvt_pk_bf16_f32 v{P+i}, v{cur+2*i}, v{cur+2*i+1}")
        for r in range(8, 16):
            a(f"v_exp_f32 v{cur+r}, v{cur+r}")
            if r == 10: pv(vc, P)
        for i in range(4, 8): a(f"v_cvt_pk_bf16_f32 v{P+i}, v{cur+2*i}, v{cur+2*i+1}")
        a("s_nop 1")
        pv(vc+4, P+4)
        cur, nxt = nxt, cur; vc, vn = vn, vc
    a("L_attn_end:")
    a(f"s_waitcnt lgkmcnt(0)\ns_mov_b32 s{sT0}, {f32(2.0**-64)}\ns_mov_b32 s{sT1}, {f32(2.0**64)}\ns_nop 9")
    a(f"v_cmp_lt_f32 vcc, s{sT0}, v{vO+8}\nv_cmp_gt_f32 {sr(sP,2)}, s{sT1}, v{vO+8}")
    a(f"v_rcp_f32 v{vT}, v{vO+8}\nv_sub_f32 v{vT+1}, 1.0, v{vG}")
    a(f"s_and_b64 {sr(sP,2)}, {sr(sP,2)}, vcc\ns_cmp_eq_u64 {sr(sP,2)}, -1\ns_cbranch_scc1 L_attn_ok")
    a(f"s_cmp_eq_u32 s{sRETRY}, 0\ns_cbranch_scc1 L_maxpath")
    a("L_attn_ok:")
    a(f"v_mul_f32 v{vT}, v{vT}, v{vT+1}")
    for r in range(8): a(f"v_mul_f32 v{vO+r}, v{vO+r}, v{vT}")
    for i in range(4): a(f"v_cvt_pk_bf16_f32 v{vP+i}, v{vO+2*i}, v{vO+2*i+1}")
    a(f"s_lshl_b32 s{sT4}, s{sRB}, 17\ns_lshl_b32 s{sT1}, s{sRW}, 15\ns_add_u32 s{sT4}, s{sT4}, s{sT1}\ns_lshl_b32 s{sT1}, s{sHG}, 2\ns_add_u32 s{sT1}, s{sT1}, s{sH}")
    a(f"s_lshl_b32 s{sT1}, s{sT1}, 10\ns_add_u32 s{sT4}, s{sT4}, s{sT1}\ns_add_u32 s{sT4}, s{sT4}, {WS_O}\ns_add_u32 s{sT5}, s{sT4}, 65536")
    a(f"buffer_store_dwordx4 {vr(vP,4)}, v{vL16}, {sr(sWS,4)}, s{sT5} offen sc1")
    stamp()
    a(f"v_lshlrev_b32 v{vT+1}, 10, v{vL}")
    poll(2, 8, vT+1, f"s_lshl_b32 s{sT0}, s{sHG}, 7\ns_lshl_b32 s{sT1}, s{sH}, 13\ns_add_u32 s{sT0}, s{sT0}, s{sT1}")
    a(f"v_and_b32 v{vT}, 31, v{vL}\nv_min_u32 v{vT}, 16, v{vT}\nv_lshrrev_b32 v{vT+1}, 5, v{vL}\nv_lshlrev_b32 v{vT+1}, 10, v{vT+1}\nv_lshl_add_u32 v{vT}, v{vT}, 3, v{vT+1}")
    a(f"s_lshl_b32 s{sT0}, s{sHG}, 13\ns_lshl_b32 s{sT1}, s{sH}, 11\ns_add_u32 s{sT0}, s{sT0}, s{sT1}\ns_add_u32 s{sT0}, s{sT0}, {WS_KVF}")
    for fq in range(4): a(f"buffer_load_dwordx2 {vr(vKV+2*fq,2)}, v{vT}, {sr(sWS,4)}, s{sT0} offen offset:{fq*256} sc1")
    a("s_waitcnt vmcnt(0)")
    a(f"v_mfma_f32_32x32x16_bf16 {vr(vSA,16)}, {vr(vKV,4)}, {vr(vPHI,4)}, 0")
    a(f"v_mfma_f32_32x32x16_bf16 {vr(vSA,16)}, {vr(vKV+4,4)}, {vr(vPHI+4,4)}, {vr(vSA,16)}")
    a(f"s_nop 11\nv_add_f32 v{vT}, {f32(1e-6)}, v{vSA+8}\nv_rcp_f32 v{vT}, v{vT}\ns_nop 0\nv_mul_f32 v{vT}, v{vT}, v{vG}")
    for r in range(8): a(f"v_mul_f32 v{vSA+r}, v{vSA+r}, v{vT}")
    for i in range(4): a(f"v_cvt_pk_bf16_f32 v{vPF+i}, v{vSA+2*i}, v{vSA+2*i+1}")
    a(f"buffer_store_dwordx4 {vr(vPF,4)}, v{vL16}, {sr(sWS,4)}, s{sT4} offen sc1")
    a("s_waitcnt vmcnt(0)\ns_barrier")
    flag_store(4)
    stamp()
    for kq in range(4):
        for b in range(2):
            a(f"s_add_u32 m0, s{sW1K}, {XB + kq*16384 + b*8192}\ns_mov_b32 s{sT2}, {(kq*128 + b*64)*1024}")
            a(f"buffer_load_dwordx4 v{vXD}, {sr(sWOB,4)}, s{sT2} offen lds")
    g, r, c, hf, a0, a1 = vT, vT+1, vT+2, vT+3, vT+4, vT+5
    a(f"v_bfe_u32 v{g}, v{vL}, 4, 1\nv_bfe_u32 v{r}, v{vL}, 2, 2\nv_and_b32 v{c}, 3, v{vL}\nv_lshrrev_b32 v{hf}, 5, v{vL}")
    a(f"v_and_b32 v{a0}, 2, v{r}\nv_xor_b32 v{a0}, v{a0}, v{g}\nv_lshlrev_b32 v{a0}, 5, v{a0}\nv_lshl_add_u32 v{r}, v{hf}, 3, v{r}")
    a(f"v_lshl_add_u32 v{a0}, v{r}, 7, v{a0}\nv_lshl_add_u32 v{a0}, v{c}, 3, v{a0}\ns_lshl_b32 s{sT0}, s{sH}, 14\nv_add_u32 v{a0}, s{sT0}, v{a0}")
    a(f"v_xor_b32 v{a1}, 64, v{a0}")
    a2, a3 = vT+6, vT+7
    a(f"v_add_u32 v{a2}, {RING}, v{a0}\nv_add_u32 v{a3}, {RING}, v{a1}")
    vWO = 128
    def rdwo(br, ads):
        for hd in range(8):
            for ct in range(2):
                for t in range(2):
                    a(f"ds_read_b64_tr_b16 {vr(vWO + br*64 + hd*8 + ct*4 + t*2, 2)}, v{ads[ct]} offset:{(16*hd+4*t)*128}")
            if hd % 2 == 1: a("s_waitcnt lgkmcnt(4)")
    rdwo(0, (a2, a3))
    a("s_waitcnt vmcnt(0)\ns_barrier")
    rdwo(1, (a0, a1))
    stamp()
    lab = only_wave(f"s_cmp_eq_u32 s{sW}, 0")
    a(f"v_lshlrev_b32 v{vT+1}, 7, v{vL}")
    poll(4, 8, vT+1, f"s_lshl_b32 s{sT0}, s{sRB3}, 10")
    lab2 = only_wave("s_cmp_eq_u32 s2, 0")
    a(f"v_mov_b32 v{vT}, s{sNON}\nv_mov_b32 v{vT+1}, 0\ns_mov_b64 exec, 1\nbuffer_store_dword v{vT}, v{vT+1}, {sr(sWS,4)}, 0 offen sc1\ns_mov_b64 exec, -1")
    a(f"{lab2}:")
    a(f"{lab}:")
    a("s_waitcnt lgkmcnt(0)\ns_barrier")
    stamp()
    vOF = 64
    a(f"s_lshl_b32 s{sT0}, s{sRB3}, 17\ns_lshl_b32 s{sT1}, s{sRW}, 15\ns_add_u32 s{sT0}, s{sT0}, s{sT1}\ns_lshl_b32 s{sT1}, s{sH}, 13\ns_add_u32 s{sT0}, s{sT0}, s{sT1}\ns_add_u32 s{sT0}, s{sT0}, {WS_O}")
    for br in range(2):
        for hd in range(8):
            a(f"buffer_load_dwordx4 {vr(vOF+br*32+hd*4,4)}, v{vL16}, {sr(sWS,4)}, s{sT0} offen offset:{(hd%4)*1024} sc1")
            if hd == 3: a(f"s_add_u32 s{sT0}, s{sT0}, 4096")
        if br == 0: a(f"s_add_u32 s{sT0}, s{sT0}, {65536-4096}")
    row, bw, br0, br1 = vT, vT+1, vT+2, vT+3
    a(f"v_and_b32 v{row}, 31, v{vL}\ns_lshl_b32 s{sT0}, s{sRW}, 5\nv_add_u32 v{row}, s{sT0}, v{row}\nv_lshrrev_b32 v{bw}, 5, v{vL}")
    a(f"v_and_b32 v{br0}, 15, v{row}\nv_xor_b32 v{bw}, v{bw}, v{br0}\nv_lshlrev_b32 v{bw}, 4, v{bw}\nv_lshl_add_u32 v{bw}, v{row}, 8, v{bw}")
    a(f"s_lshl_b32 s{sT0}, s{sH}, 14\nv_add_u32 v{bw}, s{sT0}, v{bw}")
    a(f"v_lshrrev_b32 v{row}, 3, v{vL}\ns_lshl_b32 s{sT0}, s{sW}, 3\nv_add_u32 v{row}, s{sT0}, v{row}")
    a(f"v_and_b32 v{br0}, 7, v{vL}\nv_lshlrev_b32 v{br0}, 1, v{br0}\nv_and_b32 v{br1}, 15, v{row}\nv_xor_b32 v{br0}, v{br0}, v{br1}")
    a(f"v_lshlrev_b32 v{br0}, 4, v{br0}\nv_lshl_add_u32 v{br0}, v{row}, 8, v{br0}\nv_xor_b32 v{br1}, 16, v{br0}")
    vout = vT+4
    a(f"v_and_b32 v{vout}, 7, v{vL}\nv_lshlrev_b32 v{vout}, 4, v{vout}\nv_lshl_add_u32 v{vout}, v{row}, 10, v{vout}")
    for k in range(16):
        a(f"s_waitcnt vmcnt({15-k})")
        for ct in range(2):
            acc = vACC0 + 16*ct
            a(f"v_mfma_f32_32x32x16_bf16 {vr(acc,16)}, {vr(vWO+k*8+ct*4,4)}, {vr(vOF+k*4,4)}, {'0' if k == 0 else vr(acc,16)}")
    stamp()
    a("s_nop 7")
    for ct in range(2):
        for qd in range(4):
            a(f"v_xor_b32 v{vT+5}, {(8*ct+2*qd)*16}, v{bw}")
            if ct == 0 and qd == 0: a("s_nop 3")
            a(f"ds_write_b128 v{vT+5}, {vr(vACC0+16*ct+4*qd,4)}")
    a("s_waitcnt lgkmcnt(0)\ns_barrier")
    R = 64
    for kq in range(4):
        a(f"ds_read_b128 {vr(R+kq*8,4)}, v{br0} offset:{kq*16384}\nds_read_b128 {vr(R+kq*8+4,4)}, v{br1} offset:{kq*16384}")
    a(f"s_lshl_b32 s{sT0}, s{sRB3}, 16\ns_lshl_b32 s{sT1}, s{sCB}, 7\ns_add_u32 s{sT0}, s{sT0}, s{sT1}")
    a("s_waitcnt lgkmcnt(4)")
    for j in range(8): a(f"v_add_f32 v{R+j}, v{R+j}, v{R+8+j}")
    a("s_waitcnt lgkmcnt(0)")
    for j in range(8): a(f"v_add_f32 v{R+16+j}, v{R+16+j}, v{R+24+j}")
    for j in range(8): a(f"v_add_f32 v{R+j}, v{R+j}, v{R+16+j}")
    for i in range(4): a(f"v_cvt_pk_bf16_f32 v{R+32+i}, v{R+2*i}, v{R+2*i+1}")
    a(f"buffer_store_dwordx4 {vr(R+32,4)}, v{vout}, {sr(sOUT,4)}, s{sT0} offen")
    if o["stamps"]:
        a("s_waitcnt vmcnt(0)")
        stamp()
        a(f"s_memrealtime s[{sTS}:{sTS+1}]\ns_waitcnt lgkmcnt(0)\nv_writelane_b32 v7, s98, 30\nv_writelane_b32 v7, s{sTS}, 31")
        a(f"s_lshl_b32 s{sT0}, s2, 3\ns_add_u32 s{sT0}, s{sT0}, s{sW}\ns_lshl_b32 s{sT0}, s{sT0}, 7\ns_add_u32 s{sT0}, s{sT0}, {WS_DBG}")
        a(f"v_lshlrev_b32 v{vT}, 2, v{vL}\ns_mov_b32 exec_hi, 0\nbuffer_store_dword v7, v{vT}, {sr(sWS,4)}, s{sT0} offen")
    a("L_exit:\ns_endpgm")
    a("L_maxpath:")
    m = vT
    a(f"s_mov_b32 s{sRETRY}, 1\nv_mov_b32 v{vT+1}, 0xff800000")
    rdK(vKA, 8); rdK(vKB, 0)
    a("s_waitcnt lgkmcnt(0)")
    a(f"v_mfma_f32_32x32x16_bf16 {vr(vSA,16)}, {vr(vKA,4)}, {vr(vQ,4)}, 0")
    a(f"v_mfma_f32_32x32x16_bf16 {vr(vSB,16)}, {vr(vKB,4)}, {vr(vQ,4)}, 0")
    a("s_nop 15")
    lab = only_wave(f"s_cmp_lt_u32 s{sQB}, 8")
    for r in range(16): a(f"v_mov_b32 v{vSB+r}, v{vT+1}")
    a(f"{lab}:")
    for r in range(16): a(f"v_cndmask_b32 v{vSA+r}, v{vSB+r}, v{vSA+r}, {sr(sMASK+2*r,2)}")
    a(f"v_mov_b32 v{m}, v{vT+1}")
    for r in range(0, 16, 2): a(f"v_max3_f32 v{m}, v{m}, v{vSA+r}, v{vSA+r+1}")
    a(f"s_min_u32 s{sT0}, s{sQB}, 7\nv_mov_b32 v{vT+2}, v{vAK8}")
    a(f"L_maxloop:\ns_cmp_eq_u32 s{sT0}, 0\ns_cbranch_scc1 L_maxdone")
    a(f"v_subrev_u32 v{vT+2}, 8192, v{vT+2}\nds_read_b128 {vr(vKA,4)}, v{vT+2}\ns_waitcnt lgkmcnt(0)")
    a(f"v_mfma_f32_32x32x16_bf16 {vr(vSA,16)}, {vr(vKA,4)}, {vr(vQ,4)}, 0\ns_nop 15")
    for r in range(0, 16, 2): a(f"v_max3_f32 v{m}, v{m}, v{vSA+r}, v{vSA+r+1}")
    a(f"s_sub_u32 s{sT0}, s{sT0}, 1\ns_branch L_maxloop")
    a(f"L_maxdone:\nv_mov_b32 v{vT+1}, v{m}\ns_nop 1\nv_permlane32_swap_b32 v{m}, v{vT+1}\ns_nop 1\nv_max_f32 v{m}, v{m}, v{vT+1}")
    for r in range(16): a(f"v_sub_f32 v{vNEG+r}, 0, v{m}")
    a("s_branch L_attn")
    a("L_codeend:")
    return a

HDR = open("gated_mix__linear_kernel_hedgehog__sliding_block__prompt.s.ref").read().split("; Override launch")[0]
def full(a):
    return (HDR + f"; @launch grid=(256,1,1) block=(512,1,1) lds={LDS_BYTES}\n"
            '.amdgcn_target "amdgcn-amd-amdhsa--gfx950"\n.text\n'
            f".globl {NAME}\n.p2align 8\n.type {NAME},@function\n{NAME}:\n" + a.text() +
            '.section .rodata,"a"\n.p2align 6\n'
            f".amdhsa_kernel {NAME}\n  .amdhsa_next_free_vgpr 256\n  .amdhsa_next_free_sgpr 102\n"
            "  .amdhsa_accum_offset 256\n  .amdhsa_group_segment_fixed_size 0\n  .amdhsa_kernarg_size 88\n"
            "  .amdhsa_user_sgpr_count 2\n  .amdhsa_user_sgpr_kernarg_segment_ptr 1\n"
            "  .amdhsa_system_sgpr_workgroup_id_x 1\n.end_amdhsa_kernel\n")
if __name__ == "__main__":
    out = sys.argv[1]
    opts = {k: True for k in sys.argv[2:]}
    open(out, "w").write(full(gen(opts)))
```

```python
import sys, struct
NAME = "gated_mix__linear_kernel_hedgehog__sliding_block__prompt_kernel"

class Asm:
    def __init__(self):
        self.L = []; self.nlab = 0; self.q = []; self.ni = 0
    def __call__(self, s):
        for line in s.split("\n"):
            line = line.strip()
            if not line: continue
            if line.endswith(":"): self.L.append(line)
            else:
                self.L.append("    " + line)
                if not line.startswith(";"):
                    self.ni += (1 + int(line.split()[1])) if line.startswith("s_nop") else 1
    def c(self, s): self.L.append("    ; " + s)
    def label(self, b="L"):
        self.nlab += 1; return f"{b}_{self.nlab}"
    def vm(self, s, tag=None): self(s); self.q.append(tag)
    def mark(self, tag): self.q.append(("mark", tag))
    def cnt_after(self, tag):
        idx = None
        for i, t in enumerate(self.q):
            if t == tag or t == ("mark", tag): idx = i
        assert idx is not None, tag
        return sum(1 for t in self.q[idx+1:] if not (isinstance(t, tuple) and t[0] == "mark"))
    def text(self): return "\n".join(self.L) + "\n"

def icost(line):
    m = line.split()[0]
    if m.startswith(("v_exp", "v_rcp", "v_permlane")): return 2
    if m.startswith("s_"): return 0.7
    return 1

class Side:
    def __init__(self, a): self.a = a; self.u = []; self.pos = {}; self.deferred = False
    def add(self, s):
        for line in s.split("\n"):
            line = line.strip()
            if line: self.u.append(("i", line))
    def block(self, fn, cost): self.u.append(("b", fn, cost))
    def sync(self): self.u.append(("sync",))
    def note(self, name): self.u.append(("note", name))
    def dist(self, name, n): self.u.append(("dist", name, n))
    def slot(self, budget):
        while self.u and budget > 0:
            u = self.u[0]
            if u[0] == "sync": return
            if u[0] == "dist":
                have = self.a.ni - self.pos[u[1]]
                if have < u[2]:
                    if budget < 1e8 and not self.deferred:
                        self.deferred = True; return
                    self.a(f"s_nop {u[2]-have-1}")
                self.deferred = False
            self.u.pop(0)
            if u[0] == "i": self.a(u[1]); budget -= icost(u[1])
            elif u[0] == "b": u[1](); budget -= u[2]
            elif u[0] == "note": self.pos[u[1]] = self.a.ni
    def barrier_passed(self):
        if self.u and self.u[0][0] == "sync": self.u.pop(0)

def vr(b, n=1): return f"v{b}" if n == 1 else f"v[{b}:{b+n-1}]"
def sr(b, n=1): return f"s{b}" if n == 1 else f"s[{b}:{b+n-1}]"
def f32(x): return "0x%08x" % struct.unpack("<I", struct.pack("<f", x))[0]
MF = "v_mfma_f32_32x32x16_bf16"

XB, OWN, RING, MISC = 0, 65536, 81920, 147456
WPHI, GATEW, GP, ONES = MISC, MISC + 2048, MISC + 3072, MISC + 4096
LDS_BYTES = 163840
PHI_S, VA_S = XB, XB + 16384
WS_REC  = 0x10000
WS_PART = 0x100000
PSTR, SSTR = 320, 320 * 32
WS_KVB  = 0x500000
WS_O    = 0x900000
WS_DBG  = 0xD00000
WS_SIZE = 0x1000000
LOG2E = 1.4426950408889634
sX, sWA, sWB, sWS, sWOA, sWOB, sOUT = 4, 8, 12, 16, 20, 24, 28
sCH = 32
sW, sRW, sH, sHG, sRB, sROT, sNON, sW1K, sQB, sID = 40, 41, 42, 43, 44, 45, 46, 47, 48, 49
sT0, sT1, sT2 = 50, 51, 52
sS0, sS1, sS2 = 53, 54, 55
sOA, sOB = 56, 57
sP = 58
sPART, sSPIN, sRB3, sCB = 60, 61, 62, 63
sMASK = 64
sTS = 96
sKVW = 3
sKVB, sH1P = 0, 1
vG, vL, vL16, vXD, vWDX, vWDY, vWRD = 0, 1, 2, 3, 4, 5, 6
vXR, vWPHI, vM = 8, 12, 16
vAPW, vAVW, vAGP, vAPR, vAVR, vAK8, vPO, vVO = 24, 25, 26, 27, 28, 29, 30, 31
vACC0, vACC1, vWF, vE, vX = 32, 48, 64, 96, 128
SPIN_MAX = 200000

def gen(opts=None):
    o = dict(stamps=False, force_fallback=False, bud1=13, bud3=5, f1_it=15, h1_poll=18, h1_load=20, h1_red=22, f2_it=19, f2poll_it=22,
             map24=False, kv_blk=5, b3_blk=5, f4_blk=2, wpf=True, wopf=True, woa_first=4)
    o.update(opts or {})
    a = Asm(); side = Side(a)
    nst = [0]; pend = []
    def stamp(name=""):
        if not o["stamps"]: return
        i = nst[0]; nst[0] += 1; assert i < 24
        a(f"s_memtime s[{sTS}:{sTS+1}]\ns_waitcnt lgkmcnt(0)\nv_writelane_b32 v7, s{sTS}, {i}")
        o.setdefault("_names", []).append(name)
    def stamp_a(name):
        if not o["stamps"]: return
        i = nst[0]; nst[0] += 1; assert i < 24
        a(f"s_memtime s[{sTS}:{sTS+1}]"); pend.append(i); o.setdefault("_names", []).append(name)
    def stamp_b():
        if pend: a(f"v_writelane_b32 v7, s{sTS}, {pend.pop()}")
    def spinrec(i):
        if o["stamps"]: a(f"v_writelane_b32 v7, s{sSPIN}, {i}")
    def srd(d, src, nbytes):
        a(f"s_mov_b32 s{d}, s{src}\ns_and_b32 s{d+1}, s{src+1}, 0xffff\ns_mov_b32 s{d+2}, {nbytes}\ns_mov_b32 s{d+3}, 0x20000")
    def only(cond):
        lab = a.label("Lskip"); a(cond); a(f"s_cbranch_scc0 {lab}"); return lab
    def setexec(lo, hi):
        if hi == 0 and lo <= 64: a(f"s_mov_b64 exec, {lo}")
        else: a(f"s_mov_b32 exec_lo, 0x{lo:x}\ns_mov_b32 exec_hi, 0x{hi:x}")
    WS = sr(sWS, 4)
    t0, t1, t2, t3, t4, t5, t6, t7 = range(vACC1, vACC1 + 8)

    a("s_cmp_ge_u32 s2, 256\ns_cbranch_scc1 L_exit")
    a("s_load_dwordx4 s[64:67], s[0:1], 0\ns_load_dwordx4 s[68:71], s[0:1], 16\ns_load_dwordx4 s[76:79], s[0:1], 56")
    a("s_load_dwordx4 s[72:75], s[0:1], 40\ns_load_dwordx2 s[80:81], s[0:1], 80")
    if o["stamps"]: a("v_mov_b32 v7, 0\ns_memrealtime s[98:99]\ns_memtime s[100:101]")
    a(f"v_lshrrev_b32 v{t0}, 6, v0\nv_and_b32 v{vL}, 63, v0")
    a(f"s_lshr_b32 s{sT0}, s2, 3\nv_readfirstlane_b32 s{sW}, v{t0}")
    a(f"s_getpc_b64 s[{sP}:{sP+1}]\nL_pc:")
    a(f"s_sub_u32 s{sOUT}, s{sP}, L_pc-{NAME}\ns_subb_u32 s{sOUT+1}, s{sP+1}, 0\ns_and_b32 s{sOUT+1}, s{sOUT+1}, 0xffff\ns_mov_b32 s{sOUT+2}, L_codeend-{NAME}\ns_mov_b32 s{sOUT+3}, 0x20000")
    lab = only(f"s_cmp_eq_u32 s{sW}, 7")
    a(f"v_and_b32 v{t3}, 3, v{vL}\nv_lshlrev_b32 v{t3}, 7, v{t3}\ns_lshl_b32 s{sT1}, s{sT0}, 9")
    a(f"buffer_load_dword v{vE+31}, v{t3}, {sr(sOUT,4)}, s{sT1} offen")
    a(f"{lab}:")
    if not o["map24"]:
        a(f"s_and_b32 s{sHG}, s2, 7\ns_mov_b32 s{sRB}, s{sT0}\ns_add_u32 s{sROT}, s{sRB}, s{sHG}")
    else:
        a(f"s_and_b32 s{sRB}, s2, 1\ns_lshl_b32 s{sRB}, s{sRB}, 4\ns_and_b32 s{sT1}, s{sT0}, 15\ns_add_u32 s{sRB}, s{sRB}, s{sT1}")
        a(f"s_and_b32 s{sHG}, s2, 6\ns_lshr_b32 s{sT1}, s{sT0}, 4\ns_add_u32 s{sHG}, s{sHG}, s{sT1}")
        a(f"s_lshl_b32 s{sROT}, s{sHG}, 2\ns_add_u32 s{sROT}, s{sROT}, s{sRB}")
    a(f"s_and_b32 s{sROT}, s{sROT}, 7\ns_lshl_b32 s{sW1K}, s{sW}, 10\nv_lshlrev_b32 v{vL16}, 4, v{vL}")
    a(f"v_lshrrev_b32 v{t0}, 3, v0\nv_and_b32 v{t1}, 7, v{vL}\nv_bfe_u32 v{t2}, v{vL}, 4, 1")
    a(f"v_bfe_u32 v{t3}, v{t0}, 1, 3\nv_xor_b32 v{t3}, v{t3}, v{t1}\nv_lshlrev_b32 v{t3}, 4, v{t3}")
    a(f"s_lshl_b32 s{sT1}, s{sRB}, 6\nv_add_u32 v{t4}, s{sT1}, v{t0}\nv_lshl_add_u32 v{vXD}, v{t4}, 10, v{t3}")
    a(f"v_lshlrev_b32 v{t3}, 1, v{t2}\nv_xor_b32 v{t3}, v{t3}, v{t1}\nv_lshlrev_b32 v{t3}, 4, v{t3}")
    a(f"v_mul_u32_u24 v{t4}, 3072, v{t0}\ns_lshl_b32 s{sT1}, s{sHG}, 7\nv_add3_u32 v{vWDX}, v{t4}, v{t3}, s{sT1}")
    a(f"v_xor_b32 v{vWDY}, 64, v{vWDX}\ns_mul_i32 s{sCH}, s{sROT}, {64*3072}")
    a(f"s_lshl_b32 s{sT2}, s{sROT}, 7\nv_add_u32 v{t5}, s{sT2}, v{vL16}\nv_and_b32 v{t5}, 1023, v{t5}")
    a("s_waitcnt lgkmcnt(0)")
    srd(sX, 64, 2097152); srd(sWA, 66, 1572864)
    passes = [((sWA, 1024), (sWA, 2048)), ((sWB, 1024), (sWB, 2048)), ((sWA, 0), (sWB, 0))]
    def dma_x(n):
        if n == 0: a(f"s_mov_b32 m0, s{sW1K}\ns_nop 0"); so = sT2
        else:
            a(f"s_add_u32 s{sT0}, s{sROT}, {n}\ns_and_b32 s{sT0}, s{sT0}, 7\ns_add_u32 m0, s{sW1K}, {XB + n*8192}\ns_lshl_b32 s{sT0}, s{sT0}, 7"); so = sT0
        a.vm(f"buffer_load_dwordx4 v{vXD}, {sr(sX,4)}, s{so} offen lds", ("x", n))
    def dma_w_m0(n, b):
        off = passes[n // 8][b][1] if n < 24 else 0
        a(f"s_add_u32 m0, s{sW1K}, {RING + (n%4)*16384 + b*8192 - off}")
    def dma_w_ld(n, b):
        if n < 24:
            p, i = divmod(n, 8); d, off = passes[p][b]
            a.vm(f"buffer_load_dwordx4 v{vWDX if b == 0 else vWDY}, {sr(d,4)}, s{sCH+i} offen offset:{off} lds", ("w", n, b))
        else:
            a.vm(f"buffer_load_dwordx4 v{vXD}, {sr(sWOA,4)}, s{sCH+2*(n-24)+b} offen lds", ("w", n, b))
    def dma_w(n, b): dma_w_m0(n, b); a("s_nop 0"); dma_w_ld(n, b)
    dma_x(0); dma_w(0, 0); dma_w(0, 1)
    a("s_load_dword s82, s[80:81], 0")
    srd(sWOA, 68, 16384); srd(sWOB, 76, 1024)
    lab = only(f"s_cmp_lt_u32 s{sW}, 2")
    a(f"s_lshl_b32 s{sT0}, s{sHG}, 11\ns_add_u32 m0, s{sW1K}, {WPHI}\ns_add_u32 s{sT0}, s{sT0}, s{sW1K}")
    a(f"buffer_load_dwordx4 v{vL16}, {sr(sWOA,4)}, s{sT0} offen lds")
    a(f"{lab}:")
    lab = only(f"s_cmp_eq_u32 s{sW}, 2")
    a(f"s_mov_b32 m0, {GATEW}\ns_nop 0\nbuffer_load_dwordx4 v{t5}, {sr(sWOB,4)}, 0 offen lds")
    a(f"{lab}:")
    srd(sWB, 72, 1572864); srd(sWOA, 70, 524288); srd(sWOB, 74, 524288)
    a(f"s_and_b32 s{sRW}, s{sW}, 1\ns_lshr_b32 s{sH}, s{sW}, 1")
    if o["wpf"]:
        nrow = 32 if o["map24"] else 16
        lab = only(f"s_cmp_eq_u32 s{sH}, 2")
        sh = nrow.bit_length() - 1
        a(f"s_and_b32 s{sT0}, s{sRB}, {512//nrow-1}\ns_lshl_b32 s{sT0}, s{sT0}, {sh}\nv_and_b32 v{t3}, {nrow-1}, v{vL}\nv_add_u32 v{t3}, s{sT0}, v{t3}")
        a(f"v_mul_u32_u24 v{t3}, 3072, v{t3}\nv_lshrrev_b32 v{t4}, {sh}, v{vL}\nv_lshl_add_u32 v{t3}, v{t4}, 10, v{t3}\ns_lshl_b32 s{sT0}, s{sHG}, 7")
        lab2 = only(f"s_cmp_eq_u32 s{sRW}, 0")
        if nrow == 16:
            setexec(0xffffffff, 0xffff)
            a(f"buffer_load_dword v{vE+31}, v{t3}, {sr(sWB,4)}, s{sT0} offen")
        else:
            a(f"buffer_load_dword v{vE+31}, v{t3}, {sr(sWB,4)}, s{sT0} offen offset:1024")
        a(f"{lab2}:")
        lab2 = only(f"s_cmp_eq_u32 s{sRW}, 1")
        setexec((1 << nrow) - 1, 0)
        a(f"buffer_load_dword v{vE+31}, v{t3}, {sr(sWA,4)}, s{sT0} offen")
        if nrow == 32: a(f"buffer_load_dword v{vE+30}, v{t3}, {sr(sWB,4)}, s{sT0} offen")
        a(f"{lab2}:\ns_mov_b64 exec, -1")
        a(f"{lab}:")
    if o["wopf"]:
        lab = only(f"s_cmp_eq_u32 s{sW}, 3")
        a(f"v_lshlrev_b32 v{t3}, 7, v{vL}\ns_lshl_b32 s{sT0}, s2, 11")
        setexec(0xffff, 0)
        a(f"buffer_load_dword v{vE+31}, v{t3}, {sr(sWOA,4)}, s{sT0} offen\nbuffer_load_dword v{vE+30}, v{t3}, {sr(sWOB,4)}, s{sT0} offen\ns_mov_b64 exec, -1")
        a(f"{lab}:")
    a.mark("misc")
    srd(sWS, 80, WS_SIZE); srd(sOUT, 78, 2097152)
    for i in range(1, 8):
        a(f"s_add_u32 s{sCH+i}, s{sROT}, {i}\ns_and_b32 s{sCH+i}, s{sCH+i}, 7\ns_mul_i32 s{sCH+i}, s{sCH+i}, {64*3072}")
    a(f"s_lshr_b32 s{sT0}, s2, 3\ns_and_b32 s{sRB3}, s2, 7\ns_lshl_b32 s{sRB3}, s{sRB3}, 2\ns_lshr_b32 s{sT1}, s{sT0}, 3\ns_add_u32 s{sRB3}, s{sRB3}, s{sT1}\ns_and_b32 s{sCB}, s{sT0}, 7")
    a(f"s_lshl_b32 s{sID}, s{sRB}, 3\ns_add_u32 s{sID}, s{sID}, s{sHG}\ns_lshl_b32 s{sID}, s{sID}, 10\ns_add_u32 s{sID}, s{sID}, {WS_REC}")
    l32, half = t6, t7
    a(f"v_and_b32 v{l32}, 31, v{vL}\nv_lshrrev_b32 v{half}, 5, v{vL}")
    a(f"s_lshl_b32 s{sT0}, s{sRW}, 5\nv_add_u32 v{t0}, s{sT0}, v{l32}")
    a(f"v_bfe_u32 v{t1}, v{t0}, 1, 3\nv_xor_b32 v{t1}, v{t1}, v{half}\nv_lshlrev_b32 v{t1}, 4, v{t1}\nv_lshl_add_u32 v{vXR}, v{t0}, 7, v{t1}")
    for s in range(1, 4): a(f"v_xor_b32 v{vXR+s}, {s*32}, v{vXR}")
    vGACC, vGXF, vGF, vGX, vGA, vWPA, vSG = vE, vE+16, vE+20, vE+24, vE+25, vE+26, vE+27
    a(f"s_lshl_b32 s{sT0}, s{sH}, 5\nv_xor_b32 v{vGX}, s{sT0}, v{vXR}\ns_add_u32 s{sT0}, s{sT0}, {GATEW}\nv_lshl_add_u32 v{vGA}, v{half}, 4, s{sT0}")
    a(f"s_lshl_b32 s{sT0}, s{sH}, 2\ns_add_u32 s{sT0}, s{sT0}, {GP}\nv_lshl_add_u32 v{vAGP}, v{t0}, 4, s{sT0}")
    a(f"v_lshl_add_u32 v{t1}, v{t0}, 1, v{half}\ns_lshl_b32 s{sT0}, s{sH}, 7\nv_add_u32 v{t1}, s{sT0}, v{t1}\nv_lshlrev_b32 v{vAVW}, 4, v{t1}\nv_lshlrev_b32 v{vAPW}, 5, v{t1}")
    a(f"v_mul_u32_u24 v{t1}, {4*SSTR}, v{half}\nv_lshl_add_u32 v{vPO}, v{l32}, 4, v{t1}")
    a(f"v_lshlrev_b32 v{t1}, 6, v{half}\nv_xor_b32 v{vVO}, v{t1}, v{vL16}")
    a(f"s_lshl_b32 s{sT0}, s{sRW}, 13\ns_lshl_b32 s{sT1}, s{sH}, 11\ns_add_u32 s{sT0}, s{sT0}, s{sT1}\ns_add_u32 s{sT1}, s{sT0}, {OWN}\nv_add_u32 v{vAK8}, s{sT1}, v{vL16}")
    a(f"s_lshl_b32 s{sKVB}, s{sHG}, 19\ns_lshl_b32 s{sT1}, s{sRB}, 14\ns_add_u32 s{sKVB}, s{sKVB}, s{sT1}\ns_add_u32 s{sKVB}, s{sKVB}, s{sT0}\ns_add_u32 s{sKVB}, s{sKVB}, {WS_KVB}")
    a(f"s_lshl_b32 s{sPART}, s{sHG}, 5\ns_lshl_b32 s{sT1}, s{sH}, 3\ns_add_u32 s{sPART}, s{sPART}, s{sT1}\ns_mul_i32 s{sPART}, s{sPART}, {SSTR}")
    a(f"s_mul_i32 s{sT1}, s{sRB}, {PSTR}\ns_add_u32 s{sPART}, s{sPART}, s{sT1}\ns_add_u32 s{sPART}, s{sPART}, {WS_PART}")
    a(f"s_lshl_b32 s{sH1P}, s{sHG}, 10\ns_lshr_b32 s{sT0}, s{sRB}, 3\ns_lshl_b32 s{sT0}, s{sT0}, 7\ns_add_u32 s{sH1P}, s{sH1P}, s{sT0}\ns_add_u32 s{sH1P}, s{sH1P}, {WS_REC}")
    g, r, c = t0, t1, t2
    a(f"v_bfe_u32 v{g}, v{vL}, 4, 1\nv_bfe_u32 v{r}, v{vL}, 2, 2\nv_and_b32 v{c}, 3, v{vL}")
    a(f"v_lshrrev_b32 v{t3}, 1, v{r}\nv_lshl_add_u32 v{t3}, v{g}, 1, v{t3}\nv_xor_b32 v{t3}, s{sH}, v{t3}\nv_lshlrev_b32 v{t3}, 5, v{t3}")
    a(f"v_lshl_add_u32 v{t5}, v{half}, 3, v{r}\nv_lshl_add_u32 v{t3}, v{t5}, 7, v{t3}\nv_lshl_add_u32 v{t3}, v{c}, 3, v{t3}")
    a(f"v_lshl_add_u32 v{t3}, v{g}, 13, v{t3}\nv_add_u32 v{vWRD}, {RING}, v{t3}")
    a(f"v_and_b32 v{t3}, 1, v{c}\nv_lshlrev_b32 v{t3}, 5, v{t3}\nv_lshl_add_u32 v{t3}, v{g}, 4, v{t3}\nv_lshrrev_b32 v{t4}, 1, v{c}")
    a(f"v_lshl_add_u32 v{t3}, v{t4}, 3, v{t3}\nv_lshl_add_u32 v{t3}, v{t5}, 6, v{t3}\ns_lshl_b32 s{sT0}, s{sH}, 12\nv_add_u32 v{vAPR}, s{sT0}, v{t3}")
    a(f"v_lshlrev_b32 v{t3}, 5, v{t5}\nv_lshl_add_u32 v{t3}, v{c}, 3, v{t3}\ns_lshl_b32 s{sT0}, s{sH}, 11\ns_add_u32 s{sT0}, s{sT0}, {VA_S}\nv_add_u32 v{t3}, s{sT0}, v{t3}")
    a(f"v_cmp_eq_u32 {sr(sP,2)}, 1, v{g}\nv_mov_b32 v{t5}, {ONES+128}")
    a(f"v_lshl_add_u32 v{r}, v{half}, 2, v{r}\nv_lshlrev_b32 v{vWPA}, 5, v{r}\nv_cndmask_b32 v{vAVR}, v{t3}, v{t5}, {sr(sP,2)}")
    a(f"v_lshl_add_u32 v{vWPA}, v{g}, 4, v{vWPA}\nv_lshl_add_u32 v{vWPA}, v{t4}, 3, v{vWPA}")
    a(f"s_lshl_b32 s{sT0}, s{sH}, 9\ns_add_u32 s{sT0}, s{sT0}, {WPHI}\nv_add_u32 v{vWPA}, s{sT0}, v{vWPA}")
    a(f"v_bfe_u32 v{vSG}, v{vL}, 2, 1\nv_mul_u32_u24 v{vSG}, 0x8000, v{vSG}\nv_lshl_or_b32 v{vSG}, v{vSG}, 16, v{vSG}")
    lab = only(f"s_cmp_eq_u32 s{sW}, 3")
    for i in range(4): a(f"v_mov_b32 v{vE+i}, 0x3f803f80")
    a(f"v_add_u32 v{t3}, {ONES}, v{vL16}\nds_write_b128 v{t3}, {vr(vE,4)}\nds_write_b128 v{t3}, {vr(vE,4)} offset:1024")
    a(f"{lab}:")
    a(f"s_lshl_b32 s{sQB}, s{sRB}, 1\ns_add_u32 s{sQB}, s{sQB}, s{sRW}")
    a(f"s_lshr_b32 s{sT0}, s{sH}, 1\ns_cmp_eq_u32 s{sT0}, s{sRW}\ns_cselect_b32 s{sKVW}, 1, 0")
    a(f"s_lshl_b32 s{sOA}, s{sRB}, 17\ns_lshl_b32 s{sT1}, s{sRW}, 15\ns_add_u32 s{sOA}, s{sOA}, s{sT1}\ns_lshl_b32 s{sT1}, s{sHG}, 2\ns_add_u32 s{sT1}, s{sT1}, s{sH}")
    a(f"s_lshl_b32 s{sT1}, s{sT1}, 10\ns_add_u32 s{sOA}, s{sOA}, s{sT1}\ns_add_u32 s{sOA}, s{sOA}, {WS_O}\ns_add_u32 s{sOB}, s{sOA}, 65536")
    stamp("pre")
    dma_x(1); dma_w(1, 0); dma_w(1, 1)
    for i in range(4): a(f"v_mov_b32 v{vE+4+i}, -1")
    a(f"s_lshl_b32 s{sT0}, s{sW}, 7\ns_add_u32 s{sT0}, s{sT0}, s{sID}")
    setexec(0xff, 0)
    a.vm(f"buffer_store_dwordx4 {vr(vE+4,4)}, v{vL16}, {WS}, s{sT0} offen sc1", "rec"); a("s_mov_b64 exec, -1")

    def rd_w(n, s, t): return f"ds_read_b64_tr_b16 {vr(vWF + (n%2)*16 + s*4 + t*2, 2)}, v{vWRD} offset:{(n%4)*16384 + (16*s+4*t)*128}"
    def rd_x(n, s): return f"ds_read_b128 {vr(vX + n*16 + s*4, 4)}, v{vXR+s} offset:{XB + n*8192}"
    def rd_g(n): return f"ds_read_b128 {vr(vGXF,4)}, v{vGX} offset:{XB + n*8192}\nds_read_b128 {vr(vGF,4)}, v{vGA} offset:{n*128}"
    def flag_body(soff, imm, tv):
        for i in range(4): a(f"v_mov_b32 v{tv+i}, s{sNON}")
        a(f"s_mov_b64 exec, 15\nbuffer_store_dwordx4 {vr(tv,4)}, v{vL16}, {WS}, s{soff} offen offset:{imm} sc1\ns_mov_b64 exec, -1")
    def poll_check(dst, voff, soff, imm, lo, hi, cnt, rec=None):
        lp, ld = a.label("Lpoll"), a.label("Lpd")
        setexec(lo, hi)
        a(f"s_mov_b32 s{sSPIN}, 0\ns_waitcnt vmcnt({cnt})")
        a(f"{lp}:\nv_cmp_ne_u32 vcc, s{sNON}, v{dst}\ns_cbranch_vccz {ld}")
        a(f"buffer_load_dword v{dst}, v{voff}, {WS}, s{soff} offen offset:{imm} sc1\ns_add_u32 s{sSPIN}, s{sSPIN}, 1\ns_cmp_gt_u32 s{sSPIN}, {SPIN_MAX}")
        a(f"s_waitcnt vmcnt(0)\ns_cbranch_scc0 {lp}")
        a(f"{ld}:\ns_mov_b64 exec, -1")
        if rec is not None: spinrec(rec)
    def softmax16(S, P, t):
        L = [f"v_max3_f32 v{t+1}, v{S}, v{S+1}, v{S+2}", f"v_max3_f32 v{t+2}, v{S+3}, v{S+4}, v{S+5}",
             f"v_max3_f32 v{t+1}, v{t+1}, v{S+6}, v{S+7}", f"v_max3_f32 v{t+2}, v{t+2}, v{S+8}, v{S+9}",
             f"v_max3_f32 v{t+1}, v{t+1}, v{S+10}, v{S+11}", f"v_max3_f32 v{t+2}, v{t+2}, v{S+12}, v{S+13}",
             f"v_max3_f32 v{t+1}, v{t+1}, v{S+14}, v{S+15}", f"v_mov_b32 v{t}, {f32(LOG2E)}", f"v_max_f32 v{t+1}, v{t+1}, v{t+2}",
             f"v_mul_f32 v{t+1}, v{t}, v{t+1}"]
        for r_ in range(0, 16, 2):
            L.append(f"v_pk_fma_f32 {vr(S+r_,2)}, {vr(S+r_,2)}, {vr(t,2)}, {vr(t,2)} op_sel:[0,0,1] op_sel_hi:[1,0,1] neg_lo:[0,0,1] neg_hi:[0,0,1]")
        for r_ in range(16): L.append(f"v_exp_f32 v{S+r_}, v{S+r_}")
        L.append(f"v_pk_add_f32 {vr(t,2)}, {vr(S,2)}, {vr(S+2,2)}"); L.append(f"v_pk_add_f32 {vr(t+2,2)}, {vr(S+4,2)}, {vr(S+6,2)}")
        L.append(f"v_pk_add_f32 {vr(t,2)}, {vr(t,2)}, {vr(S+8,2)}"); L.append(f"v_pk_add_f32 {vr(t+2,2)}, {vr(t+2,2)}, {vr(S+10,2)}")
        L.append(f"v_pk_add_f32 {vr(t,2)}, {vr(t,2)}, {vr(S+12,2)}"); L.append(f"v_pk_add_f32 {vr(t+2,2)}, {vr(t+2,2)}, {vr(S+14,2)}")
        L.append(f"v_pk_add_f32 {vr(t,2)}, {vr(t,2)}, {vr(t+2,2)}"); L.append(f"v_add_f32 v{t}, v{t}, v{t+1}")
        L.append(f"v_rcp_f32 v{t}, v{t}"); L.append("s_nop 0")
        for r_ in range(0, 16, 2): L.append(f"v_pk_mul_f32 {vr(S+r_,2)}, {vr(S+r_,2)}, {vr(t,2)} op_sel_hi:[1,0]")
        for i in range(8): L.append(f"v_cvt_pk_bf16_f32 v{P+i}, v{S+2*i}, v{S+2*i+1}")
        return L

    def q_masks():
        side.add(f"s_mul_i32 s{sNON}, s82, 0x9E3779B1\ns_add_u32 s{sNON}, s{sNON}, 0x7F4A7C15")
        side.block(lambda: a(f"s_cmp_eq_u32 s{sNON}, -1\ns_cselect_b32 s{sNON}, 0x2545F491, s{sNON}"), 1)
        for rr in range(16):
            m = 0
            for l in range(64):
                if 8*(rr//4) + 4*(l//32) + rr % 4 <= l % 32: m |= 1 << l
            side.add(f"s_mov_b32 s{sMASK+2*rr}, 0x{m & 0xffffffff:08x}\ns_mov_b32 s{sMASK+2*rr+1}, 0x{m >> 32:08x}")
        side.add(f"v_mov_b32 v{t0}, 0xffff\nv_mov_b32 v{t1}, 0xffff0000")
        for i in range(8):
            side.add(f"v_cndmask_b32 v{t2}, 0, v{t0}, {sr(sMASK+4*i,2)}\nv_cndmask_b32 v{t3}, 0, v{t1}, {sr(sMASK+4*i+2,2)}\nv_or_b32 v{vM+i}, v{t2}, v{t3}")
    def q_epi1():
        acc = vACC0; S = vE
        side.add(f"ds_write_b32 v{vAGP}, v{vGACC}\nv_and_b32 v{vAGP}, 0xfffffff0, v{vAGP}")
        side.dist("p0end", 12)
        for i in range(8): side.add(f"v_cvt_pk_bf16_f32 v{acc+i}, v{acc+2*i}, v{acc+2*i+1}")
        side.add(f"{MF} {vr(S,16)}, {vr(vWPHI,4)}, {vr(acc,4)}, 0"); side.note("pk")
        side.add(f"ds_write_b128 v{vAVW}, {vr(acc+4,4)} offset:{VA_S}")
        side.dist("pk", 12)
        for ln in softmax16(S, S, vE+16): side.add(ln)
        side.add(f"ds_write_b128 v{vAPW}, {vr(S,4)} offset:{PHI_S}\nds_write_b128 v{vAPW}, {vr(S+4,4)} offset:{PHI_S+16}")
        side.sync()
        def b_reads(k0):
            lab = only(f"s_cmp_eq_u32 s{sKVW}, 1")
            if k0: a("s_waitcnt lgkmcnt(6)")
            for ks in (k0, k0+1):
                for t in range(2):
                    a(f"ds_read_b64_tr_b16 {vr(vE+8*ks+t*2,2)}, v{vAPR} offset:{PHI_S + (16*ks+4*t)*64}")
                    a(f"ds_read_b64_tr_b16 {vr(vE+8*ks+4+t*2,2)}, v{vAVR} offset:{ks*512 + t*128}")
            if not k0: a("s_waitcnt lgkmcnt(8)")
            a(f"{lab}:")
        side.block(lambda: b_reads(0), 100); side.block(lambda: b_reads(2), 100)
        def b_mfma():
            lab = only(f"s_cmp_eq_u32 s{sKVW}, 1")
            a("s_waitcnt lgkmcnt(0)")
            for ks in range(4): a(f"{MF} {vr(acc,16)}, {vr(vE+8*ks,4)}, {vr(vE+8*ks+4,4)}, {'0' if ks == 0 else vr(acc,16)}")
            a(f"{lab}:")
        side.block(b_mfma, 1); side.note("kvm")
        side.add(f"ds_read_b128 {vr(vXR,4)}, v{vAGP}")
        side.sync()
        side.dist("kvm", 10)
        def b_store():
            lab = only(f"s_cmp_eq_u32 s{sKVW}, 1")
            setexec(0xfffff, 0xfffff)
            for fq in range(4):
                a(f"buffer_store_dwordx4 {vr(acc+4*fq,4)}, v{vPO}, {WS}, s{sPART} offen sc1")
                if fq < 3: a(f"s_add_u32 s{sPART}, s{sPART}, {SSTR}")
            a(f"s_mov_b64 exec, -1\n{lab}:")
            a.mark("part")
        side.block(b_store, 100)
        side.add(f"v_pk_add_f32 {vr(vXR,2)}, {vr(vXR,2)}, {vr(vXR+2,2)}\nv_add_f32 v{vXR}, v{vXR}, v{vXR+1}")
        side.add(f"v_mul_f32 v{vXR}, {f32(-LOG2E)}, v{vXR}\nv_exp_f32 v{vXR}, v{vXR}\ns_nop 0\nv_add_f32 v{vXR}, 1.0, v{vXR}\nv_rcp_f32 v{vG}, v{vXR}")
        t = vE + 28
        side.add(f"v_lshrrev_b32 v{t}, 3, v{vL}\ns_lshl_b32 s{sS0}, s{sW}, 3\nv_add_u32 v{t}, s{sS0}, v{t}")
        side.add(f"v_bfe_u32 v{t+1}, v{vL}, 4, 1\nv_lshlrev_b32 v{t+1}, 2, v{t+1}\nv_and_b32 v{t+2}, 7, v{vL}\nv_xor_b32 v{t+1}, v{t+1}, v{t+2}")
        side.add(f"v_lshlrev_b32 v{t+1}, 4, v{t+1}\nv_lshl_add_u32 v{t}, v{t}, 10, v{t+1}\ns_lshl_b32 s{sS0}, s{sCB}, 7\nv_add_u32 v{vXD}, s{sS0}, v{t}")
        side.add(f"v_xor_b32 v{vAVW}, v{vVO}, v{vL16}\nv_xor_b32 v{vAVW}, v{vAVW}, v{vAK8}")
    def f1():
        lab = only(f"s_cmp_eq_u32 s{sKVW}, 1")
        a(f"s_lshl_b32 s{sS2}, s{sH}, 7\ns_add_u32 s{sS2}, s{sS2}, s{sID}\ns_waitcnt vmcnt({a.cnt_after('part')})")
        flag_body(sS2, 0, vE)
        a.ni -= 10
        a(f"{lab}:")
    vAK, vAV, vAVI, vAV0, vKVO, vWA0, vWA1, vFP, vFO, vF4P, vF4O, vHP, vHO = range(vACC1, vACC1 + 13)
    sF2, sKVS, sF4, sHAL = sX, sX+1, sX+3, sS1
    def q_epi2():
        acc = vACC1; kf = vE + 4
        side.dist("p1end", 12)
        for i in range(4): side.add(f"v_cvt_pk_bf16_f32 v{kf+i}, v{acc+2*i}, v{acc+2*i+1}")
        side.block(lambda: a.vm(f"buffer_store_dwordx4 {vr(kf,4)}, v{vL16}, {WS}, s{sKVB} offen sc1", "kvb0"), 0)
        for i in range(4, 8): side.add(f"v_cvt_pk_bf16_f32 v{kf+i}, v{acc+2*i}, v{acc+2*i+1}")
        side.block(lambda: a.vm(f"buffer_store_dwordx4 {vr(kf+4,4)}, v{vVO}, {WS}, s{sKVB} offen offset:1024 sc1", "kvb"), 0)
        side.add(f"ds_write_b128 v{vAK8}, {vr(kf,4)}\nds_write_b128 v{vAVW}, {vr(kf+4,4)} offset:1024")
    def q_addr():
        g, r, c, hf = vE+16, vE+17, vE+18, vE+19
        side.add(f"v_subrev_u32 v{vAK}, 65536, v{vAK8}")
        side.add(f"v_bfe_u32 v{g}, v{vL}, 4, 1\nv_bfe_u32 v{r}, v{vL}, 2, 2\nv_bfe_u32 v{c}, v{vL}, 1, 1\nv_lshrrev_b32 v{hf}, 5, v{vL}")
        side.add(f"s_sub_u32 s{sS0}, s{sRB}, 4\nv_add_u32 v{vFO}, s{sS0}, v{vL}\nv_max_i32 v{vFO}, 0, v{vFO}\nv_lshlrev_b32 v{vFO}, 13, v{vFO}")
        side.add(f"s_lshl_b32 s{sF2}, s{sHG}, 10\ns_add_u32 s{sF2}, s{sF2}, {WS_REC}")
        side.add(f"v_and_b32 v{vWA0}, 2, v{r}\nv_xor_b32 v{vWA0}, v{vWA0}, v{g}\nv_lshlrev_b32 v{vWA0}, 5, v{vWA0}\nv_lshl_add_u32 v{vWA1}, v{hf}, 3, v{r}")
        side.add(f"v_lshl_add_u32 v{vWA0}, v{vWA1}, 7, v{vWA0}\nv_and_b32 v{vWA1}, 3, v{vL}\nv_lshl_add_u32 v{vWA0}, v{vWA1}, 3, v{vWA0}")
        side.add(f"s_sub_u32 s{sS0}, s{sH}, s{sRB3}\ns_and_b32 s{sS0}, s{sS0}, 3\ns_lshl_b32 s{sS0}, s{sS0}, 14\ns_add_u32 s{sS0}, s{sS0}, {RING}\nv_add_u32 v{vWA0}, s{sS0}, v{vWA0}\nv_xor_b32 v{vWA1}, 64, v{vWA0}")
        side.add(f"v_and_b32 v{vKVO}, 31, v{vL}\nv_min_u32 v{vKVO}, 16, v{vKVO}\nv_lshlrev_b32 v{vKVO}, 3, v{vKVO}\nv_lshl_add_u32 v{vKVO}, v{hf}, 15, v{vKVO}")
        side.add(f"s_lshl_b32 s{sKVS}, s{sH}, 16\ns_add_u32 s{sKVS}, s{sKVS}, s{sF2}\ns_add_u32 s{sKVS+1}, s{sKVS}, 8192")
        side.add(f"v_xor_b32 v{hf}, v{hf}, v{c}\nv_lshl_add_u32 v{r}, v{hf}, 2, v{r}\nv_lshlrev_b32 v{r}, 4, v{r}\nv_lshl_add_u32 v{r}, v{c}, 9, v{r}")
        side.add(f"v_and_b32 v{c}, 1, v{vL}\nv_lshl_add_u32 v{r}, v{c}, 3, v{r}\nv_sub_u32 v{c}, v{vAK}, v{vL16}\nv_add3_u32 v{r}, v{r}, v{c}, 64\nv_add_u32 v{r}, 960, v{r}")
        side.add(f"v_cmp_eq_u32 {sr(sP,2)}, 1, v{g}\nv_mov_b32 v{hf}, {ONES+128}\nv_mov_b32 v{c}, 8192\nv_lshlrev_b32 v{vF4O}, 10, v{vL}")
        side.add(f"v_cndmask_b32 v{vAV0}, v{r}, v{hf}, {sr(sP,2)}\nv_cndmask_b32 v{vAVI}, v{c}, 0, {sr(sP,2)}\nv_lshl_add_u32 v{vAV}, v{vAVI}, 3, v{vAV0}")
        side.add(f"s_lshl_b32 s{sF4}, s{sRB3}, 13\ns_lshl_b32 s{sS0}, s{sH}, 11\ns_add_u32 s{sF4}, s{sF4}, s{sS0}\ns_add_u32 s{sF4}, s{sF4}, {WS_REC}")
        side.add(f"s_lshl_b32 s{sHAL}, s{sHG}, 19\ns_lshl_b32 s{sS0}, s{sRB}, 14\ns_add_u32 s{sHAL}, s{sHAL}, s{sS0}\ns_add_u32 s{sHAL}, s{sHAL}, s{sW1K}\ns_add_u32 s{sHAL}, s{sHAL}, {WS_KVB}")
    def wo_offsets(lo, hi):
        for i in range(lo, hi):
            a(f"s_add_u32 s{sCH+2*i}, s{sRB3}, {i}\ns_and_b32 s{sCH+2*i}, s{sCH+2*i}, 3\ns_lshl_b32 s{sCH+2*i}, s{sCH+2*i}, 17\ns_add_u32 s{sCH+2*i+1}, s{sCH+2*i}, 65536")
    def h1poll():
        lab = only(f"s_cmp_eq_u32 s{sW}, 3")
        a(f"v_lshlrev_b32 v{vHO}, 13, v{vL}\ns_mov_b32 exec_hi, 0")
        a(f"buffer_load_dword v{vHP}, v{vHO}, {WS}, s{sH1P} offen sc1\ns_mov_b64 exec, -1")
        a(f"{lab}:"); a.mark("h1p")
    def h1load():
        lab = only(f"s_cmp_eq_u32 s{sW}, 3")
        poll_check(vHP, vHO, sH1P, 0, 0xffffffff, 0, a.cnt_after("h1p"), rec=26)
        a(f"v_and_b32 v{vHO}, 31, v{vL}\nv_lshrrev_b32 v{vHP}, 5, v{vL}\nv_mul_u32_u24 v{vHP}, {PSTR}, v{vHP}\nv_lshl_add_u32 v{vHO}, v{vHO}, 4, v{vHP}")
        a(f"s_lshl_b32 s{sS2}, s{sHG}, 5\ns_add_u32 s{sS2}, s{sS2}, s{sRB}\ns_mul_i32 s{sS2}, s{sS2}, {SSTR}\ns_add_u32 s{sS2}, s{sS2}, {WS_PART}")
        setexec(0x1ffff, 0x1ffff)
        for i in range(16):
            a(f"buffer_load_dwordx4 {vr(vX+4*i,4)}, v{vHO}, {WS}, s{sS2} offen offset:{(i%6)*2*PSTR} sc1")
            if i % 6 == 5: a(f"s_add_u32 s{sS2}, s{sS2}, {12*PSTR}")
        a(f"s_mov_b64 exec, -1\n{lab}:"); a.mark("h1l")
    def h1red(part):
        lab = only(f"s_cmp_eq_u32 s{sW}, 3")
        if part == 0:
            a(f"s_waitcnt vmcnt({a.cnt_after('h1l')})")
            for j in range(0, 32, 2): a(f"v_pk_add_f32 {vr(vX+j,2)}, {vr(vX+j,2)}, {vr(vX+32+j,2)}")
        elif part == 1:
            for st in (16, 8, 4):
                for j in range(0, st, 2): a(f"v_pk_add_f32 {vr(vX+j,2)}, {vr(vX+j,2)}, {vr(vX+st+j,2)}")
        else:
            for j in range(4): a(f"v_mov_b32 v{vX+4+j}, v{vX+j}")
            a(f"v_lshlrev_b32 v{vX+8}, 3, v{vL}\ns_nop 0")
            for j in range(4): a(f"v_permlane32_swap_b32 v{vX+j}, v{vX+4+j}")
            a("s_nop 1")
            a(f"v_pk_add_f32 {vr(vX,2)}, {vr(vX,2)}, {vr(vX+4,2)}\nv_pk_add_f32 {vr(vX+2,2)}, {vr(vX+2,2)}, {vr(vX+6,2)}")
            a(f"v_cvt_pk_bf16_f32 v{vX+10}, v{vX}, v{vX+1}\nv_cvt_pk_bf16_f32 v{vX+11}, v{vX+2}, v{vX+3}")
            setexec(0xffffff, 0)
            a(f"buffer_store_dwordx2 {vr(vX+10,2)}, v{vX+8}, {WS}, s{sID} offen offset:768 sc1\ns_mov_b64 exec, -1")
        a(f"{lab}:")
    def f2poll():
        a(f"s_mov_b64 exec, 15"); a.vm(f"buffer_load_dword v{vFP}, v{vFO}, {WS}, s{sF2} offen offset:512 sc1", "f2p"); a("s_mov_b64 exec, -1")

    a(f"s_waitcnt vmcnt({a.cnt_after('misc')}) lgkmcnt(0)\ns_barrier")
    stamp("first")
    for s in range(4): a(rd_x(0, s))
    a(rd_g(0))
    for s in range(4): a(rd_w(0, s, 0)); a(rd_w(0, s, 1))
    a("s_waitcnt lgkmcnt(8)")
    a(f"ds_read_b64_tr_b16 {vr(vWPHI,2)}, v{vWPA}\nds_read_b64_tr_b16 {vr(vWPHI+2,2)}, v{vWPA} offset:256")
    dma_x(2); dma_w(2, 0); dma_w(2, 1)
    side.sync()
    for i in range(4): side.add(f"v_xor_b32 v{vWPHI+i}, v{vWPHI+i}, v{vSG}")
    q_masks()
    assert o["h1_load"] >= 20
    nwoa = o["woa_first"]
    for n in range(24):
        p, i = divmod(n, 8)
        a.c(f"---- iteration {n}")
        w = a.cnt_after(("w", n+1, 1)) if n < 23 else None
        if n == o["f2_it"]: w = min(w, a.cnt_after("kvb")) if w is not None else a.cnt_after("kvb")
        a(f"s_waitcnt vmcnt({w}) lgkmcnt(0)" if w is not None else "s_waitcnt lgkmcnt(0)")
        a("s_barrier")
        stamp_b()
        side.barrier_passed()
        if n == 8: assert not side.u; q_epi1()
        if n == 16: assert not side.u, side.u; q_epi2(); q_addr()
        acc = vACC0 if p != 1 else vACC1
        def M(s):
            cc = "0" if (i == 0 and s == 0) else vr(acc, 16)
            a(f"{MF} {vr(acc,16)}, {vr(vWF+(n%2)*16+s*4,4)}, {vr(vX+i*16+s*4,4)}, {cc}")
        nx = n + 1
        if p == 0:
            a(f"{MF} {vr(vGACC,16)}, {vr(vGF,4)}, {vr(vGXF,4)}, {'0' if i == 0 else vr(vGACC,16)}")
            for s in range(2): a(rd_w(nx, s, 0)); a(rd_w(nx, s, 1))
            M(0)
            for s in range(2, 4): a(rd_w(nx, s, 0)); a(rd_w(nx, s, 1))
            M(1)
            if nx < 8:
                for s in range(4): a(rd_x(nx, s))
                a(rd_g(nx))
            side.slot(16)
            M(2)
            if n <= 4: dma_x(n + 3); dma_w(n+3, 0); dma_w(n+3, 1)
            if n == 5: dma_w(8, 0); dma_w(8, 1)
            if n >= 5: dma_w(n+4, 0); dma_w(n+4, 1)
            M(3)
            if n == 7: side.pos["p0end"] = a.ni
        else:
            B = o["bud1"] if p == 1 else (12 if n == 16 else o["bud3"])
            dodma = n + 4 < 24 + nwoa
            M(0)
            if n == o["f2_it"]:
                lab = only(f"s_cmp_eq_u32 s{sW}, 0"); flag_body(sID, 512, vE); a(f"{lab}:")
            if n == o["f1_it"]: f1()
            if n == o["h1_poll"]: h1poll()
            if n == o["f2poll_it"]: f2poll()
            if nx < 24:
                for s in range(2): a(rd_w(nx, s, 0)); a(rd_w(nx, s, 1))
            if n == o["h1_load"]: h1load()
            if n == o["h1_red"]: h1red(0)
            side.slot(B)
            if n == 18: wo_offsets(0, 2)
            if n == 20: wo_offsets(2, 4)
            M(1)
            if nx < 24:
                for s in range(2, 4): a(rd_w(nx, s, 0)); a(rd_w(nx, s, 1))
            if n == o["h1_red"]: h1red(1)
            if dodma: dma_w_m0(n+4, 0)
            side.slot(B)
            if dodma:
                if a.L[-1].strip().startswith("s_add_u32 m0"): a("s_nop 0")
                dma_w_ld(n+4, 0); dma_w_m0(n+4, 1)
            M(2)
            if dodma: dma_w_ld(n+4, 1)
            if n == o["h1_red"]: h1red(2)
            side.slot(B if n not in (15, o["f2poll_it"] - 1) else 1e9)
            M(3)
            if n == 15: side.pos["p1end"] = a.ni
        if n in (3, 7, 11, 15, 19): stamp_a(f"it{n}")
    assert not side.u, side.u
    stamp("T3")
    vQ, vPHI, vKV = 8, 64, 72
    vSA, vSB, vO = 192, 208, 224
    vP, vKA, vKB = 240, 248, 252
    vVA, vVB = 80, 88
    vWO = 128
    vT = 24
    acc = vACC0
    poll_check(vFP, vFO, sF2, 512, 15, 0, a.cnt_after("f2p"), rec=27)
    hl = list(range(7, -1, -1))
    def halo():
        if not hl: return
        s = hl.pop(0)
        lab = only(f"s_cmp_ge_u32 s{sRB}, {4 - s//2}")
        a(f"s_add_u32 m0, s{sW1K}, {s*8192}\ns_sub_u32 s{sHAL}, s{sHAL}, 8192\nbuffer_load_dwordx4 v{vL16}, {WS}, s{sHAL} offen sc1 lds\n{lab}:")
    halo(); halo()
    a(f"v_mov_b32 v{vE+16}, {f32(0.25*LOG2E)}\ns_nop 1")
    for i in range(4): a(f"v_cvt_pk_bf16_f32 v{acc+i}, v{acc+2*i}, v{acc+2*i+1}")
    for r_ in range(8, 16, 2): a(f"v_pk_mul_f32 {vr(acc+r_,2)}, {vr(acc+r_,2)}, {vr(vE+16,2)} op_sel_hi:[1,0]")
    a(f"{MF} {vr(vE,16)}, {vr(vWPHI,4)}, {vr(acc,4)}, 0")
    halo()
    for i in range(4): a(f"v_cvt_pk_bf16_f32 v{vQ+i}, v{acc+8+2*i}, v{acc+8+2*i+1}")
    for i in range(4): a(f"v_mov_b32 v{vT+i}, -1")
    a("s_nop 1")
    for k_, ln in enumerate(softmax16(vE, vPHI, vE+16)):
        a(ln)
        if k_ % 8 == 7: halo()
    assert not hl
    for n in range(24 + nwoa, 28): dma_w(n, 0); dma_w(n, 1)
    stamp("phiq")
    a("s_waitcnt vmcnt(0)\ns_barrier")
    stamp("B1")
    def rdK(dst, j): a(f"ds_read_b128 {vr(dst,4)}, v{vAK8}" if j == 8 else f"ds_read_b128 {vr(dst,4)}, v{vAK} offset:{j*8192}")
    def rdV(dst, ad_):
        for mf in range(2):
            for t in range(2): a(f"ds_read_b64_tr_b16 {vr(dst+4*mf+2*t,2)}, v{ad_} offset:{256*mf+128*t}")
    def qk(S, K, C="0"): a(f"{MF} {vr(S,16)}, {vr(K,4)}, {vr(vQ,4)}, {C}")
    def pv(V, P, first=False): a(f"{MF} {vr(vO,16)}, {vr(V,4)}, {vr(P,4)}, {'0' if first else vr(vO,16)}")
    def rdwo_list(dst):
        return [f"ds_read_b64_tr_b16 {vr(dst + hd*8 + ct*4 + t*2, 2)}, v{(vWA0, vWA1)[ct]} offset:{(16*hd+4*t)*128}"
                for hd in range(8) for ct in range(2) for t in range(2)]
    def kv_loads():
        for fq in range(4):
            a.vm(f"buffer_load_dwordx2 {vr(vKV+2*fq,2)}, v{vKVO}, {WS}, s{sKVS + (fq & 1)} offen offset:768 sc1", "kvl")
            if fq == 1: a(f"s_add_u32 s{sKVS}, s{sKVS}, 16384\ns_add_u32 s{sKVS+1}, s{sKVS+1}, 16384")
        a(f"s_sub_u32 s{sKVS}, s{sKVS}, 16384\ns_sub_u32 s{sKVS+1}, s{sKVS+1}, 16384")
    rdK(vKA, 8); rdK(vKB, 0)
    rdV(vVA, vAV); rdV(vVB, vAV0)
    a.vm(f"buffer_store_dwordx4 {vr(vT,4)}, v{vL16}, {WS}, s{sOA} offen sc1", "poisonA")
    a("s_waitcnt lgkmcnt(8)")
    qk(vSA, vKA); qk(vSB, vKB)
    rdK(vKA, 7)
    a.vm(f"buffer_store_dwordx4 {vr(vT,4)}, v{vL16}, {WS}, s{sOB} offen sc1", "poison")
    wl = rdwo_list(vWO)
    a("s_waitcnt lgkmcnt(5)")
    for _ in range(9): a(wl.pop(0))
    for r_ in range(16): a(f"v_cndmask_b32 v{vSA+r_}, v{vSB+r_}, v{vSA+r_}, {sr(sMASK+2*r_,2)}")
    a("s_waitcnt lgkmcnt(0)")
    qk(vSB, vKA)
    for r_ in range(16):
        a(f"v_exp_f32 v{vSA+r_}, v{vSA+r_}")
        if r_ < 12: a(wl.pop(0))
    a("s_waitcnt lgkmcnt(2)")
    rdK(vKA, 6)
    for i in range(8):
        a(f"v_cvt_pk_bf16_f32 v{vSA+i}, v{vSA+2*i}, v{vSA+2*i+1}"); a(wl.pop(0))
    for i in range(8):
        a(f"v_and_b32 v{vP+i}, v{vSA+i}, v{vM+i}")
        if wl: a(wl.pop(0))
    assert not wl
    for i in range(8): a(f"v_xor_b32 v{vSA+i}, v{vSA+i}, v{vP+i}")
    pv(vVA, vP, True); pv(vVA+4, vP+4)
    lab = only(f"s_cmp_ge_u32 s{sQB}, 8")
    pv(vVB, vSA); pv(vVB+4, vSA+4)
    a(f"{lab}:")
    a(f"v_sub_u32 v{vAV}, v{vAV}, v{vAVI}\ns_waitcnt lgkmcnt(10)")
    rdV(vVA, vAV)
    cur, nxt, vc, vn = vSB, vSA, vVA, vVB
    dm = [(k_, b) for k_ in range(4) for b in range(2)]
    def dma_wob():
        if dm:
            k_, b = dm.pop(0)
            a(f"s_add_u32 m0, s{sW1K}, {RING + k_*16384 + b*8192}\ns_nop 0")
            a.vm(f"buffer_load_dwordx4 v{vXD}, {sr(sWOB,4)}, s{sCH+2*k_+b} offen lds", "wob")
    assert o["b3_blk"] >= o["kv_blk"]
    for j in range(7, 0, -1):
        a.c(f"block {j}")
        if j == o["b3_blk"]: a(f"s_waitcnt vmcnt({a.cnt_after('poison')}) lgkmcnt(0)\ns_barrier")
        else: a("s_waitcnt lgkmcnt(0)")
        if j == 7 and j != o["b3_blk"]: a("s_barrier")
        if j in (7, 4): stamp(f"blk{j}")
        if j > 1:
            qk(nxt, vKA)
            if j > 2: rdK(vKA, j-2)
            a(f"v_sub_u32 v{vAV}, v{vAV}, v{vAVI}")
            rdV(vn, vAV)
        if j == o["b3_blk"]:
            lab = only(f"s_cmp_eq_u32 s{sW}, 0"); flag_body(sID, 640, vT); a(f"{lab}:")
        if j == o["kv_blk"] + 2: kv_loads()
        if j == o["f4_blk"]:
            a("s_mov_b64 exec, 3"); a.vm(f"buffer_load_dword v{vF4P}, v{vF4O}, {WS}, s{sF4} offen offset:640 sc1", "f4p"); a("s_mov_b64 exec, -1")
        if j == o["kv_blk"]:
            lp, ld = a.label("Lkv"), a.label("Lkvd")
            k0 = vE + 24
            a(f"s_mov_b32 s{sSPIN}, 0\ns_waitcnt vmcnt({a.cnt_after('kvl')})")
            a(f"{lp}:\nv_max3_u32 v{k0}, v{vKV}, v{vKV+2}, v{vKV+4}\nv_max_u32 v{k0}, v{k0}, v{vKV+6}\nv_cmp_eq_u32 vcc, -1, v{k0}\ns_cbranch_vccz {ld}")
            q0 = list(a.q); kv_loads(); a.q = q0
            a(f"s_add_u32 s{sSPIN}, s{sSPIN}, 1\ns_cmp_gt_u32 s{sSPIN}, {SPIN_MAX}\ns_waitcnt vmcnt(0)\ns_cbranch_scc0 {lp}\n{ld}:")
            spinrec(28)
            a(f"{MF} {vr(vE,16)}, {vr(vKV,4)}, {vr(vPHI,4)}, 0\n{MF} {vr(vE,16)}, {vr(vKV+4,4)}, {vr(vPHI+4,4)}, {vr(vE,16)}")
        valid = f"s_cmp_ge_u32 s{sQB}, {8-j}"
        for r_ in range(8): a(f"v_exp_f32 v{cur+r_}, v{cur+r_}")
        if j <= 6: dma_wob()
        for i in range(4): a(f"v_cvt_pk_bf16_f32 v{vP+i}, v{cur+2*i}, v{cur+2*i+1}")
        if j == o["kv_blk"]:
            k0 = vE + 24
            a(f"v_add_f32 v{k0}, {f32(1e-6)}, v{vE+8}\nv_rcp_f32 v{k0}, v{k0}")
        for r_ in range(8, 16):
            a(f"v_exp_f32 v{cur+r_}, v{cur+r_}")
            if r_ == 10:
                lab = only(valid); pv(vc, vP); a(f"{lab}:")
            if r_ == 9 and j == o["kv_blk"]:
                a(f"v_mul_f32 v{k0}, v{k0}, v{vG}")
                for r2 in range(0, 8, 2): a(f"v_pk_mul_f32 {vr(vE+r2,2)}, {vr(vE+r2,2)}, {vr(k0,2)} op_sel_hi:[1,0]")
                for i in range(4): a(f"v_cvt_pk_bf16_f32 v{vE+16+i}, v{vE+2*i}, v{vE+2*i+1}")
                a.vm(f"buffer_store_dwordx4 {vr(vE+16,4)}, v{vL16}, {WS}, s{sOA} offen sc1", "oa")
        if j <= 6: dma_wob()
        for i in range(4, 8): a(f"v_cvt_pk_bf16_f32 v{vP+i}, v{cur+2*i}, v{cur+2*i+1}")
        lab = only(valid); pv(vc+4, vP+4); a(f"{lab}:")
        cur, nxt = nxt, cur; vc, vn = vn, vc
    assert not dm
    vOF = 64
    sL = sCH
    a(f"v_sub_f32 v{vT+1}, 1.0, v{vG}")
    a(f"s_lshl_b32 s{sL}, s{sRB3}, 17\ns_lshl_b32 s{sT1}, s{sRW}, 15\ns_add_u32 s{sL}, s{sL}, s{sT1}\ns_lshl_b32 s{sT1}, s{sH}, 13\ns_add_u32 s{sL}, s{sL}, s{sT1}\ns_add_u32 s{sL}, s{sL}, {WS_O}")
    a(f"s_add_u32 s{sL+1}, s{sL}, 4096\ns_add_u32 s{sL+2}, s{sL}, 65536\ns_add_u32 s{sL+3}, s{sL}, {65536+4096}\ns_nop 1")
    a(f"v_cmp_lt_f32 vcc, {f32(2.0**-64)}, v{vO+8}\nv_rcp_f32 v{vT}, v{vO+8}\ns_mov_b64 {sr(sP,2)}, vcc\nv_cmp_gt_f32 vcc, {f32(2.0**64)}, v{vO+8}\ns_nop 1")
    a(f"s_and_b64 {sr(sP,2)}, {sr(sP,2)}, vcc\ns_cmp_eq_u64 {sr(sP,2)}, -1")
    a("s_branch L_maxpath" if o["force_fallback"] else "s_cbranch_scc0 L_maxpath")
    a("L_attn_ok:")
    a(f"v_mul_f32 v{vT}, v{vT}, v{vT+1}")
    for r_ in range(0, 8, 2): a(f"v_pk_mul_f32 {vr(vO+r_,2)}, {vr(vO+r_,2)}, {vr(vT,2)} op_sel_hi:[1,0]")
    for i in range(4): a(f"v_cvt_pk_bf16_f32 v{vQ+i}, v{vO+2*i}, v{vO+2*i+1}")
    a.vm(f"buffer_store_dwordx4 {vr(vQ,4)}, v{vL16}, {WS}, s{sOB} offen sc1", "ob")
    stamp("attn")
    poll_check(vF4P, vF4O, sF4, 640, 3, 0, a.cnt_after("f4p"), rec=25)
    def oload(br, k0=0):
        for hd in range(k0, 8):
            a(f"buffer_load_dwordx4 {vr(vOF+br*32+hd*4,4)}, v{vL16}, {WS}, s{sL + 2*br + hd//4} offen offset:{(hd%4)*1024} sc1")
    oload(0)
    a("s_barrier")
    wl = rdwo_list(vWO + 64)
    for k_, ln in enumerate(wl):
        a(ln)
        if k_ % 8 == 7: a("s_waitcnt lgkmcnt(4)")
    row, bw, br0, br1, vout = 24, 25, 26, 27, 28
    a(f"v_and_b32 v{row}, 31, v{vL}\ns_lshl_b32 s{sT0}, s{sRW}, 5\nv_add_u32 v{row}, s{sT0}, v{row}\nv_lshrrev_b32 v{bw}, 5, v{vL}")
    a(f"v_and_b32 v{br0}, 15, v{row}\nv_xor_b32 v{bw}, v{bw}, v{br0}\nv_lshlrev_b32 v{bw}, 4, v{bw}\nv_lshl_add_u32 v{bw}, v{row}, 8, v{bw}")
    a(f"s_lshl_b32 s{sT0}, s{sH}, 14\nv_add_u32 v{bw}, s{sT0}, v{bw}")
    for k_ in range(8): a(f"v_xor_b32 v{vM+k_}, {2*k_*16}, v{bw}")
    a(f"v_lshrrev_b32 v{row}, 3, v{vL}\ns_lshl_b32 s{sT0}, s{sW}, 3\nv_add_u32 v{row}, s{sT0}, v{row}")
    a(f"v_and_b32 v{br0}, 7, v{vL}\nv_lshlrev_b32 v{br0}, 1, v{br0}\nv_and_b32 v{br1}, 15, v{row}\nv_xor_b32 v{br0}, v{br0}, v{br1}")
    a(f"v_lshlrev_b32 v{br0}, 4, v{br0}\nv_lshl_add_u32 v{br0}, v{row}, 8, v{br0}\nv_xor_b32 v{br1}, 16, v{br0}")
    a(f"v_and_b32 v{vout}, 7, v{vL}\nv_lshlrev_b32 v{vout}, 4, v{vout}\nv_lshl_add_u32 v{vout}, v{row}, 10, v{vout}")
    a(f"s_lshl_b32 s{sT0}, s{sRB3}, 16\ns_lshl_b32 s{sT1}, s{sCB}, 7\ns_add_u32 s{sT0}, s{sT0}, s{sT1}\ns_mov_b32 s{sSPIN}, 0")
    a("s_waitcnt vmcnt(7) lgkmcnt(0)")
    stamp("oA0")
    oload(1)
    for k_ in range(16):
        a(f"s_waitcnt vmcnt({15-k_})")
        a(f"L_ob{k_}:\nv_cmp_eq_u32 vcc, -1, v{vOF+k_*4}\ns_cbranch_vccnz L_obre{k_}\nL_obok{k_}:")
        for ct in range(2):
            ac = vACC0 + 16*ct
            a(f"{MF} {vr(ac,16)}, {vr(vWO+k_*8+ct*4,4)}, {vr(vOF+k_*4,4)}, {'0' if k_ == 0 else vr(ac,16)}")
        if k_ == 7: stamp("Ahalf")
    spinrec(24)
    stamp("Bhalf")
    a("s_nop 10")
    for k_ in range(8): a(f"ds_write_b128 v{vM+k_}, {vr(vACC0+4*k_,4)}")
    a("s_waitcnt lgkmcnt(0)\ns_barrier")
    stamp("redw")
    R = 64
    for kq in range(4):
        a(f"ds_read_b128 {vr(R+kq*8,4)}, v{br0} offset:{kq*16384}\nds_read_b128 {vr(R+kq*8+4,4)}, v{br1} offset:{kq*16384}")
    a("s_waitcnt lgkmcnt(4)")
    for j in range(0, 8, 2): a(f"v_pk_add_f32 {vr(R+j,2)}, {vr(R+j,2)}, {vr(R+8+j,2)}")
    a("s_waitcnt lgkmcnt(2)")
    for j in range(0, 8, 2): a(f"v_pk_add_f32 {vr(R+j,2)}, {vr(R+j,2)}, {vr(R+16+j,2)}")
    a("s_waitcnt lgkmcnt(0)")
    for j in range(0, 8, 2): a(f"v_pk_add_f32 {vr(R+j,2)}, {vr(R+j,2)}, {vr(R+24+j,2)}")
    for i in range(4): a(f"v_cvt_pk_bf16_f32 v{R+32+i}, v{R+2*i}, v{R+2*i+1}")
    a(f"buffer_store_dwordx4 {vr(R+32,4)}, v{vout}, {sr(sOUT,4)}, s{sT0} offen")
    a(f"s_or_b32 s{sT1}, s2, s{sW}")
    lab = only(f"s_cmp_eq_u32 s{sT1}, 0")
    a(f"v_mov_b32 v{row}, s{sNON}\nv_lshlrev_b32 v{bw}, 2, v{vL}")
    setexec(0xffff, 0)
    a(f"buffer_store_dword v{row}, v{bw}, {WS}, 0 offen sc1\ns_mov_b64 exec, -1")
    a(f"{lab}:")
    if o["stamps"]:
        stamp("issued")
        a("s_waitcnt vmcnt(0)")
        stamp("end")
        a(f"s_memrealtime s[{sTS}:{sTS+1}]\ns_waitcnt lgkmcnt(0)\nv_writelane_b32 v7, s100, 29\nv_writelane_b32 v7, s98, 30\nv_writelane_b32 v7, s{sTS}, 31")
        a(f"s_lshl_b32 s{sT0}, s2, 3\ns_add_u32 s{sT0}, s{sT0}, s{sW}\ns_lshl_b32 s{sT0}, s{sT0}, 7\ns_add_u32 s{sT0}, s{sT0}, {WS_DBG}")
        a(f"v_lshlrev_b32 v{row}, 2, v{vL}\ns_mov_b32 exec_hi, 0\nbuffer_store_dword v7, v{row}, {WS}, s{sT0} offen")
    a("L_exit:\ns_endpgm")
    for k_ in range(16):
        a(f"L_obre{k_}:\ns_add_u32 s{sSPIN}, s{sSPIN}, 1\ns_cmp_gt_u32 s{sSPIN}, {SPIN_MAX}\ns_cbranch_scc1 L_obok{k_}\ns_waitcnt vmcnt(0)")
        if k_ < 8:
            a(f"buffer_load_dwordx4 {vr(vOF+k_*4,4)}, v{vL16}, {WS}, s{sL + k_//4} offen offset:{(k_%4)*1024} sc1\ns_waitcnt vmcnt(0)")
        else:
            oload(1, k_ - 8); a(f"s_waitcnt vmcnt({15-k_})")
        a(f"s_branch L_ob{k_}")
    a("L_maxpath:")
    m, ninf, ak = vT, vT+2, vT+3
    vNEG = vE
    a(f"v_mov_b32 v{ninf}, 0xff800000")
    def merged(C):
        rdK(vKA, 8); rdK(vKB, 0)
        a("s_waitcnt lgkmcnt(0)")
        qk(vSA, vKA, C); qk(vSB, vKB, C)
        a("s_nop 15")
        lab = only(f"s_cmp_lt_u32 s{sQB}, 8")
        for r_ in range(16): a(f"v_mov_b32 v{vSB+r_}, v{ninf}")
        a(f"{lab}:")
        for r_ in range(16): a(f"v_cndmask_b32 v{vSA+r_}, v{vSB+r_}, v{vSA+r_}, {sr(sMASK+2*r_,2)}")
    merged("0")
    a(f"v_mov_b32 v{m}, v{ninf}")
    for r_ in range(0, 16, 2): a(f"v_max3_f32 v{m}, v{m}, v{vSA+r_}, v{vSA+r_+1}")
    a(f"s_min_u32 s{sT0}, s{sQB}, 7\nv_mov_b32 v{ak}, v{vAK8}")
    a(f"L_maxloop:\ns_cmp_eq_u32 s{sT0}, 0\ns_cbranch_scc1 L_maxdone")
    a(f"v_subrev_u32 v{ak}, 8192, v{ak}\nds_read_b128 {vr(vKA,4)}, v{ak}\ns_waitcnt lgkmcnt(0)")
    qk(vSA, vKA); a("s_nop 15")
    for r_ in range(0, 16, 2): a(f"v_max3_f32 v{m}, v{m}, v{vSA+r_}, v{vSA+r_+1}")
    a(f"s_sub_u32 s{sT0}, s{sT0}, 1\ns_branch L_maxloop")
    a(f"L_maxdone:\nv_mov_b32 v{ak}, v{m}\ns_nop 1\nv_permlane32_swap_b32 v{m}, v{ak}\ns_nop 1\nv_max_f32 v{m}, v{m}, v{ak}")
    for r_ in range(16): a(f"v_sub_f32 v{vNEG+r_}, 0, v{m}")
    a(f"v_lshl_add_u32 v{vAV}, v{vAVI}, 3, v{vAV0}")
    rdV(vVA, vAV); rdV(vVB, vAV0)
    merged(vr(vNEG, 16))
    for r_ in range(16): a(f"v_exp_f32 v{vSA+r_}, v{vSA+r_}")
    for i in range(8): a(f"v_cvt_pk_bf16_f32 v{vSA+i}, v{vSA+2*i}, v{vSA+2*i+1}")
    for i in range(8): a(f"v_and_b32 v{vP+i}, v{vSA+i}, v{vM+i}")
    for i in range(8): a(f"v_xor_b32 v{vSA+i}, v{vSA+i}, v{vP+i}")
    pv(vVA, vP, True); pv(vVA+4, vP+4)
    lab = only(f"s_cmp_ge_u32 s{sQB}, 8")
    pv(vVB, vSA); pv(vVB+4, vSA+4)
    a(f"{lab}:")
    a(f"s_min_u32 s{sT0}, s{sQB}, 7\nv_mov_b32 v{ak}, v{vAK8}")
    a(f"L_exloop:\ns_cmp_eq_u32 s{sT0}, 0\ns_cbranch_scc1 L_exdone")
    a(f"v_subrev_u32 v{ak}, 8192, v{ak}\nv_sub_u32 v{vAV}, v{vAV}, v{vAVI}\nds_read_b128 {vr(vKA,4)}, v{ak}")
    rdV(vVA, vAV)
    a("s_waitcnt lgkmcnt(0)")
    qk(vSB, vKA, vr(vNEG, 16)); a("s_nop 15")
    for r_ in range(16): a(f"v_exp_f32 v{vSB+r_}, v{vSB+r_}")
    for i in range(8): a(f"v_cvt_pk_bf16_f32 v{vP+i}, v{vSB+2*i}, v{vSB+2*i+1}")
    a("s_nop 1")
    pv(vVA, vP); pv(vVA+4, vP+4)
    a(f"s_sub_u32 s{sT0}, s{sT0}, 1\ns_branch L_exloop")
    a(f"L_exdone:\ns_nop 15\nv_rcp_f32 v{vT}, v{vO+8}\ns_branch L_attn_ok")
    a("L_codeend:")
    return a, o

HDR = open("gated_mix__linear_kernel_hedgehog__sliding_block__prompt.s.ref").read().split("; Override launch")[0]
def full(a, o):
    names = "; stamps: " + ",".join(o.get("_names", [])) + "\n" if o["stamps"] else ""
    return (HDR + names + f"; @launch grid=(256,1,1) block=(512,1,1) lds={LDS_BYTES}\n"
            '.amdgcn_target "amdgcn-amd-amdhsa--gfx950"\n.text\n'
            f".globl {NAME}\n.p2align 8\n.type {NAME},@function\n{NAME}:\n" + a.text() +
            '.section .rodata,"a"\n.p2align 6\n'
            f".amdhsa_kernel {NAME}\n  .amdhsa_next_free_vgpr 256\n  .amdhsa_next_free_sgpr 102\n"
            "  .amdhsa_accum_offset 256\n  .amdhsa_group_segment_fixed_size 0\n  .amdhsa_kernarg_size 88\n"
            "  .amdhsa_user_sgpr_count 2\n  .amdhsa_user_sgpr_kernarg_segment_ptr 1\n"
            "  .amdhsa_system_sgpr_workgroup_id_x 1\n.end_amdhsa_kernel\n")
if __name__ == "__main__":
    out = sys.argv[1]
    opts = {}
    for kv in sys.argv[2:]:
        if "=" in kv: k, v = kv.split("="); opts[k] = int(v)
        else: opts[kv] = True
    open(out, "w").write(full(*gen(opts)))
```

```python
import sys, struct
NAME = "gated_mix__linear_kernel_hedgehog__sliding_block__prompt_kernel"

class Asm:
    def __init__(self):
        self.L = []; self.nlab = 0; self.q = []; self.ni = 0
    def __call__(self, s):
        for line in s.split("\n"):
            line = line.strip()
            if not line: continue
            if line.endswith(":"): self.L.append(line)
            else:
                self.L.append("    " + line)
                if not line.startswith(";"):
                    self.ni += (1 + int(line.split()[1])) if line.startswith("s_nop") else 1
    def c(self, s): self.L.append("    ; " + s)
    def label(self, b="L"):
        self.nlab += 1; return f"{b}_{self.nlab}"
    def vm(self, s, tag=None): self(s); self.q.append(tag)
    def mark(self, tag): self.q.append(("mark", tag))
    def cnt_after(self, tag):
        idx = None
        for i, t in enumerate(self.q):
            if t == tag or t == ("mark", tag): idx = i
        assert idx is not None, tag
        return sum(1 for t in self.q[idx+1:] if not (isinstance(t, tuple) and t[0] == "mark"))
    def pad(self, n0, need):
        have = self.ni - n0
        if have < need: self(f"s_nop {need - have - 1}")
    def text(self): return "\n".join(self.L) + "\n"

def icost(line):
    m = line.split()[0]
    if m.startswith(("v_exp", "v_rcp", "v_permlane")): return 2
    if m in ("v_mul_f32", "v_add_f32", "v_fma_f32", "v_mov_b32", "v_and_b32", "v_xor_b32"): return 0.7
    return 1

class Side:
    def __init__(self, a): self.a = a; self.u = []; self.pos = {}; self.deferred = False
    def add(self, s):
        for line in s.split("\n"):
            line = line.strip()
            if line: self.u.append(("i", line))
    def block(self, fn, cost): self.u.append(("b", fn, cost))
    def sync(self): self.u.append(("sync",))
    def note(self, name): self.u.append(("note", name))
    def dist(self, name, n): self.u.append(("dist", name, n))
    def slot(self, budget):
        while self.u and budget > 0:
            u = self.u[0]
            if u[0] == "sync": return
            if u[0] == "dist":
                have = self.a.ni - self.pos[u[1]]
                if have < u[2]:
                    if budget < 1e8 and not self.deferred:
                        self.deferred = True; return
                    self.a(f"s_nop {u[2]-have-1}")
                self.deferred = False
            self.u.pop(0)
            if u[0] == "i": self.a(u[1]); budget -= icost(u[1])
            elif u[0] == "b": u[1](); budget -= u[2]
            elif u[0] == "note": self.pos[u[1]] = self.a.ni
    def barrier_passed(self):
        if self.u and self.u[0][0] == "sync": self.u.pop(0)

def vr(b, n=1): return f"v{b}" if n == 1 else f"v[{b}:{b+n-1}]"
def sr(b, n=1): return f"s{b}" if n == 1 else f"s[{b}:{b+n-1}]"
def f32(x): return "0x%08x" % struct.unpack("<I", struct.pack("<f", x))[0]
MF = "v_mfma_f32_32x32x16_bf16"
MF16 = "v_mfma_f32_16x16x32_bf16"

XB, OWN, RING, MISC = 0, 65536, 81920, 147456
WPHI, GATEW, GP, ONES, H1S = MISC, MISC + 2048, MISC + 3072, MISC + 4096, MISC + 8192
LDS_BYTES = 163840
SCR, SCRW = XB + 32768, 3328
def slot(n):
    R = lambda i: RING + i * 16384
    X = lambda i: XB + i * 16384
    if n < 8: return R(n % 4)
    return [X(0), X(1), R(0), R(1), R(2), R(3), X(0), X(1), R(0), R(1), R(2), R(3), X(2), X(3), X(0), X(1), R(0), R(1), R(2), R(3)][n - 8]
WS_F1, WS_F2, WS_F4, WS_KVF = 0x10000, 0x20000, 0x30000, 0x40000
WS_PART = 0x100000
PSTR, SSTR = 320, 320 * 32
WS_KVB, WS_O, WS_DBG, WS_SIZE = 0x500000, 0x900000, 0xD00000, 0x1000000
LOG2E = 1.4426950408889634
sX, sWA, sWB, sWS, sWOA, sWOB, sOUT = 4, 8, 12, 16, 20, 24, 28
sCH = 32
sW, sRW, sH, sHG, sRB, sROT, sNON, sW1K, sQB = 40, 41, 42, 43, 44, 45, 46, 47, 48
sT0, sT1, sT2 = 50, 51, 52
sSPIN, sRB3, sCB = 53, 54, 55
sOA, sOB = 56, 57
sP = 58
sPART, sKVB, sF1S, sF2S, sF4S, sKVFS = 60, 61, 62, 63, 49, 3
sF1P, sH1L, sF2P, sHAL, sKVS, sF4P, sOUTO = 83, 84, 85, 86, 87, 88, 89
sF2M = 90
sWOF = 64
sOL = 72
sXO = 76
sTS = 96
sU0, sU1, sU2, sV0, sV1 = 92, 93, 94, 95, 81
vG, vL, vL16, vXD, vWDX, vWDY, vWRD = 0, 1, 2, 3, 4, 5, 6
vXR, vWPHI, vM = 8, 12, 16
vAPW, vAVW, vAPR, vAVR, vAGP, vAK8, vPO, vVO = 24, 25, 26, 27, 28, 29, 30, 31
vAVW2, vPO2, vWOD, vHOW = 24, 25, 26, 27
vNON = vAGP
vACC0, vACC1, vWF, vE, vX = 32, 48, 64, 96, 128
vAK, vAV, vAVI, vAV0, vKVO, vWA0, vWA1, vL128 = range(vACC1, vACC1 + 8)
vFP, vF4P, vHP = vACC1 + 8, vACC1 + 9, vACC1 + 10
vWRD2 = 124
SPIN_MAX = 200000

def gen(opts=None):
    o = dict(stamps=False, force_fallback=False, bud0=10, bud1=13, f1_it=16, h1_poll=20, h1_load=23, h1_wr=140, f2_it=23, f2chk=70, obk=5, poi_it=8, poi_it2=10,
             map24=False, kvl_blk=9, kv_blk=7, oal_blk=2, woa0=18, woa1=19, woa2=20, woa3=21, xpair=0, wopf=-1, wpf2=-1, wpf3=-1, f2pos=30, sched=4,
             npro=999, c2pos=150)
    o.update(opts or {})
    a = Asm(); side = Side(a)
    nst = [0]; pend = []
    def stamp(name=""):
        if not o["stamps"]: return
        if o.get("allit") and name != "first": return
        i = nst[0]; nst[0] += 1; assert i < 24
        a(f"s_memtime s[{sTS}:{sTS+1}]\ns_waitcnt lgkmcnt(0)\nv_writelane_b32 v7, s{sTS}, {i}"); a.ni -= 3
        o.setdefault("_names", []).append(name)
    def stamp_a(name):
        if not o["stamps"]: return
        i = nst[0]; nst[0] += 1; assert i < 24
        a(f"s_memtime s[{sTS}:{sTS+1}]"); a.ni -= 1; pend.append(i); o.setdefault("_names", []).append(name)
    def stamp_b():
        if pend: a(f"v_writelane_b32 v7, s{sTS}, {pend.pop()}"); a.ni -= 1
    def spinrec(i):
        if o["stamps"]: a(f"v_writelane_b32 v7, s{sSPIN}, {i}"); a.ni -= 1
    def srd(d, src, nbytes):
        a(f"s_mov_b32 s{d}, s{src}\ns_and_b32 s{d+1}, s{src+1}, 0xffff\ns_mov_b32 s{d+2}, {nbytes}\ns_mov_b32 s{d+3}, 0x20000")
    def only(cond):
        lab = a.label("Lskip"); a(cond); a(f"s_cbranch_scc0 {lab}"); return lab
    def setexec(lo, hi):
        if hi == 0 and lo <= 64: a(f"s_mov_b64 exec, {lo}")
        else: a(f"s_mov_b32 exec_lo, 0x{lo:x}\ns_mov_b32 exec_hi, 0x{hi:x}")
    WS = sr(sWS, 4)
    t0, t1, t2, t3, t4, t5, t6, t7, t8, t9 = range(vACC1, vACC1 + 10)

    a("s_cmp_ge_u32 s2, 256\ns_cbranch_scc1 L_exit")
    a("s_load_dwordx4 s[64:67], s[0:1], 0\ns_load_dwordx4 s[68:71], s[0:1], 16\ns_load_dwordx4 s[76:79], s[0:1], 56")
    a("s_load_dwordx4 s[72:75], s[0:1], 40\ns_load_dwordx2 s[80:81], s[0:1], 80")
    if o["stamps"]: a("v_mov_b32 v7, 0\ns_memrealtime s[98:99]\ns_memtime s[100:101]")
    a(f"v_lshrrev_b32 v{t0}, 6, v0\nv_and_b32 v{vL}, 63, v0")
    a(f"s_lshr_b32 s{sT0}, s2, 3\nv_readfirstlane_b32 s{sW}, v{t0}")
    a(f"s_getpc_b64 s[{sP}:{sP+1}]\nL_pc:")
    a(f"s_sub_u32 s{sOUT}, s{sP}, L_pc-{NAME}\ns_subb_u32 s{sOUT+1}, s{sP+1}, 0\ns_and_b32 s{sOUT+1}, s{sOUT+1}, 0xffff\ns_mov_b32 s{sOUT+2}, L_codeend-{NAME}\ns_mov_b32 s{sOUT+3}, 0x20000")
    lab = only(f"s_cmp_eq_u32 s{sW}, 7")
    a(f"v_and_b32 v{t3}, 3, v{vL}\nv_lshlrev_b32 v{t3}, 7, v{t3}\ns_lshl_b32 s{sT1}, s{sT0}, 9")
    a(f"buffer_load_dword v{vE+31}, v{t3}, {sr(sOUT,4)}, s{sT1} offen")
    a(f"{lab}:")
    if not o["map24"]:
        a(f"s_and_b32 s{sHG}, s2, 7\ns_mov_b32 s{sRB}, s{sT0}\ns_add_u32 s{sROT}, s{sRB}, s{sHG}")
    else:
        a(f"s_and_b32 s{sRB}, s2, 1\ns_lshl_b32 s{sRB}, s{sRB}, 4\ns_and_b32 s{sT1}, s{sT0}, 15\ns_add_u32 s{sRB}, s{sRB}, s{sT1}")
        a(f"s_and_b32 s{sHG}, s2, 6\ns_lshr_b32 s{sT1}, s{sT0}, 4\ns_add_u32 s{sHG}, s{sHG}, s{sT1}")
        a(f"s_lshl_b32 s{sROT}, s{sHG}, 2\ns_lshr_b32 s{sT1}, s{sHG}, 1\ns_add_u32 s{sROT}, s{sROT}, s{sT1}\ns_add_u32 s{sROT}, s{sROT}, s{sRB}")
    a(f"s_and_b32 s{sROT}, s{sROT}, 7\ns_lshl_b32 s{sW1K}, s{sW}, 10\nv_lshlrev_b32 v{vL16}, 4, v{vL}")
    a(f"v_lshrrev_b32 v{t0}, 3, v0\nv_and_b32 v{t1}, 7, v{vL}\nv_bfe_u32 v{t2}, v{vL}, 4, 1")
    a(f"v_bfe_u32 v{t3}, v{t0}, 1, 3\nv_xor_b32 v{t3}, v{t3}, v{t1}\nv_lshlrev_b32 v{t3}, 4, v{t3}")
    a(f"s_lshl_b32 s{sT1}, s{sRB}, 6\nv_add_u32 v{t4}, s{sT1}, v{t0}\nv_lshl_add_u32 v{vXD}, v{t4}, 10, v{t3}")
    a(f"v_lshlrev_b32 v{t3}, 1, v{t2}\nv_xor_b32 v{t3}, v{t3}, v{t1}\nv_lshlrev_b32 v{t3}, 4, v{t3}")
    a(f"v_mul_u32_u24 v{t4}, 3072, v{t0}\ns_lshl_b32 s{sT1}, s{sHG}, 7\nv_add3_u32 v{vWDX}, v{t4}, v{t3}, s{sT1}")
    a(f"v_xor_b32 v{vWDY}, 64, v{vWDX}\ns_mul_i32 s{sCH}, s{sROT}, {64*3072}")
    a(f"s_lshl_b32 s{sT2}, s{sROT}, 7\nv_add_u32 v{t5}, s{sT2}, v{vL16}\nv_and_b32 v{t5}, 1023, v{t5}")
    a("s_waitcnt lgkmcnt(0)")
    srd(sX, 64, 2097152); srd(sWA, 66, 1572864)
    passes = [((sWA, 1024), (sWA, 2048)), ((sWB, 1024), (sWB, 2048)), ((sWA, 0), (sWB, 0))]
    def dma_x_m0(n): a(f"s_add_u32 m0, s{sW1K}, {XB + n*8192}")
    def dma_x_ld(n):
        if n == 0: so = sT2
        elif n < 3: a(f"s_add_u32 s{sT0}, s{sROT}, {n}\ns_and_b32 s{sT0}, s{sT0}, 7\ns_lshl_b32 s{sT0}, s{sT0}, 7"); so = sT0
        else: so = sXO + n - 3
        a.vm(f"buffer_load_dwordx4 v{vXD}, {sr(sX,4)}, s{so} offen lds", ("x", n))
    def dma_m0(n, b):
        if b == "x": return dma_x_m0(n)
        off = passes[n // 8][b][1] if n < 24 else 0
        v = slot(n) + b*8192 - off
        a(f"s_add_u32 m0, s{sW1K}, {v if v >= 0 else v + off}")
    def dma_ld(n, b):
        if a.L[-1].strip().startswith("s_add_u32 m0"): a("s_nop 0")
        if b == "x": return dma_x_ld(n)
        if n < 24:
            p, i = divmod(n, 8); d, off = passes[p][b]
            if slot(n) + b*8192 - off >= 0:
                a.vm(f"buffer_load_dwordx4 v{vWDX if b == 0 else vWDY}, {sr(d,4)}, s{sCH+i} offen offset:{off} lds", ("w", n, b))
            else:
                a(f"s_add_u32 s{sT2}, s{sCH+i}, {off}")
                a.vm(f"buffer_load_dwordx4 v{vWDX if b == 0 else vWDY}, {sr(d,4)}, s{sT2} offen lds", ("w", n, b))
        else:
            a.vm(f"buffer_load_dwordx4 v{vWOD}, {sr(sWOA,4)}, s{sWOF+2*(n-24)+b} offen lds", ("w", n, b))
    def dma(n, b): dma_m0(n, b); dma_ld(n, b)
    dma(0, "x"); dma(0, 0); dma(0, 1)
    a("s_load_dword s82, s[80:81], 0")
    srd(sWOA, 68, 16384); srd(sWOB, 76, 1024)
    lab = only(f"s_cmp_lt_u32 s{sW}, 2")
    a(f"s_lshl_b32 s{sT0}, s{sHG}, 11\ns_add_u32 m0, s{sW1K}, {WPHI}\ns_add_u32 s{sT0}, s{sT0}, s{sW1K}")
    a(f"buffer_load_dwordx4 v{vL16}, {sr(sWOA,4)}, s{sT0} offen lds")
    a(f"{lab}:")
    lab = only(f"s_cmp_eq_u32 s{sW}, 2")
    a(f"s_mov_b32 m0, {GATEW}\ns_nop 0\nbuffer_load_dwordx4 v{t5}, {sr(sWOB,4)}, 0 offen lds")
    a(f"{lab}:")
    a.mark("misc")
    dma(1, "x")
    srd(sWB, 72, 1572864); srd(sWOA, 70, 524288); srd(sWOB, 74, 524288); srd(sWS, 80, WS_SIZE); srd(sOUT, 78, 2097152)
    a(f"s_and_b32 s{sRW}, s{sW}, 1\ns_lshr_b32 s{sH}, s{sW}, 1")
    for i in range(1, 8):
        a(f"s_add_u32 s{sCH+i}, s{sROT}, {i}\ns_and_b32 s{sCH+i}, s{sCH+i}, 7")
        if i >= 3: a(f"s_lshl_b32 s{sXO+i-3}, s{sCH+i}, 7")
        a(f"s_mul_i32 s{sCH+i}, s{sCH+i}, {64*3072}")
    a(f"s_lshr_b32 s{sT0}, s2, 3\ns_and_b32 s{sRB3}, s2, 7\ns_lshl_b32 s{sRB3}, s{sRB3}, 2\ns_lshr_b32 s{sT1}, s{sT0}, 3\ns_add_u32 s{sRB3}, s{sRB3}, s{sT1}\ns_and_b32 s{sCB}, s{sT0}, 7")
    Q4 = 240; O8 = 244
    a(f"v_lshlrev_b32 v{t3}, 2, v{t2}\nv_xor_b32 v{t3}, v{t3}, v{t1}\nv_lshlrev_b32 v{t3}, 4, v{t3}\nv_lshl_add_u32 v{t3}, v{t0}, 10, v{t3}")
    a(f"s_lshl_b32 s{sT0}, s{sCB}, 7\nv_add_u32 v{Q4+2}, s{sT0}, v{t3}")
    l32, half, row, g, r, c = t6, t7, t0, t2, t8, t9
    a(f"v_and_b32 v{l32}, 31, v{vL}\nv_lshrrev_b32 v{half}, 5, v{vL}\nv_bfe_u32 v{r}, v{vL}, 2, 2\nv_and_b32 v{c}, 3, v{vL}")
    a(f"s_lshl_b32 s{sT0}, s{sRW}, 5\nv_add_u32 v{row}, s{sT0}, v{l32}")
    a(f"v_bfe_u32 v{t1}, v{row}, 1, 3\nv_xor_b32 v{t1}, v{t1}, v{half}\nv_lshlrev_b32 v{t1}, 4, v{t1}\nv_lshl_add_u32 v{vXR}, v{row}, 7, v{t1}")
    for s in range(1, 4): a(f"v_xor_b32 v{vXR+s}, {s*32}, v{vXR}")
    vGACC, vGXF, vGF, vGX, vGA, vWPA, vSG = vE, vE+16, vE+20, vE+24, vE+25, vE+26, vE+27
    a(f"s_lshl_b32 s{sT0}, s{sH}, 5\nv_xor_b32 v{vGX}, s{sT0}, v{vXR}\ns_add_u32 s{sT0}, s{sT0}, {GATEW}\nv_lshl_add_u32 v{vGA}, v{half}, 4, s{sT0}")
    a(f"v_bfe_u32 v{t1}, v{vL}, 3, 1\nv_lshl_add_u32 v{t1}, v{t1}, 2, v{c}\nv_lshl_add_u32 v{vGA}, v{t1}, 7, v{vGA}")
    a(f"v_lshrrev_b32 v{t3}, 1, v{r}\nv_lshl_add_u32 v{t3}, v{g}, 1, v{t3}\nv_xor_b32 v{t3}, s{sH}, v{t3}\nv_lshlrev_b32 v{t3}, 5, v{t3}")
    a(f"v_lshl_add_u32 v{t5}, v{half}, 3, v{r}\nv_lshlrev_b32 v{t5}, 7, v{t5}\nv_lshl_add_u32 v{t5}, v{c}, 3, v{t5}\nv_add_u32 v{t3}, v{t3}, v{t5}")
    a(f"v_lshl_add_u32 v{vWRD2}, v{g}, 13, v{t3}\nv_add_u32 v{vWRD}, {RING}, v{vWRD2}")
    a(f"v_lshrrev_b32 v{t4}, 1, v{c}\nv_lshl_add_u32 v{t1}, v{half}, 2, v{r}\nv_lshlrev_b32 v{vWPA}, 5, v{t1}")
    a(f"v_lshl_add_u32 v{vWPA}, v{g}, 4, v{vWPA}\nv_lshl_add_u32 v{vWPA}, v{t4}, 3, v{vWPA}")
    a(f"s_lshl_b32 s{sT0}, s{sH}, 9\ns_add_u32 s{sT0}, s{sT0}, {WPHI}\nv_add_u32 v{vWPA}, s{sT0}, v{vWPA}")
    a(f"v_bfe_u32 v{vSG}, v{vL}, 2, 1\nv_mul_u32_u24 v{vSG}, 0x8000, v{vSG}\nv_lshl_or_b32 v{vSG}, v{vSG}, 16, v{vSG}")
    dma(1, 0); dma(1, 1)
    VL, SL = [], []
    V = lambda t_: VL.extend(t_.split('\n'))
    S = lambda t_: SL.extend(t_.split('\n'))
    lab = only(f"s_cmp_eq_u32 s{sW}, 3")
    for i in range(4): a(f"v_mov_b32 v{vE+i}, 0x3f803f80")
    a(f"v_add_u32 v{vE+4}, {ONES}, v{vL16}\nds_write_b128 v{vE+4}, {vr(vE,4)}")
    a(f"{lab}:")
    V(f"v_and_b32 v{t3}, 2, v{r}\nv_xor_b32 v{t3}, v{t3}, v{g}\nv_lshl_add_u32 v{t3}, v{t3}, 5, v{t5}")
    V(f"s_sub_u32 s{sV0}, s{sH}, s{sRB3}\ns_and_b32 s{sV0}, s{sV0}, 3\ns_lshl_b32 s{sV0}, s{sV0}, 14\ns_add_u32 s{sV0}, s{sV0}, {RING}\nv_add_u32 v{O8+5}, s{sV0}, v{t3}\nv_xor_b32 v{O8+6}, 64, v{O8+5}")
    V(f"s_lshl_b32 s{sV0}, s{sH}, 8\ns_add_u32 s{sV0}, s{sV0}, {GP}\nv_lshl_add_u32 v{vAGP}, v{row}, 2, s{sV0}")
    V(f"s_mul_i32 s{sV0}, s{sW}, {SCRW}\ns_add_u32 s{sV0}, s{sV0}, {SCR}\nv_add_u32 v{vAPW}, s{sV0}, v{vL16}\nv_lshl_add_u32 v{vAVW}, v{half}, 6, v{vAPW}")
    V(f"v_lshrrev_b32 v{t1}, 4, v{vL}\nv_lshl_add_u32 v{t5}, v{t1}, 3, v{r}\nv_and_b32 v{c}, 1, v{c}\nv_lshlrev_b32 v{c}, 3, v{c}")
    V(f"v_lshl_add_u32 v{t3}, v{t5}, 4, v{c}\ns_mul_i32 s{sV0}, s{sH}, {2*SCRW}\ns_add_u32 s{sV0}, s{sV0}, {SCR}\nv_add_u32 v{t3}, s{sV0}, v{t3}")
    V(f"v_mul_u32_u24 v{t5}, 576, v{t4}\nv_add_u32 v{vAVR}, v{t5}, v{t3}\nv_mul_u32_u24 v{t5}, 1088, v{t4}\ns_lshl_b32 s{sV0}, s{sRW}, 9\nv_add3_u32 v{vAPR}, v{t5}, v{t3}, s{sV0}")
    V(f"v_mul_u32_u24 v{t1}, {SSTR}, v{t1}\nv_and_b32 v{t3}, 15, v{vL}\nv_lshl_add_u32 v{vPO}, v{t3}, 4, v{t1}")
    V(f"v_lshlrev_b32 v{t1}, 6, v{half}\nv_xor_b32 v{vVO}, v{t1}, v{vL16}")
    V(f"s_lshl_b32 s{sV0}, s{sRW}, 13\ns_lshl_b32 s{sV1}, s{sH}, 11\ns_add_u32 s{sV0}, s{sV0}, s{sV1}\nv_add_u32 v{O8}, s{sV0}, v{vL16}\nv_add_u32 v{vAK8}, {OWN}, v{O8}\nv_xor_b32 v{Q4}, v{t1}, v{vAK8}")
    V(f"s_lshl_b32 s{sHAL}, s{sHG}, 19\ns_lshl_b32 s{sV1}, s{sRB}, 14\ns_add_u32 s{sHAL}, s{sHAL}, s{sV1}\ns_add_u32 s{sHAL}, s{sHAL}, {WS_KVB}\ns_add_u32 s{sKVB}, s{sHAL}, s{sV0}\ns_add_u32 s{sHAL}, s{sHAL}, s{sW1K}")
    V(f"v_xor_b32 v{t1}, v{half}, v{t4}\nv_lshl_add_u32 v{t1}, v{t1}, 2, v{r}\nv_lshl_add_u32 v{t1}, v{t1}, 4, v{c}\nv_lshl_add_u32 v{t1}, v{t4}, 9, v{t1}")
    V(f"s_add_u32 s{sV0}, s{sV0}, 1024\nv_add_u32 v{t1}, s{sV0}, v{t1}\nv_cmp_eq_u32 {sr(sP,2)}, 1, v{g}\nv_mov_b32 v{t3}, {ONES+128}\nv_mov_b32 v{t5}, 8192")
    V(f"v_lshlrev_b32 v{O8+7}, 7, v{vL}\nv_cndmask_b32 v{O8+3}, v{t1}, v{t3}, {sr(sP,2)}\nv_cndmask_b32 v{O8+2}, v{t5}, 0, {sr(sP,2)}\nv_lshl_add_u32 v{O8+1}, v{O8+2}, 3, v{O8+3}")
    V(f"v_min_u32 v{t1}, 16, v{l32}\nv_lshlrev_b32 v{t3}, 3, v{t1}\nv_lshl_add_u32 v{O8+4}, v{half}, 10, v{t3}\nv_mul_u32_u24 v{t3}, {PSTR}, v{half}\nv_lshl_add_u32 v{Q4+1}, v{t1}, 4, v{t3}")
    V(f"s_add_u32 s{sV0}, s{sW1K}, {H1S}\nv_add_u32 v{Q4+3}, s{sV0}, v{vL16}\nv_mov_b32 v{vE+29}, v{Q4+3}")
    V(f"ds_write_b128 v{Q4+3}, {vr(Q4,4)}\nds_write_b128 v{vAK8}, {vr(O8,4)}\nds_write_b128 v{vAK8}, {vr(O8+4,4)} offset:1024\ns_waitcnt lgkmcnt(5)")
    vPK4 = vE + 29
    V(f"v_lshlrev_b32 v{t1}, 2, v{half}\nv_sub_u32 v{t1}, v{l32}, v{t1}\nv_mov_b32 v{t3}, 0xffff")
    for i in range(8):
        k0 = 8*(i//2) + 2*(i % 2)
        V(f"v_cmp_le_i32 {sr(sP,2)}, {k0}, v{t1}\nv_cmp_lt_i32 vcc, {k0}, v{t1}\ns_nop 0\nv_cndmask_b32 v{vM+i}, 0, v{t3}, {sr(sP,2)}\nv_cndmask_b32_e64 v{vM+i}, v{vM+i}, -1, vcc")
    S(f"s_lshl_b32 s{sQB}, s{sRB}, 1\ns_add_u32 s{sQB}, s{sQB}, s{sRW}")
    S(f"s_lshl_b32 s{sU2}, s{sHG}, 5\ns_lshl_b32 s{sU1}, s{sW}, 2\ns_add_u32 s{sU1}, s{sU1}, s{sU2}")
    S(f"s_lshl_b32 s{sF1P}, s{sU1}, 7\ns_add_u32 s{sF1P}, s{sF1P}, {WS_F1}")
    S(f"s_mul_i32 s{sPART}, s{sU1}, {SSTR}\ns_mul_i32 s{sU1}, s{sRB}, {PSTR}\ns_add_u32 s{sPART}, s{sPART}, s{sU1}\ns_add_u32 s{sPART}, s{sPART}, {WS_PART}")
    S(f"s_add_u32 s{sU1}, s{sU2}, s{sRB}")
    S(f"s_mul_i32 s{sH1L}, s{sU1}, {SSTR}\ns_mul_i32 s{sU0}, s{sW}, {4*PSTR}\ns_add_u32 s{sH1L}, s{sH1L}, s{sU0}\ns_add_u32 s{sH1L}, s{sH1L}, {WS_PART}")
    S(f"s_lshl_b32 s{sKVFS}, s{sU1}, 8\ns_add_u32 s{sKVFS}, s{sKVFS}, {WS_KVF}\ns_lshl_b32 s{sU1}, s{sU1}, 7\ns_add_u32 s{sF1S}, s{sU1}, {WS_F1}\ns_add_u32 s{sF2S}, s{sU1}, {WS_F2}\ns_sub_u32 s{sF2P}, s{sF2S}, 512")
    S(f"s_min_u32 s{sU0}, s{sRB}, 4\ns_sub_u32 s{sU0}, 4, s{sU0}\ns_lshl_b32 s{sF2M}, 31, s{sU0}\ns_and_b32 s{sF2M}, s{sF2M}, 31\ns_mov_b32 s{sF2M+1}, 0")
    S(f"s_lshl_b32 s{sU0}, s{sH}, 3\ns_add_u32 s{sU0}, s{sU0}, s{sU2}\ns_lshl_b32 s{sKVS}, s{sU0}, 8\ns_add_u32 s{sKVS}, s{sKVS}, {WS_KVF}")
    S(f"s_lshl_b32 s{sF4S}, s{sRB}, 3\ns_add_u32 s{sF4S}, s{sF4S}, s{sHG}\ns_lshl_b32 s{sF4S}, s{sF4S}, 7\ns_add_u32 s{sF4S}, s{sF4S}, {WS_F4}")
    S(f"s_lshl_b32 s{sF4P}, s{sRB3}, 10\ns_lshl_b32 s{sU0}, s{sH}, 8\ns_add_u32 s{sF4P}, s{sF4P}, s{sU0}\ns_add_u32 s{sF4P}, s{sF4P}, {WS_F4}")
    S(f"s_lshl_b32 s{sU2}, s{sRW}, 15\ns_add_u32 s{sU2}, s{sU2}, {WS_O}")
    S(f"s_lshl_b32 s{sOA}, s{sRB}, 17\ns_add_u32 s{sOA}, s{sOA}, s{sU2}\ns_lshl_b32 s{sU1}, s{sHG}, 2\ns_add_u32 s{sU1}, s{sU1}, s{sH}\ns_lshl_b32 s{sU1}, s{sU1}, 10\ns_add_u32 s{sOA}, s{sOA}, s{sU1}\ns_add_u32 s{sOB}, s{sOA}, 65536")
    S(f"s_lshl_b32 s{sOL}, s{sRB3}, 17\ns_add_u32 s{sOL}, s{sOL}, s{sU2}\ns_lshl_b32 s{sU1}, s{sH}, 13\ns_add_u32 s{sOL}, s{sOL}, s{sU1}")
    S(f"s_add_u32 s{sOL+1}, s{sOL}, 4096\ns_add_u32 s{sOL+2}, s{sOL}, 65536\ns_add_u32 s{sOL+3}, s{sOL}, {65536+4096}")
    S(f"s_lshl_b32 s{sOUTO}, s{sRB3}, 16\ns_lshl_b32 s{sU1}, s{sCB}, 7\ns_add_u32 s{sOUTO}, s{sOUTO}, s{sU1}")
    for i in range(4):
        S(f"s_add_u32 s{sWOF+2*i}, s{sRB3}, {i}\ns_and_b32 s{sWOF+2*i}, s{sWOF+2*i}, 3\ns_lshl_b32 s{sWOF+2*i}, s{sWOF+2*i}, 17\ns_add_u32 s{sWOF+2*i+1}, s{sWOF+2*i}, 65536")
    def prewrite():
        a(f"s_add_u32 s{sU0}, s{sKVFS}, 128\ns_cmp_eq_u32 s{sW}, 3\ns_cselect_b32 s{sU0}, s{sKVFS}, s{sU0}\ns_cmp_eq_u32 s{sW}, 2\ns_cselect_b32 s{sU0}, s{sF4S}, s{sU0}")
        a(f"s_cmp_eq_u32 s{sW}, 1\ns_cselect_b32 s{sU0}, s{sF2S}, s{sU0}\ns_cmp_eq_u32 s{sW}, 0\ns_cselect_b32 s{sU0}, s{sF1S}, s{sU0}")
        for i in range(4): a(f"v_mov_b32 v{252+i}, -1")
        setexec(0xff, 0)
        a.vm(f"buffer_store_dwordx4 {vr(252,4)}, v{vL16}, {WS}, s{sU0} offen sc1", "rec"); a("s_mov_b64 exec, -1")
    Z = []
    while VL or SL:
        if VL: Z.append(VL.pop(0))
        if SL and not (Z and Z[-1].startswith("s_") and VL): Z.append(SL.pop(0))
    npro = o["npro"]
    for k_, ln in enumerate(Z[:npro]):
        a(ln)
        if k_ == o["c2pos"]: dma(2, "x"); dma(2, 0); dma(2, 1)
    Z = Z[npro:]
    pre_done = not Z
    if pre_done: prewrite()

    def wprefetch(which):
        nrow = 32 if o["map24"] else 16; per = nrow // 8
        p3 = vE + 30
        a(f"s_and_b32 s{sT0}, s{sRB}, {512//nrow-1}\ns_lshl_b32 s{sT0}, s{sT0}, 3\ns_add_u32 s{sT0}, s{sT0}, s{sW}\ns_mul_i32 s{sT0}, s{sT0}, {per*3072}\ns_lshl_b32 s{sT1}, s{sHG}, 7\ns_add_u32 s{sT0}, s{sT0}, s{sT1}")
        a(f"v_mul_u32_u24 v{p3}, 3072, v{vL}\ns_mov_b64 exec, {(1 << per) - 1}")
        for wh in which:
            for d_, off in passes[wh - 1]: a.vm(f"buffer_load_dword v{vE+31}, v{p3}, {sr(d_,4)}, s{sT0} offen offset:{off}")
        a("s_mov_b64 exec, -1")
    def woprefetch():
        a(f"v_lshlrev_b32 v{vE+30}, 7, v{vL}\ns_lshl_b32 s{sT0}, s2, 11\ns_lshr_b32 s{sT1}, s{sW1K}, 2\ns_add_u32 s{sT0}, s{sT0}, s{sT1}\ns_mov_b64 exec, 3")
        a.vm(f"buffer_load_dword v{vE+31}, v{vE+30}, {sr(sWOA,4)}, s{sT0} offen"); a.vm(f"buffer_load_dword v{vE+31}, v{vE+30}, {sr(sWOB,4)}, s{sT0} offen")
        a("s_mov_b64 exec, -1")
    def rd_w(n, s, t):
        ad_, of_ = (vWRD, slot(n) - RING) if slot(n) >= RING else (vWRD2, slot(n))
        return f"ds_read_b64_tr_b16 {vr(vWF + (n%2)*16 + s*4 + t*2, 2)}, v{ad_} offset:{of_ + (16*s+4*t)*128}"
    def rd_x(n, s): return f"ds_read_b128 {vr(vX + n*16 + s*4, 4)}, v{vXR+s} offset:{XB + n*8192}"
    def rd_g(n): return f"ds_read_b128 {vr(vGXF,4)}, v{vGX} offset:{XB + n*8192}" + (f"\nds_read_b128 {vr(vGF,4)}, v{vGA}" if n == 0 else "")
    def flag(*soffs):
        n0 = a.ni
        lab = only(f"s_cmp_eq_u32 s{sW}, 1")
        a("s_mov_b64 exec, 1")
        for soff in soffs: a(f"buffer_store_dword v{vNON}, v{vL16}, {WS}, s{soff} offen sc1")
        a(f"s_mov_b64 exec, -1\n{lab}:")
        a.ni = n0 + 2
    def poll_issue(dst, soff, mask, tag):
        a(f"s_mov_b64 exec, {mask}"); a.vm(f"buffer_load_dword v{dst}, v{vL128}, {WS}, s{soff} offen sc1", tag); a("s_mov_b64 exec, -1")
    stubs = []
    def poll_check(dst, soff, mask, tag, rec=None):
        lp, ld = a.label("Lpoll"), a.label("Lpd")
        if o["stamps"]: a(f"s_mov_b32 s{sSPIN}, 0"); a.ni -= 1
        a(f"s_mov_b64 exec, {mask}\ns_waitcnt vmcnt({a.cnt_after(tag)})\nv_cmp_ne_u32 vcc, v{vNON}, v{dst}\ns_cbranch_vccnz {lp}\n{ld}:\ns_mov_b64 exec, -1")
        stubs.append(f"{lp}:\ns_mov_b32 s{sSPIN}, 0\n{lp}b:\nbuffer_load_dword v{dst}, v{vL128}, {WS}, s{soff} offen sc1\ns_add_u32 s{sSPIN}, s{sSPIN}, 1\n"
                     f"s_cmp_gt_u32 s{sSPIN}, {SPIN_MAX}\ns_waitcnt vmcnt(0)\ns_cbranch_scc1 {ld}\nv_cmp_ne_u32 vcc, v{vNON}, v{dst}\ns_cbranch_vccnz {lp}b\ns_branch {ld}")
        if rec is not None: spinrec(rec)
    def softmax16(S, P, t, pk=True):
        L = [f"v_max3_f32 v{t+1+k}, v{S+3*k}, v{S+3*k+1}, v{S+3*k+2}" for k in range(5)]
        L += [f"v_mov_b32 v{t}, {f32(LOG2E)}", f"v_max3_f32 v{t+1}, v{t+1}, v{t+2}, v{S+15}", f"v_max3_f32 v{t+3}, v{t+3}, v{t+4}, v{t+5}",
              f"v_max_f32 v{t+1}, v{t+1}, v{t+3}", f"v_mul_f32 v{t+1}, v{t}, v{t+1}"]
        if pk:
            L += [f"v_pk_fma_f32 {vr(S+r_,2)}, {vr(S+r_,2)}, {vr(t,2)}, {vr(t,2)} op_sel:[0,0,1] op_sel_hi:[1,0,1] neg_lo:[0,0,1] neg_hi:[0,0,1]" for r_ in range(0, 16, 2)]
            for r_ in range(16):
                L.append(f"v_exp_f32 v{S+r_}, v{S+r_}")
                if r_ == 4: L.append(f"v_pk_add_f32 {vr(t,2)}, {vr(S,2)}, {vr(S+2,2)}")
                if r_ > 4 and r_ % 2 == 0: L.append(f"v_pk_add_f32 {vr(t,2)}, {vr(t,2)}, {vr(S+r_-2,2)}")
            L += ["s_nop 0", f"v_pk_add_f32 {vr(t,2)}, {vr(t,2)}, {vr(S+14,2)}", f"v_add_f32 v{t}, v{t}, v{t+1}", f"v_rcp_f32 v{t}, v{t}", "s_nop 0"]
            L += [f"v_pk_mul_f32 {vr(S+r_,2)}, {vr(S+r_,2)}, {vr(t,2)} op_sel_hi:[1,0]" for r_ in range(0, 16, 2)]
        else:
            L += [f"v_fma_f32 v{S+r_}, v{S+r_}, v{t}, -v{t+1}" for r_ in range(16)]
            for r_ in range(16):
                L.append(f"v_exp_f32 v{S+r_}, v{S+r_}")
                if r_ == 2: L.append(f"v_add_f32 v{t}, v{S}, v{S+1}")
                if r_ > 2: L.append(f"v_add_f32 v{t}, v{t}, v{S+r_-1}")
            L += [f"v_add_f32 v{t}, v{t}, v{S+15}", f"v_rcp_f32 v{t}, v{t}", "s_nop 0"]
            L += [f"v_mul_f32 v{S+r_}, v{S+r_}, v{t}" for r_ in range(16)]
        L += [f"v_cvt_pk_bf16_f32 v{P+i}, v{S+2*i}, v{S+2*i+1}" for i in range(8)]
        return L

    def q_epi1():
        acc = vACC0; S = vE
        side.add(f"v_add_f32 v{vGA}, v{vGA}, v{vGACC+7}\nds_write_b32 v{vAGP}, v{vGA}\nv_and_b32 v{vAGP}, 0xfffffcff, v{vAGP}")
        side.dist("p0end", 12)
        for i in range(6): side.add(f"v_cvt_pk_bf16_f32 v{acc+i}, v{acc+2*i}, v{acc+2*i+1}")
        side.add(f"{MF} {vr(S,16)}, {vr(vWPHI,4)}, {vr(acc,4)}, 0"); side.note("pk")
        for i in range(6, 8): side.add(f"v_cvt_pk_bf16_f32 v{acc+i}, v{acc+2*i}, v{acc+2*i+1}")
        side.add(f"ds_write_b128 v{vAVW}, {vr(acc+4,4)} offset:2176")
        for i in range(4): side.add(f"v_mov_b32 v{acc+12+i}, 0x3f803f80")
        side.dist("pk", 12)
        sl = softmax16(S, S, vE+16, False)
        sl = sl[:-4] + [f"ds_write_b128 v{vAPW}, {vr(S,4)}"] + sl[-4:] + [f"ds_write_b128 v{vAPW}, {vr(S+4,4)} offset:1088"]
        for ln in sl: side.add(ln)
        side.sync()
        for m_ in range(2):
            for t in range(2):
                side.add(f"ds_read_b64_tr_b16 {vr(vE+8*m_+t*2,2)}, v{vAPR} offset:{m_*SCRW + 64*t}")
                side.add(f"ds_read_b64_tr_b16 {vr(vE+8*m_+4+t*2,2)}, v{vAVR} offset:{m_*SCRW + 2176 + 64*t}")
            if m_ == 0: side.block(lambda: None, 100); side.block(lambda: a("s_waitcnt lgkmcnt(8)"), 0)
        side.add(f"ds_read2_b32 {vr(vXR,2)}, v{vAGP} offset0:0 offset1:64\nds_read2_b32 {vr(vXR+2,2)}, v{vAGP} offset0:128 offset1:192")
        side.add(f"ds_read_b128 {vr(vAVW2,4)}, v{vPK4}\nv_mov_b32 v{vNON}, s{sNON}")
        side.sync()
        side.add(f"{MF16} {vr(acc,4)}, {vr(vE,4)}, {vr(vE+4,4)}, 0\n{MF16} {vr(acc+4,4)}, {vr(vE,4)}, {vr(acc+12,4)}, 0")
        side.add(f"{MF16} {vr(acc,4)}, {vr(vE+8,4)}, {vr(vE+12,4)}, {vr(acc,4)}\n{MF16} {vr(acc+4,4)}, {vr(vE+8,4)}, {vr(acc+12,4)}, {vr(acc+4,4)}")
        side.dist("kvm", 8)
        def b_store():
            a.vm(f"buffer_store_dwordx4 {vr(acc,4)}, v{vPO}, {WS}, s{sPART} offen sc1", "part0")
            setexec(0x000f000f, 0x000f000f)
            a.vm(f"buffer_store_dwordx4 {vr(acc+4,4)}, v{vPO}, {WS}, s{sPART} offen offset:256 sc1", "part")
            a("s_mov_b64 exec, -1")
        side.block(b_store, 100)
        side.sync()
        side.add(f"v_add_f32 v{vXR}, v{vXR}, v{vXR+1}\nv_add_f32 v{vXR+2}, v{vXR+2}, v{vXR+3}\nv_add_f32 v{vXR}, v{vXR}, v{vXR+2}")
        side.add(f"v_mul_f32 v{vXR}, {f32(-LOG2E)}, v{vXR}\nv_exp_f32 v{vXR}, v{vXR}\ns_nop 0\nv_add_f32 v{vXR}, 1.0, v{vXR}\nv_rcp_f32 v{vG}, v{vXR}")
    def q_epi2():
        acc = vACC1; kf = vE + 4
        side.dist("p1end", 12)
        for i in range(4): side.add(f"v_cvt_pk_bf16_f32 v{kf+i}, v{acc+2*i}, v{acc+2*i+1}")
        side.block(lambda: a.vm(f"buffer_store_dwordx4 {vr(kf,4)}, v{vL16}, {WS}, s{sKVB} offen sc1", "kvb0"), 0)
        side.add(f"ds_read_b128 {vr(acc,4)}, v{vAK8}\nds_read_b128 {vr(acc+4,4)}, v{vAK8} offset:1024")
        for i in range(4, 8): side.add(f"v_cvt_pk_bf16_f32 v{kf+i}, v{acc+2*i}, v{acc+2*i+1}")
        side.block(lambda: a.vm(f"buffer_store_dwordx4 {vr(kf+4,4)}, v{vVO}, {WS}, s{sKVB} offen offset:1024 sc1", "kvb"), 0)
        side.sync()
        side.add(f"ds_write_b128 v{vAK8}, {vr(kf,4)}\nds_write_b128 v{vAVW2}, {vr(kf+4,4)} offset:1024")
    vHD = 88 if o['h1_load'] >= 100 else 176
    def h1load():
        poll_check(vHP, sF1P, 15, "h1p", rec=26)
        for i in range(2): a.vm(f"buffer_load_dwordx4 {vr(vHD+4*i,4)}, v{vPO2}, {WS}, s{sH1L} offen offset:{i*2*PSTR} sc1", "h1l")
    def h1write():
        a(f"s_waitcnt vmcnt({a.cnt_after('h1l')})")
        for j in range(4): a(f"v_add_f32 v{vHD+j}, v{vHD+j}, v{vHD+4+j}")
        a(f"ds_write_b128 v{vHOW}, {vr(vHD,4)}")
    def h1fin():
        vX = 208
        n0 = a.ni
        lab = only(f"s_cmp_eq_u32 s{sW}, 0")
        for i in range(8): a(f"ds_read_b128 {vr(vX+4*i,4)}, v{vHOW} offset:{i*1024}")
        a(f"v_lshlrev_b32 v{vE+28}, 3, v{vL}\ns_waitcnt lgkmcnt(0)")
        for st in (16, 8, 4):
            for j in range(0, st, 2): a(f"v_pk_add_f32 {vr(vX+j,2)}, {vr(vX+j,2)}, {vr(vX+st+j,2)}")
        for j in range(4): a(f"v_mov_b32 v{vX+4+j}, v{vX+j}")
        a("s_nop 0")
        for j in range(4): a(f"v_permlane32_swap_b32 v{vX+j}, v{vX+4+j}")
        a("s_nop 0")
        a(f"v_pk_add_f32 {vr(vX,2)}, {vr(vX,2)}, {vr(vX+4,2)}\nv_pk_add_f32 {vr(vX+2,2)}, {vr(vX+2,2)}, {vr(vX+6,2)}")
        a(f"v_cvt_pk_bf16_f32 v{vX+10}, v{vX}, v{vX+1}\nv_cvt_pk_bf16_f32 v{vX+11}, v{vX+2}, v{vX+3}")
        setexec(0xffffff, 0)
        a(f"buffer_store_dwordx2 {vr(vX+10,2)}, v{vE+28}, {WS}, s{sKVFS} offen sc1\ns_mov_b64 exec, -1")
        a(f"{lab}:"); a.ni = n0 + 2

    wh_ = [w_ for w_ in (2, 3) if o[f"wpf{w_}"] == -2]
    if wh_: wprefetch(wh_)
    if o["wopf"] == -2: woprefetch()
    stamp("pre")
    a(f"s_waitcnt vmcnt({a.cnt_after('misc')}) lgkmcnt(0)\ns_barrier")
    stamp("first")
    for s in range(4): a(rd_w(0, s, 0)); a(rd_w(0, s, 1))
    c2late = ("w", 2, 1) not in a.q
    if c2late: dma(2, "x")
    for s in range(4): a(rd_x(0, s))
    a(rd_g(0))
    if c2late: dma(2, 0); dma(2, 1)
    if o.get("sched") == 4:
        order = {5: [8, 9], 6: [10, 11], 7: [12, 13], 8: [14], 9: [15], 10: [16], 11: [17], 12: [18], 13: [19, 20], 14: [21, 22], 15: [23]}
    if o.get("sched") == 5:
        order = {5: [8], 6: [9, 10], 7: [11], 8: [12, 13], 9: [14, 15], 10: [16], 11: [17], 12: [18], 13: [19, 20], 14: [21, 22], 15: [23]}
    if o.get("sched") == 3: dma(3, "x"); dma(3, 0); dma(3, 1)
    a(f"s_mul_i32 s{sNON}, s82, 0x9E3779B1\ns_add_u32 s{sNON}, s{sNON}, 0x7F4A7C15\ns_cmp_eq_u32 s{sNON}, -1\ns_cselect_b32 s{sNON}, 0x2545F491, s{sNON}")
    a("s_waitcnt lgkmcnt(8)")
    a(f"ds_read_b64_tr_b16 {vr(vWPHI,2)}, v{vWPA}\nds_read_b64_tr_b16 {vr(vWPHI+2,2)}, v{vWPA} offset:256")
    side.sync()
    for ln in Z: side.add(ln)
    if not pre_done: side.block(prewrite, 8)
    for i in range(4): side.add(f"v_xor_b32 v{vWPHI+i}, v{vWPHI+i}, v{vSG}")
    W2 = lambda c_: [(c_, 0), (c_, 1)]
    sched = {n: [(n+3, "x")] + W2(n+3) for n in range(5)}
    if o["xpair"]:
        sched = {0: [(3, "x"), (4, "x")] + W2(3), 1: W2(4), 2: [(5, "x"), (6, "x"), (7, "x")] + W2(5), 3: W2(6), 4: W2(7)}
    order = {5: [8], 6: [9], 7: [10], 8: [11, 12], 9: [13, 14], 10: [15, 16], 11: [17], 12: [18], 13: [19, 20], 14: [21], 15: [22], 16: [], 17: [23]}
    if o.get("sched") == 1: order = {5: [8, 9], 6: [10], 7: [11], 8: [12, 13], 9: [14, 15], 10: [16], 11: [17], 12: [18], 13: [19], 14: [20], 15: [21], 17: [22], 18: [23]}
    if o.get("sched") == 2: order = {5: [8], 6: [9], 7: [10], 8: [11, 12], 9: [13, 14], 10: [15, 16], 11: [17], 12: [18], 13: [19, 20], 14: [21, 22], 15: [23]}
    if o.get("sched") == 4:
        order = {5: [8, 9], 6: [10, 11], 7: [12, 13], 8: [14], 9: [15], 10: [16], 11: [17], 12: [18], 13: [19, 20], 14: [21, 22], 15: [23]}
    if o.get("sched") == 5:
        order = {5: [8], 6: [9, 10], 7: [11], 8: [12, 13], 9: [14, 15], 10: [16], 11: [17], 12: [18], 13: [19, 20], 14: [21, 22], 15: [23]}
    if o.get("sched") == 3:
        sched = {n: [(n+4, "x")] + W2(n+4) for n in range(4)}
        order = {4: [8, 9], 5: [10, 11], 6: [12], 7: [13], 8: [14], 9: [15], 10: [16], 11: [17], 12: [18], 13: [19, 20], 14: [21, 22], 15: [23]}
    for n_, cs in order.items():
        sched[n_] = [d_ for c_ in cs for d_ in W2(c_)]
        for c_ in cs:
            prev = [m_ for m_ in range(c_) if slot(m_) == slot(c_)]
            assert not prev or prev[-1] <= n_, (c_, n_)
            assert n_ < c_ - 1
    woa_its = [o["woa0"], o["woa1"], o["woa2"], o["woa3"]]
    for k_, it_ in enumerate(woa_its):
        assert it_ >= 16 + k_
        if it_ < 24: sched.setdefault(it_, []).extend(W2(24 + k_))
    for n in range(24):
        p, i = divmod(n, 8)
        a.c(f"---- iteration {n}")
        w = a.cnt_after(("w", n+1, 1)) if n < 23 else 63
        if n < 7: w = min(w, a.cnt_after(("x", n+1)))
        if n == o["f2_it"]: w = min(w, a.cnt_after("kvb"))
        if n == o["f1_it"]: w = min(w, a.cnt_after("part"))
        a(f"s_waitcnt vmcnt({w}) lgkmcnt(0)" if w < 63 else "s_waitcnt lgkmcnt(0)")
        a("s_barrier")
        stamp_b()
        side.barrier_passed()
        if n == 6: assert "rec" in a.q
        if n == 14: assert "part" in a.q
        if n == 8: assert not side.u; q_epi1()
        if n == 16: assert not side.u, side.u; q_epi2()
        acc = vACC0 if p != 1 else vACC1
        def M(s):
            cc = "0" if (i == 0 and s == 0) else vr(acc, 16)
            a(f"{MF} {vr(acc,16)}, {vr(vWF+(n%2)*16+s*4,4)}, {vr(vX+i*16+s*4,4)}, {cc}")
        nx = n + 1
        dl = list(sched.get(n, []))
        def D(pos, npos):
            tot = len(sched.get(n, []))
            k0, k1 = -(-tot * pos // npos), -(-tot * (pos + 1) // npos)
            for _ in range(k1 - k0): dma(*dl.pop(0))
        if p == 0:
            if i == 1: a(f"v_mov_b32 v{vGA}, v{vGACC}")
            if i > 1: a(f"v_add_f32 v{vGA}, v{vGA}, v{vGACC+i-1}")
            a(f"{MF} {vr(vGACC,16)}, {vr(vGF,4)}, {vr(vGXF,4)}, 0")
            if nx < 8:
                for s in range(3): a(rd_x(nx, s))
            D(0, 3)
            M(0)
            if nx < 8: a(rd_x(nx, 3)); a(rd_g(nx))
            if n == 7:
                for i_ in range(4): a(f"v_mov_b32 v{vXR+i_}, -1")
            wh_ = [w_ for w_ in (2, 3) if o[f"wpf{w_}"] == n]
            if wh_: wprefetch(wh_)
            if n == o["wopf"]: woprefetch()
            side.slot(o["bud0"])
            M(1)
            for s in range(2): a(rd_w(nx, s, 0)); a(rd_w(nx, s, 1))
            D(1, 3)
            M(2)
            for s in range(2, 4): a(rd_w(nx, s, 0)); a(rd_w(nx, s, 1))
            side.slot(o["bud0"])
            D(2, 3)
            M(3)
            if n == 7: side.pos["p0end"] = a.ni
        else:
            B = o["bud1"] if p == 1 else 12
            M(0)
            if n == o["f2_it"]: flag(sF2S)
            if n == o["f1_it"]: flag(sF1S, sF4S)
            if n == o["h1_poll"]: poll_issue(vHP, sF1P, 15, "h1p")
            if n == o["f2pos"] + 24: poll_issue(vFP, sF2P, sr(sF2M,2), "f2p")
            if nx < 24:
                for s in range(2): a(rd_w(nx, s, 0)); a(rd_w(nx, s, 1))
            if n == o["h1_load"]: h1load()
            if n == o["poi_it"]: a.vm(f"buffer_store_dwordx4 {vr(vXR,4)}, v{vL16}, {WS}, s{sOA} offen sc1", "poisonA")
            if n == o["poi_it2"]: a.vm(f"buffer_store_dwordx4 {vr(vXR,4)}, v{vL16}, {WS}, s{sOB} offen sc1", "poison")
            D(0, 4)
            side.slot(B)
            M(1)
            if nx < 24:
                for s in range(2, 4): a(rd_w(nx, s, 0)); a(rd_w(nx, s, 1))
            D(1, 4)
            side.slot(B)
            M(2)
            D(2, 4)
            if n == o["wpf3"]: wprefetch([3])
            if n == o["wopf"]: woprefetch()
            if n == o["h1_wr"]: h1write()
            side.slot(B)
            D(3, 4)
            M(3)
            if n == 15: side.pos["p1end"] = a.ni
        assert not dl
        if o.get("allit"):
            if n < 23: stamp_a(f"it{n}")
        elif n in (3, 7, 11, 15, 19): stamp_a(f"it{n}")
    assert not side.u, side.u
    nend = a.ni
    stamp("T3")
    vQ, vPHI, vKV = 8, 64, 72
    vSA, vSB, vO = 192, 208, 224
    vP, vKA, vKB = 240, 248, 252
    vVA, vVB = 80, 88
    vWO = 128
    vT = 30
    acc = vACC0; vPOI = acc + 4
    def rdK(dst, j): a(f"ds_read_b128 {vr(dst,4)}, v{vAK8}" if j == 8 else f"ds_read_b128 {vr(dst,4)}, v{vAK} offset:{j*8192}")
    def rdV(dst, ad_):
        for mf in range(2):
            for t in range(2): a(f"ds_read_b64_tr_b16 {vr(dst+4*mf+2*t,2)}, v{ad_} offset:{256*mf+128*t}")
    def qk(S, K, C="0"): a(f"{MF} {vr(S,16)}, {vr(K,4)}, {vr(vQ,4)}, {C}")
    def pv(V, P, first=False): a(f"{MF} {vr(vO,16)}, {vr(V,4)}, {vr(P,4)}, {'0' if first else vr(vO,16)}")
    def rdwo_list(dst, ads):
        return [f"ds_read_b64_tr_b16 {vr(dst + hd*8 + ct*4 + t*2, 2)}, v{ads[ct]} offset:{(16*hd+4*t)*128}"
                for hd in range(8) for ct in range(2) for t in range(2)]
    def kv_loads(tag="kvl"):
        for fq in range(4):
            ln = f"buffer_load_dwordx2 {vr(vKV+2*fq,2)}, v{vKVO}, {WS}, s{sKVS} offen offset:{fq*256} sc1"
            if tag: a.vm(ln, tag)
            else: yield ln
    if o["h1_wr"] <= 22: h1fin()
    rdK(vKA, 8); rdV(vVA, vAV)
    a(f"v_sub_u32 v{vAV}, v{vAV}, v{vAVI}\nv_mov_b32 v{vE+16}, {f32(0.25*LOG2E)}")
    for k_, it_ in enumerate(woa_its):
        if it_ >= 24: dma(24 + k_, 0); dma(24 + k_, 1)
    a.pad(nend, 12)
    for i in range(4): a(f"v_cvt_pk_bf16_f32 v{acc+i}, v{acc+2*i}, v{acc+2*i+1}")
    for r_ in range(8, 16, 2): a(f"v_pk_mul_f32 {vr(acc+r_,2)}, {vr(acc+r_,2)}, {vr(vE+16,2)} op_sel_hi:[1,0]")
    a(f"{MF} {vr(vE,16)}, {vr(vWPHI,4)}, {vr(acc,4)}, 0"); n0 = a.ni
    for i in range(4): a(f"v_cvt_pk_bf16_f32 v{vQ+i}, v{acc+8+2*i}, v{acc+8+2*i+1}")
    a("s_nop 0\ns_waitcnt lgkmcnt(0)"); qk(vSA, vKA)
    a.pad(n0, 12)
    fill = softmax16(vE, vPHI, vE+16)
    for r_ in range(16): fill.append(f"v_exp_f32 v{vSA+r_}, v{vSA+r_}")
    for i in range(8): fill.append(f"v_cvt_pk_bf16_f32 v{vP+i}, v{vSA+2*i}, v{vSA+2*i+1}")
    for i in range(8): fill.append(f"v_and_b32 v{vP+i}, v{vP+i}, v{vM+i}")
    for i in range(8): fill.append(f"v_not_b32 v{vM+i}, v{vM+i}")
    fill.append(f"{MF} {vr(vO,16)}, {vr(vVA,4)}, {vr(vP,4)}, 0"); fill.append(f"{MF} {vr(vO,16)}, {vr(vVA+4,4)}, {vr(vP+4,4)}, {vr(vO,16)}")
    hl = list(range(7, -1, -1))
    def halo():
        if not hl: return
        s = hl.pop(0)
        lab = only(f"s_cmp_ge_u32 s{sRB}, {4 - s//2}")
        a(f"s_add_u32 m0, s{sW1K}, {s*8192}\ns_sub_u32 s{sHAL}, s{sHAL}, 8192\nbuffer_load_dwordx4 v{vL16}, {WS}, s{sHAL} offen sc1 lds\n{lab}:")
    f2a, f2b, hb = o["f2pos"], o["f2chk"], o["h1_wr"] - 100
    wl = rdwo_list(vWO, (vWA0, vWA1)); nrd = 0
    for k_, ln in enumerate(fill):
        if k_ == o["h1_load"] - 100: h1load()
        if k_ == f2a: poll_issue(vFP, sF2P, sr(sF2M,2), "f2p")
        if k_ == hb: h1write(); a("s_waitcnt lgkmcnt(0)\ns_barrier"); stamp("Bm"); h1fin()
        if k_ == f2b:
            poll_check(vFP, sF2P, sr(sF2M,2), "f2p", rec=27)
            halo(); halo()
        a(ln)
        if k_ > f2b and (k_ - f2b) % 3 == 0: halo()
        if k_ >= hb and wl:
            a(wl.pop(0)); nrd += 1
            if nrd % 8 == 0: a("s_waitcnt lgkmcnt(6)")
    assert hb >= 0 and f2b >= hb
    if f2b >= len(fill): poll_check(vFP, sF2P, sr(sF2M,2), "f2p", rec=27)
    while hl: halo()
    a.mark("halo")
    while wl:
        a(wl.pop(0)); nrd += 1
        if nrd % 8 == 0: a("s_waitcnt lgkmcnt(6)")
    stamp("fill")
    if o["kvl_blk"] == 9: list(kv_loads())
    a(f"s_waitcnt vmcnt({a.cnt_after('halo')}) lgkmcnt(0)\ns_barrier")
    stamp("B1")
    rdK(vKA, 7); rdK(vKB, 6); rdV(vVB, vAV)
    if o["kvl_blk"] == 8: list(kv_loads())
    a("s_waitcnt lgkmcnt(5)")
    qk(vSB, vKA); n0 = a.ni
    def kv_check():
        lp, ld = a.label("Lkv"), a.label("Lkvd")
        k0 = vE + 24
        chk = f"v_max3_u32 v{k0}, v{vKV}, v{vKV+2}, v{vKV+4}\nv_max_u32 v{k0}, v{k0}, v{vKV+6}\nv_cmp_eq_u32 vcc, -1, v{k0}"
        if o["stamps"]: a(f"s_mov_b32 s{sSPIN}, 0")
        a(f"s_waitcnt vmcnt({a.cnt_after('kvl')})\n{chk}\ns_cbranch_vccnz {lp}\n{ld}:")
        stubs.append(f"{lp}:\ns_mov_b32 s{sSPIN}, 0\n{lp}b:\n" + "\n".join(kv_loads(None)) + f"\ns_add_u32 s{sSPIN}, s{sSPIN}, 1\ns_cmp_gt_u32 s{sSPIN}, {SPIN_MAX}\ns_waitcnt vmcnt(0)\ns_cbranch_scc1 {ld}\n{chk}\ns_cbranch_vccnz {lp}b\ns_branch {ld}")
        spinrec(28)
        a(f"{MF} {vr(vE,16)}, {vr(vKV,4)}, {vr(vPHI,4)}, 0\n{MF} {vr(vE,16)}, {vr(vKV+4,4)}, {vr(vPHI+4,4)}, {vr(vE,16)}")
    def oa_1(): a(f"v_add_f32 v{vE+24}, {f32(1e-6)}, v{vE+8}\nv_rcp_f32 v{vE+24}, v{vE+24}")
    def oa_2():
        a(f"v_mul_f32 v{vE+24}, v{vE+24}, v{vG}")
        for r2 in range(8): a(f"v_mul_f32 v{vE+r2}, v{vE+r2}, v{vE+24}")
        for i in range(4): a(f"v_cvt_pk_bf16_f32 v{vE+16+i}, v{vE+2*i}, v{vE+2*i+1}")
    def oa_3():
        a.vm(f"buffer_store_dwordx4 {vr(vE+16,4)}, v{vL16}, {WS}, s{sOA} offen sc1", "oa")
    dm = [(k_, b) for k_ in range(4) for b in range(2)]
    def dma_wob():
        if dm:
            k_, b = dm.pop(0)
            a(f"s_add_u32 m0, s{sW1K}, {RING + k_*16384 + b*8192}\ns_nop 0")
            a.vm(f"buffer_load_dwordx4 v{vWOD}, {sr(sWOB,4)}, s{sWOF+2*k_+b} offen lds", "wob")
    vOFA, vOFB = 96, 64
    def ofr(k_): return (vOFA + 4*k_) if k_ < 8 else (vOFB + 4*(k_-8))
    def oload_ln(k_): return f"buffer_load_dwordx4 {vr(ofr(k_),4)}, v{vL16}, {WS}, s{sOL + k_//4} offen offset:{(k_%4)*1024} sc1"
    cur, nxt, vc, vn, kc, kn = vSB, vSA, vVB, vVA, vKB, vKA
    oal = list(range(8))
    wob0 = o.get("wob_blk", 7)
    for j in range(7, -1, -1):
        a.c(f"block {j}")
        a("s_waitcnt lgkmcnt(0)")
        if j in (6, 3): stamp(f"blk{j}")
        if j > 0:
            qk(nxt, kc)
            if j > 1: rdK(kn, j-2)
            a(f"v_sub_u32 v{vAV}, v{vAV}, v{vAVI}")
            rdV(vn, vAV)
        if j == 7: a.pad(n0, 12)
        if j == o["kvl_blk"]: list(kv_loads())
        if j == o["oal_blk"] + 1 or (j == 0 and o["oal_blk"] < 0): poll_issue(vF4P, sF4P, 3, "f4p")
        if j == o["oal_blk"]: poll_check(vF4P, sF4P, 3, "f4p", rec=25)
        def mem(k):
            if dm:
                if j <= wob0 and k % 2 == 0: dma_wob()
            elif j <= o["oal_blk"] and oal:
                k_ = oal.pop(0); a.vm(oload_ln(k_), ("ol", k_))
        if j == o["kv_blk"]: kv_check()
        valid = f"s_cmp_ge_u32 s{sQB}, {8-j}"
        for r_ in range(8):
            a(f"v_exp_f32 v{cur+r_}, v{cur+r_}")
            if r_ in (2, 6): mem(r_ // 4)
        for i in range(4): a(f"v_cvt_pk_bf16_f32 v{vP+i}, v{cur+2*i}, v{cur+2*i+1}")
        if j == 0:
            for i in range(4): a(f"v_and_b32 v{vP+i}, v{vP+i}, v{vM+i}")
        if j == o["kv_blk"]: oa_1()
        for r_ in range(8, 16):
            a(f"v_exp_f32 v{cur+r_}, v{cur+r_}")
            if r_ == 10:
                lab = only(valid); pv(vc, vP); a(f"{lab}:")
            if r_ == 9 and j == o["kv_blk"]:
                oa_2()
                oa_3()
            if r_ in (11, 15): mem(r_ // 4)
        for i in range(4, 8): a(f"v_cvt_pk_bf16_f32 v{vP+i}, v{cur+2*i}, v{cur+2*i+1}")
        if j == 0:
            for i in range(4, 8): a(f"v_and_b32 v{vP+i}, v{vP+i}, v{vM+i}")
        lab = only(valid); pv(vc+4, vP+4); a(f"{lab}:")
        cur, nxt = nxt, cur; vc, vn = vn, vc; kc, kn = kn, kc
    assert not dm
    a(f"v_sub_f32 v{vT+1}, 1.0, v{vG}\nv_mov_b32 v12, v{vWA0}\nv_mov_b32 v13, v{vWA1}\ns_nop 8")
    a(f"v_cmp_lt_f32 vcc, {f32(2.0**-64)}, v{vO+8}\nv_rcp_f32 v{vT}, v{vO+8}\ns_mov_b64 {sr(sP,2)}, vcc\nv_cmp_gt_f32 vcc, {f32(2.0**64)}, v{vO+8}\ns_nop 1")
    a(f"s_and_b64 {sr(sP,2)}, {sr(sP,2)}, vcc\ns_cmp_eq_u64 {sr(sP,2)}, -1")
    a("s_branch L_maxpath" if o["force_fallback"] else "s_cbranch_scc0 L_maxpath")
    a("L_attn_ok:")
    a(f"v_mul_f32 v{vT}, v{vT}, v{vT+1}")
    for r_ in range(0, 8, 2): a(f"v_pk_mul_f32 {vr(vO+r_,2)}, {vr(vO+r_,2)}, {vr(vT,2)} op_sel_hi:[1,0]")
    for i in range(4): a(f"v_cvt_pk_bf16_f32 v{vQ+i}, v{vO+2*i}, v{vO+2*i+1}")
    a.vm(f"buffer_store_dwordx4 {vr(vQ,4)}, v{vL16}, {WS}, s{sOB} offen sc1", "ob")
    stamp("attn")
    if o["oal_blk"] < 0: poll_check(vF4P, sF4P, 3, "f4p", rec=25)
    for k_ in oal: a.vm(oload_ln(k_), ("ol", k_))
    a(f"s_waitcnt vmcnt({a.cnt_after('wob')})\ns_barrier")
    wl = rdwo_list(vWO + 64, (12, 13))
    row, bw, br0, br1, vout = 24, 25, 26, 27, 28
    ad = []
    ad += f"v_and_b32 v{row}, 31, v{vL}\ns_lshl_b32 s{sT0}, s{sRW}, 5\nv_add_u32 v{row}, s{sT0}, v{row}\nv_lshrrev_b32 v{bw}, 5, v{vL}".split("\n")
    ad += f"v_and_b32 v{br0}, 15, v{row}\nv_xor_b32 v{bw}, v{bw}, v{br0}\nv_lshlrev_b32 v{bw}, 4, v{bw}\nv_lshl_add_u32 v{bw}, v{row}, 8, v{bw}".split("\n")
    ad += f"s_lshl_b32 s{sT0}, s{sH}, 14\nv_add_u32 v{bw}, s{sT0}, v{bw}".split("\n")
    ad += [f"v_xor_b32 v{vM+k_}, {2*k_*16}, v{bw}" for k_ in range(8)]
    ad += f"v_lshrrev_b32 v{row}, 3, v{vL}\ns_lshl_b32 s{sT0}, s{sW}, 3\nv_add_u32 v{row}, s{sT0}, v{row}".split("\n")
    ad += f"v_and_b32 v{br0}, 7, v{vL}\nv_lshlrev_b32 v{br0}, 1, v{br0}\nv_and_b32 v{br1}, 15, v{row}\nv_xor_b32 v{br0}, v{br0}, v{br1}".split("\n")
    ad += f"v_lshlrev_b32 v{br0}, 4, v{br0}\nv_lshl_add_u32 v{br0}, v{row}, 8, v{br0}\nv_xor_b32 v{br1}, 16, v{br0}".split("\n")
    ad += f"v_and_b32 v{vout}, 7, v{vL}\nv_lshlrev_b32 v{vout}, 4, v{vout}\nv_lshl_add_u32 v{vout}, v{row}, 10, v{vout}".split("\n")
    a(f"s_mov_b32 s{sSPIN}, 0")
    obk = o["obk"]
    for k_ in range(16):
        if k_ == obk:
            a(f"s_waitcnt vmcnt({a.cnt_after('ob')})")
            stamp("obAck")
            for k2 in range(8, 16): a.vm(oload_ln(k2), ("ol", k2))
        if k_ == 8: a("s_waitcnt lgkmcnt(0)")
        a(f"s_waitcnt vmcnt({a.cnt_after(('ol', k_))})")
        a(f"L_ob{k_}:\nv_cmp_eq_u32 vcc, -1, v{ofr(k_)}\ns_cbranch_vccnz L_obre{k_}\nL_obok{k_}:")
        for ct in range(2):
            ac = vACC0 + 16*ct
            a(f"{MF} {vr(ac,16)}, {vr(vWO+k_*8+ct*4,4)}, {vr(ofr(k_),4)}, {'0' if k_ == 0 else vr(ac,16)}")
            if k_ < 8:
                for _ in range(2):
                    if ad: a(ad.pop(0))
                for _ in range(2):
                    if wl: a(wl.pop(0))
        if k_ < 8 and k_ % 2 == 1: a("s_waitcnt lgkmcnt(4)")
        if k_ == 7: stamp("Ahalf")
    assert not ad and not wl
    spinrec(24)
    stamp("Bhalf")
    a("s_nop 10")
    for k_ in range(8): a(f"ds_write_b128 v{vM+k_}, {vr(vACC0+4*k_,4)}")
    a("s_waitcnt lgkmcnt(0)\ns_barrier")
    stamp("redw")
    R = 128
    for kq in range(4):
        a(f"ds_read_b128 {vr(R+kq*8,4)}, v{br0} offset:{kq*16384}\nds_read_b128 {vr(R+kq*8+4,4)}, v{br1} offset:{kq*16384}")
    for kq in range(1, 4):
        a(f"s_waitcnt lgkmcnt({6-2*kq})")
        for j in range(0, 8, 2): a(f"v_pk_add_f32 {vr(R+j,2)}, {vr(R+j,2)}, {vr(R+8*kq+j,2)}")
    for i in range(4): a(f"v_cvt_pk_bf16_f32 v{R+32+i}, v{R+2*i}, v{R+2*i+1}")
    a(f"buffer_store_dwordx4 {vr(R+32,4)}, v{vout}, {sr(sOUT,4)}, s{sOUTO} offen")
    a(f"s_or_b32 s{sT1}, s2, s{sW}")
    lab = only(f"s_cmp_eq_u32 s{sT1}, 0")
    a(f"v_mov_b32 v{row}, s{sNON}\nv_lshlrev_b32 v{bw}, 2, v{vL}")
    setexec(0xffff, 0)
    a(f"buffer_store_dword v{row}, v{bw}, {WS}, 0 offen sc1\ns_mov_b64 exec, -1")
    a(f"{lab}:")
    if o["stamps"]:
        stamp("issued")
        a("s_waitcnt vmcnt(0)")
        stamp("end")
        a(f"s_memrealtime s[{sTS}:{sTS+1}]\ns_waitcnt lgkmcnt(0)\nv_writelane_b32 v7, s100, 29\nv_writelane_b32 v7, s98, 30\nv_writelane_b32 v7, s{sTS}, 31")
        a(f"s_lshl_b32 s{sT0}, s2, 3\ns_add_u32 s{sT0}, s{sT0}, s{sW}\ns_lshl_b32 s{sT0}, s{sT0}, 7\ns_add_u32 s{sT0}, s{sT0}, {WS_DBG}")
        a(f"v_lshlrev_b32 v{row}, 2, v{vL}\ns_mov_b32 exec_hi, 0\nbuffer_store_dword v7, v{row}, {WS}, s{sT0} offen")
    a("L_exit:\ns_endpgm")
    for k_ in range(16):
        a(f"L_obre{k_}:\ns_add_u32 s{sSPIN}, s{sSPIN}, 1\ns_cmp_gt_u32 s{sSPIN}, {SPIN_MAX}\ns_cbranch_scc1 L_obok{k_}\ns_waitcnt vmcnt(0)")
        hi = 8 if k_ < 8 else 16
        for k2 in range(k_, hi): a(oload_ln(k2))
        a(f"s_waitcnt vmcnt({0 if k_ < 8 else 15-k_})\ns_branch L_ob{k_}")
    for s_ in stubs: a(s_)
    a("L_maxpath:")
    m, ninf, ak, d = vT, 4, 5, 6
    vNEG = vACC0
    a(f"v_mov_b32 v{ninf}, 0xff800000\nv_lshrrev_b32 v{d}, 5, v{vL}\nv_lshlrev_b32 v{d}, 2, v{d}\nv_and_b32 v{ak}, 31, v{vL}\nv_sub_u32 v{d}, v{ak}, v{d}")
    for ph in range(2):
        C = "0" if ph == 0 else vr(vNEG, 16)
        if ph == 0: a(f"v_mov_b32 v{m}, v{ninf}")
        else:
            for r_ in range(16): a(f"v_mov_b32 v{vO+r_}, 0")
        a(f"s_mov_b32 s{sT0}, 8\ns_min_u32 s{sT1}, s{sQB}, 8\ns_sub_u32 s{sT1}, 8, s{sT1}\nv_mov_b32 v{ak}, v{vAK8}\nv_lshl_add_u32 v{vAV}, v{vAVI}, 3, v{vAV0}")
        a(f"L_mx{ph}:\nds_read_b128 {vr(vKA,4)}, v{ak}")
        if ph: rdV(vVA, vAV)
        a("s_waitcnt lgkmcnt(0)")
        qk(vSA, vKA, C); a("s_nop 15")
        for (blk, op) in ((8, "gt"), (0, "le")):
            lab = only(f"s_cmp_eq_u32 s{sT0}, {blk}")
            for r_ in range(16):
                a(f"v_cmp_{op}_i32 vcc, {8*(r_//4) + r_ % 4}, v{d}\ns_nop 1\nv_cndmask_b32_e64 v{vSA+r_}, v{vSA+r_}, v{ninf}, vcc")
            a(f"{lab}:")
        if ph == 0:
            for r_ in range(0, 16, 2): a(f"v_max3_f32 v{m}, v{m}, v{vSA+r_}, v{vSA+r_+1}")
        else:
            for r_ in range(16): a(f"v_exp_f32 v{vSA+r_}, v{vSA+r_}")
            for i in range(8): a(f"v_cvt_pk_bf16_f32 v{vP+i}, v{vSA+2*i}, v{vSA+2*i+1}")
            a("s_nop 1"); pv(vVA, vP); pv(vVA+4, vP+4)
        a(f"v_subrev_u32 v{ak}, 8192, v{ak}\nv_sub_u32 v{vAV}, v{vAV}, v{vAVI}\ns_sub_u32 s{sT0}, s{sT0}, 1\ns_cmp_ge_i32 s{sT0}, s{sT1}\ns_cbranch_scc1 L_mx{ph}")
        if ph == 0:
            a(f"v_mov_b32 v{ak}, v{m}\ns_nop 1\nv_permlane32_swap_b32 v{m}, v{ak}\ns_nop 1\nv_max_f32 v{m}, v{m}, v{ak}")
            for r_ in range(16): a(f"v_sub_f32 v{vNEG+r_}, 0, v{m}")
    a(f"s_nop 15\nv_rcp_f32 v{vT}, v{vO+8}\ns_branch L_attn_ok")
    a("L_codeend:")
    return a, o

HDR = open("gated_mix__linear_kernel_hedgehog__sliding_block__prompt.s.ref").read().split("; Override launch")[0]
def full(a, o):
    names = "; stamps: " + ",".join(o.get("_names", [])) + "\n" if o["stamps"] else ""
    return (HDR + names + f"; @launch grid=(256,1,1) block=(512,1,1) lds={LDS_BYTES}\n"
            '.amdgcn_target "amdgcn-amd-amdhsa--gfx950"\n.text\n'
            f".globl {NAME}\n.p2align 8\n.type {NAME},@function\n{NAME}:\n" + a.text() +
            '.section .rodata,"a"\n.p2align 6\n'
            f".amdhsa_kernel {NAME}\n  .amdhsa_next_free_vgpr 256\n  .amdhsa_next_free_sgpr 102\n"
            "  .amdhsa_accum_offset 256\n  .amdhsa_group_segment_fixed_size 0\n  .amdhsa_kernarg_size 88\n"
            "  .amdhsa_user_sgpr_count 2\n  .amdhsa_user_sgpr_kernarg_segment_ptr 1\n"
            "  .amdhsa_system_sgpr_workgroup_id_x 1\n.end_amdhsa_kernel\n")
if __name__ == "__main__":
    out = sys.argv[1]
    opts = {}
    for kv in sys.argv[2:]:
        if "=" in kv: k, v = kv.split("="); opts[k] = int(v)
        else: opts[kv] = True
    open(out, "w").write(full(*gen(opts)))
```

```python
import sys, struct
NAME = "gated_mix__linear_kernel_hedgehog__sliding_block__prompt_kernel"

class Asm:
    def __init__(self):
        self.L = []; self.nlab = 0; self.q = []; self.ni = 0
    def __call__(self, s):
        for line in s.split("\n"):
            line = line.strip()
            if not line: continue
            if line.endswith(":"): self.L.append(line)
            else:
                self.L.append("    " + line)
                if not line.startswith(";"):
                    self.ni += (1 + int(line.split()[1])) if line.startswith("s_nop") else 1
    def c(self, s): self.L.append("    ; " + s)
    def label(self, b="L"):
        self.nlab += 1; return f"{b}_{self.nlab}"
    def vm(self, s, tag=None): self(s); self.q.append(tag)
    def mark(self, tag): self.q.append(("mark", tag))
    def cnt_after(self, tag):
        idx = None
        for i, t in enumerate(self.q):
            if t == tag or t == ("mark", tag): idx = i
        assert idx is not None, tag
        return sum(1 for t in self.q[idx+1:] if not (isinstance(t, tuple) and t[0] == "mark"))
    def pad(self, n0, need):
        have = self.ni - n0
        if have < need: self(f"s_nop {need - have - 1}")
    def text(self): return "\n".join(self.L) + "\n"

def icost(line):
    m = line.split()[0]
    if m.startswith(("v_exp", "v_rcp", "v_permlane")): return 2
    if m in ("v_mul_f32", "v_add_f32", "v_fma_f32", "v_mov_b32", "v_and_b32", "v_xor_b32"): return 0.7
    return 1

class Side:
    def __init__(self, a): self.a = a; self.u = []; self.pos = {}; self.deferred = False
    def add(self, s):
        for line in s.split("\n"):
            line = line.strip()
            if line: self.u.append(("i", line))
    def block(self, fn, cost): self.u.append(("b", fn, cost))
    def sync(self): self.u.append(("sync",))
    def note(self, name): self.u.append(("note", name))
    def dist(self, name, n): self.u.append(("dist", name, n))
    def slot(self, budget):
        while self.u and budget > 0:
            u = self.u[0]
            if u[0] == "sync": return
            if u[0] == "dist":
                have = self.a.ni - self.pos[u[1]]
                if have < u[2]:
                    if budget < 1e8 and not self.deferred:
                        self.deferred = True; return
                    self.a(f"s_nop {u[2]-have-1}")
                self.deferred = False
            self.u.pop(0)
            if u[0] == "i": self.a(u[1]); budget -= icost(u[1])
            elif u[0] == "b": u[1](); budget -= u[2]
            elif u[0] == "note": self.pos[u[1]] = self.a.ni
    def barrier_passed(self):
        if self.u and self.u[0][0] == "sync": self.u.pop(0)

def vr(b, n=1): return f"v{b}" if n == 1 else f"v[{b}:{b+n-1}]"
def sr(b, n=1): return f"s{b}" if n == 1 else f"s[{b}:{b+n-1}]"
def f32(x): return "0x%08x" % struct.unpack("<I", struct.pack("<f", x))[0]
MF = "v_mfma_f32_32x32x16_bf16"
MF16 = "v_mfma_f32_16x16x32_bf16"

XB, OWN, RING, MISC = 0, 65536, 81920, 147456
WPHI, GATEW, GP, ONES, H1S = MISC, MISC + 2048, MISC + 3072, MISC + 4096, MISC + 8192
LDS_BYTES = 163840
SCR, SCRW = XB + 32768, 3328
def slot(n):
    R = lambda i: RING + i * 16384
    X = lambda i: XB + i * 16384
    if n < 8: return R(n % 4)
    return [X(0), X(1), R(0), R(1), R(2), R(3), X(0), X(1), R(0), R(1), R(2), R(3), X(2), X(3), X(0), X(1), R(0), R(1), R(2), R(3)][n - 8]
WS_F1, WS_F2, WS_F4, WS_KVF = 0x10000, 0x20000, 0x30000, 0x40000
WS_PART = 0x100000
PSTR, SSTR = 320, 320 * 32
WS_KVB, WS_O, WS_DBG, WS_SIZE = 0x500000, 0x900000, 0xD00000, 0x1000000
LOG2E = 1.4426950408889634
sX, sWA, sWB, sWS, sWOA, sWOB, sOUT = 4, 8, 12, 16, 20, 24, 28
sCH = 32
sW, sRW, sH, sHG, sRB, sROT, sNON, sW1K, sQB = 40, 41, 42, 43, 44, 45, 46, 47, 48
sT0, sT1, sT2 = 50, 51, 52
sSPIN, sRB3, sCB = 53, 54, 55
sOA, sOB = 56, 57
sP = 58
sPART, sKVB, sF1S, sF2S, sF4S, sKVFS = 60, 61, 62, 63, 49, 3
sF1P, sH1L, sF2P, sHAL, sKVS, sF4P, sOUTO = 83, 84, 85, 86, 87, 88, 89
sF2M = 90
sWOF = 64
sOL = 72
sXO = 76
sTS = 96
sU0, sU1, sU2, sV0, sV1 = 92, 93, 94, 95, 81
vG, vL, vL16, vXD, vWDX, vWDY, vWRD = 0, 1, 2, 3, 4, 5, 6
vXR, vWPHI, vM = 8, 12, 16
vAPW, vAVW, vAPR, vAVR, vAGP, vAK8, vPO, vVO = 24, 25, 26, 27, 28, 29, 30, 31
vAVW2, vPO2, vWOD, vHOW = 24, 25, 26, 27
vNON = vAGP
vACC0, vACC1, vWF, vE, vX = 32, 48, 64, 96, 128
vAK, vAV, vAVI, vAV0, vKVO, vWA0, vWA1, vL128 = range(vACC1, vACC1 + 8)
vFP, vF4P, vHP = vACC1 + 8, vACC1 + 9, vACC1 + 10
vWRD2 = 124
SPIN_MAX = 200000

def gen(opts=None):
    o = dict(stamps=False, force_fallback=False, bud0=10, bud1=13, f1_it=16, h1_poll=20, h1_load=23, h1_wr=140, f2_it=23, f2chk=70, obk=5, poi_it=8, poi_it2=10,
             map24=False, kvl_blk=9, kv_blk=7, oal_blk=2, woa0=18, woa1=19, woa2=20, woa3=21, xpair=0, wopf=-1, wpf2=-1, wpf3=-1, f2pos=30, sched=4,
             npro=999, c2pos=150)
    o.update(opts or {})
    a = Asm(); side = Side(a)
    nst = [0]; pend = []
    def stamp(name=""):
        if o.get("probe") == name: a("s_memrealtime s[100:101]\ns_waitcnt lgkmcnt(0)"); a.ni -= 2
        if not o["stamps"]: return
        if o.get("allit") and name != "first": return
        i = nst[0]; nst[0] += 1; assert i < 24
        a(f"s_memtime s[{sTS}:{sTS+1}]\ns_waitcnt lgkmcnt(0)\nv_writelane_b32 v7, s{sTS}, {i}"); a.ni -= 3
        o.setdefault("_names", []).append(name)
    def stamp_a(name):
        if o.get("probe") == name: a("s_memrealtime s[100:101]"); a.ni -= 1
        if not o["stamps"]: return
        i = nst[0]; nst[0] += 1; assert i < 24
        a(f"s_memtime s[{sTS}:{sTS+1}]"); a.ni -= 1; pend.append(i); o.setdefault("_names", []).append(name)
    def stamp_b():
        if pend: a(f"v_writelane_b32 v7, s{sTS}, {pend.pop()}"); a.ni -= 1
    def spinrec(i):
        if o["stamps"]: a(f"v_writelane_b32 v7, s{sSPIN}, {i}"); a.ni -= 1
    def srd(d, src, nbytes):
        a(f"s_mov_b32 s{d}, s{src}\ns_and_b32 s{d+1}, s{src+1}, 0xffff\ns_mov_b32 s{d+2}, {nbytes}\ns_mov_b32 s{d+3}, 0x20000")
    def only(cond):
        lab = a.label("Lskip"); a(cond); a(f"s_cbranch_scc0 {lab}"); return lab
    def setexec(lo, hi):
        if hi == 0 and lo <= 64: a(f"s_mov_b64 exec, {lo}")
        else: a(f"s_mov_b32 exec_lo, 0x{lo:x}\ns_mov_b32 exec_hi, 0x{hi:x}")
    WS = sr(sWS, 4)
    t0, t1, t2, t3, t4, t5, t6, t7, t8, t9 = range(vACC1, vACC1 + 10)

    a("s_cmp_ge_u32 s2, 256\ns_cbranch_scc1 L_exit")
    a("s_load_dwordx4 s[64:67], s[0:1], 0\ns_load_dwordx4 s[68:71], s[0:1], 16\ns_load_dwordx4 s[76:79], s[0:1], 56")
    a("s_load_dwordx4 s[72:75], s[0:1], 40\ns_load_dwordx2 s[80:81], s[0:1], 80")
    if o["stamps"]: a("v_mov_b32 v7, 0\ns_memrealtime s[98:99]\ns_memtime s[100:101]")
    if o.get("probe"): a("s_memrealtime s[98:99]\ns_memrealtime s[100:101]")
    a(f"v_lshrrev_b32 v{t0}, 6, v0\nv_and_b32 v{vL}, 63, v0")
    a(f"s_lshr_b32 s{sT0}, s2, 3\nv_readfirstlane_b32 s{sW}, v{t0}")
    a(f"s_getpc_b64 s[{sP}:{sP+1}]\nL_pc:")
    a(f"s_sub_u32 s{sOUT}, s{sP}, L_pc-{NAME}\ns_subb_u32 s{sOUT+1}, s{sP+1}, 0\ns_and_b32 s{sOUT+1}, s{sOUT+1}, 0xffff\ns_mov_b32 s{sOUT+2}, L_codeend-{NAME}\ns_mov_b32 s{sOUT+3}, 0x20000")
    lab = only(f"s_cmp_eq_u32 s{sW}, 7")
    a(f"v_and_b32 v{t3}, 3, v{vL}\nv_lshlrev_b32 v{t3}, 7, v{t3}\ns_lshl_b32 s{sT1}, s{sT0}, 9")
    a(f"buffer_load_dword v{vE+31}, v{t3}, {sr(sOUT,4)}, s{sT1} offen")
    a(f"{lab}:")
    if not o["map24"]:
        a(f"s_and_b32 s{sHG}, s2, 7\ns_mov_b32 s{sRB}, s{sT0}\ns_add_u32 s{sROT}, s{sRB}, s{sHG}")
    else:
        a(f"s_and_b32 s{sRB}, s2, 1\ns_lshl_b32 s{sRB}, s{sRB}, 4\ns_and_b32 s{sT1}, s{sT0}, 15\ns_add_u32 s{sRB}, s{sRB}, s{sT1}")
        a(f"s_and_b32 s{sHG}, s2, 6\ns_lshr_b32 s{sT1}, s{sT0}, 4\ns_add_u32 s{sHG}, s{sHG}, s{sT1}")
        a(f"s_lshl_b32 s{sROT}, s{sHG}, 2\ns_lshr_b32 s{sT1}, s{sHG}, 1\ns_add_u32 s{sROT}, s{sROT}, s{sT1}\ns_add_u32 s{sROT}, s{sROT}, s{sRB}")
    a(f"s_and_b32 s{sROT}, s{sROT}, 7\ns_lshl_b32 s{sW1K}, s{sW}, 10\nv_lshlrev_b32 v{vL16}, 4, v{vL}")
    a(f"v_lshrrev_b32 v{t0}, 3, v0\nv_and_b32 v{t1}, 7, v{vL}\nv_bfe_u32 v{t2}, v{vL}, 4, 1")
    a(f"v_bfe_u32 v{t3}, v{t0}, 1, 3\nv_xor_b32 v{t3}, v{t3}, v{t1}\nv_lshlrev_b32 v{t3}, 4, v{t3}")
    a(f"s_lshl_b32 s{sT1}, s{sRB}, 6\nv_add_u32 v{t4}, s{sT1}, v{t0}\nv_lshl_add_u32 v{vXD}, v{t4}, 10, v{t3}")
    a(f"v_lshlrev_b32 v{t3}, 1, v{t2}\nv_xor_b32 v{t3}, v{t3}, v{t1}\nv_lshlrev_b32 v{t3}, 4, v{t3}")
    a(f"v_mul_u32_u24 v{t4}, 3072, v{t0}\ns_lshl_b32 s{sT1}, s{sHG}, 7\nv_add3_u32 v{vWDX}, v{t4}, v{t3}, s{sT1}")
    a(f"v_xor_b32 v{vWDY}, 64, v{vWDX}\ns_mul_i32 s{sCH}, s{sROT}, {64*3072}")
    a(f"s_lshl_b32 s{sT2}, s{sROT}, 7\nv_add_u32 v{t5}, s{sT2}, v{vL16}\nv_and_b32 v{t5}, 1023, v{t5}")
    a("s_waitcnt lgkmcnt(0)")
    if o.get("probe") == "karg": stamp("karg")
    srd(sX, 64, 2097152); srd(sWA, 66, 1572864)
    passes = [((sWA, 1024), (sWA, 2048)), ((sWB, 1024), (sWB, 2048)), ((sWA, 0), (sWB, 0))]
    def dma_x_m0(n): a(f"s_add_u32 m0, s{sW1K}, {XB + n*8192}")
    def dma_x_ld(n):
        if n == 0: so = sT2
        elif n < 3: a(f"s_add_u32 s{sT0}, s{sROT}, {n}\ns_and_b32 s{sT0}, s{sT0}, 7\ns_lshl_b32 s{sT0}, s{sT0}, 7"); so = sT0
        else: so = sXO + n - 3
        a.vm(f"buffer_load_dwordx4 v{vXD}, {sr(sX,4)}, s{so} offen lds", ("x", n))
    def dma_m0(n, b):
        if b == "x": return dma_x_m0(n)
        off = passes[n // 8][b][1] if n < 24 else 0
        v = slot(n) + b*8192 - off
        a(f"s_add_u32 m0, s{sW1K}, {v if v >= 0 else v + off}")
    def dma_ld(n, b):
        if a.L[-1].strip().startswith("s_add_u32 m0"): a("s_nop 0")
        if b == "x": return dma_x_ld(n)
        if n < 24:
            p, i = divmod(n, 8); d, off = passes[p][b]
            if slot(n) + b*8192 - off >= 0:
                a.vm(f"buffer_load_dwordx4 v{vWDX if b == 0 else vWDY}, {sr(d,4)}, s{sCH+i} offen offset:{off} lds", ("w", n, b))
            else:
                a(f"s_add_u32 s{sT2}, s{sCH+i}, {off}")
                a.vm(f"buffer_load_dwordx4 v{vWDX if b == 0 else vWDY}, {sr(d,4)}, s{sT2} offen lds", ("w", n, b))
        else:
            a.vm(f"buffer_load_dwordx4 v{vWOD}, {sr(sWOA,4)}, s{sWOF+2*(n-24)+b} offen lds", ("w", n, b))
    def dma(n, b): dma_m0(n, b); dma_ld(n, b)
    dma(0, "x"); dma(0, 0); dma(0, 1)
    a("s_load_dword s82, s[80:81], 0")
    srd(sWOA, 68, 16384); srd(sWOB, 76, 1024)
    lab = only(f"s_cmp_lt_u32 s{sW}, 2")
    a(f"s_lshl_b32 s{sT0}, s{sHG}, 11\ns_add_u32 m0, s{sW1K}, {WPHI}\ns_add_u32 s{sT0}, s{sT0}, s{sW1K}")
    a(f"buffer_load_dwordx4 v{vL16}, {sr(sWOA,4)}, s{sT0} offen lds")
    a(f"{lab}:")
    lab = only(f"s_cmp_eq_u32 s{sW}, 2")
    a(f"s_mov_b32 m0, {GATEW}\ns_nop 0\nbuffer_load_dwordx4 v{t5}, {sr(sWOB,4)}, 0 offen lds")
    a(f"{lab}:")
    a.mark("misc")
    dma(1, "x")
    srd(sWB, 72, 1572864); srd(sWOA, 70, 524288); srd(sWOB, 74, 524288); srd(sWS, 80, WS_SIZE); srd(sOUT, 78, 2097152)
    a(f"s_and_b32 s{sRW}, s{sW}, 1\ns_lshr_b32 s{sH}, s{sW}, 1")
    for i in range(1, 8):
        a(f"s_add_u32 s{sCH+i}, s{sROT}, {i}\ns_and_b32 s{sCH+i}, s{sCH+i}, 7")
        if i >= 3: a(f"s_lshl_b32 s{sXO+i-3}, s{sCH+i}, 7")
        a(f"s_mul_i32 s{sCH+i}, s{sCH+i}, {64*3072}")
    a(f"s_lshr_b32 s{sT0}, s2, 3\ns_and_b32 s{sRB3}, s2, 7\ns_lshl_b32 s{sRB3}, s{sRB3}, 2\ns_lshr_b32 s{sT1}, s{sT0}, 3\ns_add_u32 s{sRB3}, s{sRB3}, s{sT1}\ns_and_b32 s{sCB}, s{sT0}, 7")
    Q4 = 240; O8 = 244
    a(f"v_lshlrev_b32 v{t3}, 2, v{t2}\nv_xor_b32 v{t3}, v{t3}, v{t1}\nv_lshlrev_b32 v{t3}, 4, v{t3}\nv_lshl_add_u32 v{t3}, v{t0}, 10, v{t3}")
    a(f"s_lshl_b32 s{sT0}, s{sCB}, 7\nv_add_u32 v{Q4+2}, s{sT0}, v{t3}")
    l32, half, row, g, r, c = t6, t7, t0, t2, t8, t9
    a(f"v_and_b32 v{l32}, 31, v{vL}\nv_lshrrev_b32 v{half}, 5, v{vL}\nv_bfe_u32 v{r}, v{vL}, 2, 2\nv_and_b32 v{c}, 3, v{vL}")
    a(f"s_lshl_b32 s{sT0}, s{sRW}, 5\nv_add_u32 v{row}, s{sT0}, v{l32}")
    a(f"v_bfe_u32 v{t1}, v{row}, 1, 3\nv_xor_b32 v{t1}, v{t1}, v{half}\nv_lshlrev_b32 v{t1}, 4, v{t1}\nv_lshl_add_u32 v{vXR}, v{row}, 7, v{t1}")
    for s in range(1, 4): a(f"v_xor_b32 v{vXR+s}, {s*32}, v{vXR}")
    vGACC, vGXF, vGF, vGX, vGA, vWPA, vSG = vE, vE+16, vE+20, vE+24, vE+25, vE+26, vE+27
    a(f"s_lshl_b32 s{sT0}, s{sH}, 5\nv_xor_b32 v{vGX}, s{sT0}, v{vXR}\ns_add_u32 s{sT0}, s{sT0}, {GATEW}\nv_lshl_add_u32 v{vGA}, v{half}, 4, s{sT0}")
    a(f"v_bfe_u32 v{t1}, v{vL}, 3, 1\nv_lshl_add_u32 v{t1}, v{t1}, 2, v{c}\nv_lshl_add_u32 v{vGA}, v{t1}, 7, v{vGA}")
    a(f"v_lshrrev_b32 v{t3}, 1, v{r}\nv_lshl_add_u32 v{t3}, v{g}, 1, v{t3}\nv_xor_b32 v{t3}, s{sH}, v{t3}\nv_lshlrev_b32 v{t3}, 5, v{t3}")
    a(f"v_lshl_add_u32 v{t5}, v{half}, 3, v{r}\nv_lshlrev_b32 v{t5}, 7, v{t5}\nv_lshl_add_u32 v{t5}, v{c}, 3, v{t5}\nv_add_u32 v{t3}, v{t3}, v{t5}")
    a(f"v_lshl_add_u32 v{vWRD2}, v{g}, 13, v{t3}\nv_add_u32 v{vWRD}, {RING}, v{vWRD2}")
    a(f"v_lshrrev_b32 v{t4}, 1, v{c}\nv_lshl_add_u32 v{t1}, v{half}, 2, v{r}\nv_lshlrev_b32 v{vWPA}, 5, v{t1}")
    a(f"v_lshl_add_u32 v{vWPA}, v{g}, 4, v{vWPA}\nv_lshl_add_u32 v{vWPA}, v{t4}, 3, v{vWPA}")
    a(f"s_lshl_b32 s{sT0}, s{sH}, 9\ns_add_u32 s{sT0}, s{sT0}, {WPHI}\nv_add_u32 v{vWPA}, s{sT0}, v{vWPA}")
    a(f"v_bfe_u32 v{vSG}, v{vL}, 2, 1\nv_mul_u32_u24 v{vSG}, 0x8000, v{vSG}\nv_lshl_or_b32 v{vSG}, v{vSG}, 16, v{vSG}")
    dma(1, 0); dma(1, 1)
    VL, SL = [], []
    V = lambda t_: VL.extend(t_.split('\n'))
    S = lambda t_: SL.extend(t_.split('\n'))
    lab = only(f"s_cmp_eq_u32 s{sW}, 3")
    for i in range(4): a(f"v_mov_b32 v{vE+i}, 0x3f803f80")
    a(f"v_add_u32 v{vE+4}, {ONES}, v{vL16}\nds_write_b128 v{vE+4}, {vr(vE,4)}")
    a(f"{lab}:")
    V(f"v_and_b32 v{t3}, 2, v{r}\nv_xor_b32 v{t3}, v{t3}, v{g}\nv_lshl_add_u32 v{t3}, v{t3}, 5, v{t5}")
    V(f"s_sub_u32 s{sV0}, s{sH}, s{sRB3}\ns_and_b32 s{sV0}, s{sV0}, 3\ns_lshl_b32 s{sV0}, s{sV0}, 14\ns_add_u32 s{sV0}, s{sV0}, {RING}\nv_add_u32 v{O8+5}, s{sV0}, v{t3}\nv_xor_b32 v{O8+6}, 64, v{O8+5}")
    V(f"s_lshl_b32 s{sV0}, s{sH}, 8\ns_add_u32 s{sV0}, s{sV0}, {GP}\nv_lshl_add_u32 v{vAGP}, v{row}, 2, s{sV0}")
    V(f"s_mul_i32 s{sV0}, s{sW}, {SCRW}\ns_add_u32 s{sV0}, s{sV0}, {SCR}\nv_add_u32 v{vAPW}, s{sV0}, v{vL16}\nv_lshl_add_u32 v{vAVW}, v{half}, 6, v{vAPW}")
    V(f"v_lshrrev_b32 v{t1}, 4, v{vL}\nv_lshl_add_u32 v{t5}, v{t1}, 3, v{r}\nv_and_b32 v{c}, 1, v{c}\nv_lshlrev_b32 v{c}, 3, v{c}")
    V(f"v_lshl_add_u32 v{t3}, v{t5}, 4, v{c}\ns_mul_i32 s{sV0}, s{sH}, {2*SCRW}\ns_add_u32 s{sV0}, s{sV0}, {SCR}\nv_add_u32 v{t3}, s{sV0}, v{t3}")
    V(f"v_mul_u32_u24 v{t5}, 576, v{t4}\nv_add_u32 v{vAVR}, v{t5}, v{t3}\nv_mul_u32_u24 v{t5}, 1088, v{t4}\ns_lshl_b32 s{sV0}, s{sRW}, 9\nv_add3_u32 v{vAPR}, v{t5}, v{t3}, s{sV0}")
    V(f"v_mul_u32_u24 v{t1}, {SSTR}, v{t1}\nv_and_b32 v{t3}, 15, v{vL}\nv_lshl_add_u32 v{vPO}, v{t3}, 4, v{t1}")
    V(f"v_lshlrev_b32 v{t1}, 6, v{half}\nv_xor_b32 v{vVO}, v{t1}, v{vL16}")
    V(f"s_lshl_b32 s{sV0}, s{sRW}, 13\ns_lshl_b32 s{sV1}, s{sH}, 11\ns_add_u32 s{sV0}, s{sV0}, s{sV1}\nv_add_u32 v{O8}, s{sV0}, v{vL16}\nv_add_u32 v{vAK8}, {OWN}, v{O8}\nv_xor_b32 v{Q4}, v{t1}, v{vAK8}")
    V(f"s_lshl_b32 s{sHAL}, s{sHG}, 19\ns_lshl_b32 s{sV1}, s{sRB}, 14\ns_add_u32 s{sHAL}, s{sHAL}, s{sV1}\ns_add_u32 s{sHAL}, s{sHAL}, {WS_KVB}\ns_add_u32 s{sKVB}, s{sHAL}, s{sV0}\ns_add_u32 s{sHAL}, s{sHAL}, s{sW1K}")
    V(f"v_xor_b32 v{t1}, v{half}, v{t4}\nv_lshl_add_u32 v{t1}, v{t1}, 2, v{r}\nv_lshl_add_u32 v{t1}, v{t1}, 4, v{c}\nv_lshl_add_u32 v{t1}, v{t4}, 9, v{t1}")
    V(f"s_add_u32 s{sV0}, s{sV0}, 1024\nv_add_u32 v{t1}, s{sV0}, v{t1}\nv_cmp_eq_u32 {sr(sP,2)}, 1, v{g}\nv_mov_b32 v{t3}, {ONES+128}\nv_mov_b32 v{t5}, 8192")
    V(f"v_lshlrev_b32 v{O8+7}, 7, v{vL}\nv_cndmask_b32 v{O8+3}, v{t1}, v{t3}, {sr(sP,2)}\nv_cndmask_b32 v{O8+2}, v{t5}, 0, {sr(sP,2)}\nv_lshl_add_u32 v{O8+1}, v{O8+2}, 3, v{O8+3}")
    V(f"v_min_u32 v{t1}, 16, v{l32}\nv_lshlrev_b32 v{t3}, 3, v{t1}\nv_lshl_add_u32 v{O8+4}, v{half}, 10, v{t3}\nv_mul_u32_u24 v{t3}, {PSTR}, v{half}\nv_lshl_add_u32 v{Q4+1}, v{t1}, 4, v{t3}")
    V(f"s_add_u32 s{sV0}, s{sW1K}, {H1S}\nv_add_u32 v{Q4+3}, s{sV0}, v{vL16}\nv_mov_b32 v{vE+29}, v{Q4+3}")
    V(f"ds_write_b128 v{Q4+3}, {vr(Q4,4)}\nds_write_b128 v{vAK8}, {vr(O8,4)}\nds_write_b128 v{vAK8}, {vr(O8+4,4)} offset:1024\ns_waitcnt lgkmcnt(5)")
    vPK4 = vE + 29
    V(f"v_lshlrev_b32 v{t1}, 2, v{half}\nv_sub_u32 v{t1}, v{l32}, v{t1}\nv_mov_b32 v{t3}, 0xffff")
    for i in range(8):
        k0 = 8*(i//2) + 2*(i % 2)
        V(f"v_cmp_le_i32 {sr(sP,2)}, {k0}, v{t1}\nv_cmp_lt_i32 vcc, {k0}, v{t1}\ns_nop 0\nv_cndmask_b32 v{vM+i}, 0, v{t3}, {sr(sP,2)}\nv_cndmask_b32_e64 v{vM+i}, v{vM+i}, -1, vcc")
    S(f"s_lshl_b32 s{sQB}, s{sRB}, 1\ns_add_u32 s{sQB}, s{sQB}, s{sRW}")
    S(f"s_lshl_b32 s{sU2}, s{sHG}, 5\ns_lshl_b32 s{sU1}, s{sW}, 2\ns_add_u32 s{sU1}, s{sU1}, s{sU2}")
    S(f"s_lshl_b32 s{sF1P}, s{sU1}, 7\ns_add_u32 s{sF1P}, s{sF1P}, {WS_F1}")
    S(f"s_mul_i32 s{sPART}, s{sU1}, {SSTR}\ns_mul_i32 s{sU1}, s{sRB}, {PSTR}\ns_add_u32 s{sPART}, s{sPART}, s{sU1}\ns_add_u32 s{sPART}, s{sPART}, {WS_PART}")
    S(f"s_add_u32 s{sU1}, s{sU2}, s{sRB}")
    S(f"s_mul_i32 s{sH1L}, s{sU1}, {SSTR}\ns_mul_i32 s{sU0}, s{sW}, {4*PSTR}\ns_add_u32 s{sH1L}, s{sH1L}, s{sU0}\ns_add_u32 s{sH1L}, s{sH1L}, {WS_PART}")
    S(f"s_lshl_b32 s{sKVFS}, s{sU1}, 8\ns_add_u32 s{sKVFS}, s{sKVFS}, {WS_KVF}\ns_lshl_b32 s{sU1}, s{sU1}, 7\ns_add_u32 s{sF1S}, s{sU1}, {WS_F1}\ns_add_u32 s{sF2S}, s{sU1}, {WS_F2}\ns_sub_u32 s{sF2P}, s{sF2S}, 512")
    S(f"s_min_u32 s{sU0}, s{sRB}, 4\ns_sub_u32 s{sU0}, 4, s{sU0}\ns_lshl_b32 s{sF2M}, 31, s{sU0}\ns_and_b32 s{sF2M}, s{sF2M}, 31\ns_mov_b32 s{sF2M+1}, 0")
    S(f"s_lshl_b32 s{sU0}, s{sH}, 3\ns_add_u32 s{sU0}, s{sU0}, s{sU2}\ns_lshl_b32 s{sKVS}, s{sU0}, 8\ns_add_u32 s{sKVS}, s{sKVS}, {WS_KVF}")
    S(f"s_lshl_b32 s{sF4S}, s{sRB}, 3\ns_add_u32 s{sF4S}, s{sF4S}, s{sHG}\ns_lshl_b32 s{sF4S}, s{sF4S}, 7\ns_add_u32 s{sF4S}, s{sF4S}, {WS_F4}")
    S(f"s_lshl_b32 s{sF4P}, s{sRB3}, 10\ns_lshl_b32 s{sU0}, s{sH}, 8\ns_add_u32 s{sF4P}, s{sF4P}, s{sU0}\ns_add_u32 s{sF4P}, s{sF4P}, {WS_F4}")
    S(f"s_lshl_b32 s{sU2}, s{sRW}, 15\ns_add_u32 s{sU2}, s{sU2}, {WS_O}")
    S(f"s_lshl_b32 s{sOA}, s{sRB}, 17\ns_add_u32 s{sOA}, s{sOA}, s{sU2}\ns_lshl_b32 s{sU1}, s{sHG}, 2\ns_add_u32 s{sU1}, s{sU1}, s{sH}\ns_lshl_b32 s{sU1}, s{sU1}, 10\ns_add_u32 s{sOA}, s{sOA}, s{sU1}\ns_add_u32 s{sOB}, s{sOA}, 65536")
    S(f"s_lshl_b32 s{sOL}, s{sRB3}, 17\ns_add_u32 s{sOL}, s{sOL}, s{sU2}\ns_lshl_b32 s{sU1}, s{sH}, 13\ns_add_u32 s{sOL}, s{sOL}, s{sU1}")
    S(f"s_add_u32 s{sOL+1}, s{sOL}, 4096\ns_add_u32 s{sOL+2}, s{sOL}, 65536\ns_add_u32 s{sOL+3}, s{sOL}, {65536+4096}")
    S(f"s_lshl_b32 s{sOUTO}, s{sRB3}, 16\ns_lshl_b32 s{sU1}, s{sCB}, 7\ns_add_u32 s{sOUTO}, s{sOUTO}, s{sU1}")
    for i in range(4):
        S(f"s_add_u32 s{sWOF+2*i}, s{sRB3}, {i}\ns_and_b32 s{sWOF+2*i}, s{sWOF+2*i}, 3\ns_lshl_b32 s{sWOF+2*i}, s{sWOF+2*i}, 17\ns_add_u32 s{sWOF+2*i+1}, s{sWOF+2*i}, 65536")
    def prewrite():
        a(f"s_add_u32 s{sU0}, s{sKVFS}, 128\ns_cmp_eq_u32 s{sW}, 3\ns_cselect_b32 s{sU0}, s{sKVFS}, s{sU0}\ns_cmp_eq_u32 s{sW}, 2\ns_cselect_b32 s{sU0}, s{sF4S}, s{sU0}")
        a(f"s_cmp_eq_u32 s{sW}, 1\ns_cselect_b32 s{sU0}, s{sF2S}, s{sU0}\ns_cmp_eq_u32 s{sW}, 0\ns_cselect_b32 s{sU0}, s{sF1S}, s{sU0}")
        for i in range(4): a(f"v_mov_b32 v{252+i}, -1")
        setexec(0xff, 0)
        a.vm(f"buffer_store_dwordx4 {vr(252,4)}, v{vL16}, {WS}, s{sU0} offen sc1", "rec"); a("s_mov_b64 exec, -1")
    Z = []
    while VL or SL:
        if VL: Z.append(VL.pop(0))
        if SL and not (Z and Z[-1].startswith("s_") and VL): Z.append(SL.pop(0))
    npro = o["npro"]
    for k_, ln in enumerate(Z[:npro]):
        a(ln)
        if k_ == o["c2pos"]: dma(2, "x"); dma(2, 0); dma(2, 1)
    Z = Z[npro:]
    pre_done = not Z
    if pre_done: prewrite()

    def wprefetch(which):
        nrow = 32 if o["map24"] else 16; per = nrow // 8
        p3 = vE + 30
        a(f"s_and_b32 s{sT0}, s{sRB}, {512//nrow-1}\ns_lshl_b32 s{sT0}, s{sT0}, 3\ns_add_u32 s{sT0}, s{sT0}, s{sW}\ns_mul_i32 s{sT0}, s{sT0}, {per*3072}\ns_lshl_b32 s{sT1}, s{sHG}, 7\ns_add_u32 s{sT0}, s{sT0}, s{sT1}")
        a(f"v_mul_u32_u24 v{p3}, 3072, v{vL}\ns_mov_b64 exec, {(1 << per) - 1}")
        for wh in which:
            for d_, off in passes[wh - 1]: a.vm(f"buffer_load_dword v{vE+31}, v{p3}, {sr(d_,4)}, s{sT0} offen offset:{off}")
        a("s_mov_b64 exec, -1")
    def woprefetch():
        a(f"v_lshlrev_b32 v{vE+30}, 7, v{vL}\ns_lshl_b32 s{sT0}, s2, 11\ns_lshr_b32 s{sT1}, s{sW1K}, 2\ns_add_u32 s{sT0}, s{sT0}, s{sT1}\ns_mov_b64 exec, 3")
        a.vm(f"buffer_load_dword v{vE+31}, v{vE+30}, {sr(sWOA,4)}, s{sT0} offen"); a.vm(f"buffer_load_dword v{vE+31}, v{vE+30}, {sr(sWOB,4)}, s{sT0} offen")
        a("s_mov_b64 exec, -1")
    def rd_w(n, s, t):
        ad_, of_ = (vWRD, slot(n) - RING) if slot(n) >= RING else (vWRD2, slot(n))
        return f"ds_read_b64_tr_b16 {vr(vWF + (n%2)*16 + s*4 + t*2, 2)}, v{ad_} offset:{of_ + (16*s+4*t)*128}"
    def rd_x(n, s): return f"ds_read_b128 {vr(vX + n*16 + s*4, 4)}, v{vXR+s} offset:{XB + n*8192}"
    def rd_g(n): return f"ds_read_b128 {vr(vGXF,4)}, v{vGX} offset:{XB + n*8192}" + (f"\nds_read_b128 {vr(vGF,4)}, v{vGA}" if n == 0 else "")
    def flag(*soffs):
        n0 = a.ni
        lab = only(f"s_cmp_eq_u32 s{sW}, 1")
        a("s_mov_b64 exec, 1")
        for soff in soffs: a(f"buffer_store_dword v{vNON}, v{vL16}, {WS}, s{soff} offen sc1")
        a(f"s_mov_b64 exec, -1\n{lab}:")
        a.ni = n0 + 2
    def poll_issue(dst, soff, mask, tag):
        a(f"s_mov_b64 exec, {mask}"); a.vm(f"buffer_load_dword v{dst}, v{vL128}, {WS}, s{soff} offen sc1", tag); a("s_mov_b64 exec, -1")
    stubs = []
    def poll_check(dst, soff, mask, tag, rec=None):
        lp, ld = a.label("Lpoll"), a.label("Lpd")
        if o["stamps"]: a(f"s_mov_b32 s{sSPIN}, 0"); a.ni -= 1
        a(f"s_mov_b64 exec, {mask}\ns_waitcnt vmcnt({a.cnt_after(tag)})\nv_cmp_ne_u32 vcc, v{vNON}, v{dst}\ns_cbranch_vccnz {lp}\n{ld}:\ns_mov_b64 exec, -1")
        stubs.append(f"{lp}:\ns_mov_b32 s{sSPIN}, 0\n{lp}b:\nbuffer_load_dword v{dst}, v{vL128}, {WS}, s{soff} offen sc1\ns_add_u32 s{sSPIN}, s{sSPIN}, 1\n"
                     f"s_cmp_gt_u32 s{sSPIN}, {SPIN_MAX}\ns_waitcnt vmcnt(0)\ns_cbranch_scc1 {ld}\nv_cmp_ne_u32 vcc, v{vNON}, v{dst}\ns_cbranch_vccnz {lp}b\ns_branch {ld}")
        if rec is not None: spinrec(rec)
    def softmax16(S, P, t, pk=True):
        L = [f"v_max3_f32 v{t+1+k}, v{S+3*k}, v{S+3*k+1}, v{S+3*k+2}" for k in range(5)]
        L += [f"v_mov_b32 v{t}, {f32(LOG2E)}", f"v_max3_f32 v{t+1}, v{t+1}, v{t+2}, v{S+15}", f"v_max3_f32 v{t+3}, v{t+3}, v{t+4}, v{t+5}",
              f"v_max_f32 v{t+1}, v{t+1}, v{t+3}", f"v_mul_f32 v{t+1}, v{t}, v{t+1}"]
        if pk:
            L += [f"v_pk_fma_f32 {vr(S+r_,2)}, {vr(S+r_,2)}, {vr(t,2)}, {vr(t,2)} op_sel:[0,0,1] op_sel_hi:[1,0,1] neg_lo:[0,0,1] neg_hi:[0,0,1]" for r_ in range(0, 16, 2)]
            for r_ in range(16):
                L.append(f"v_exp_f32 v{S+r_}, v{S+r_}")
                if r_ == 4: L.append(f"v_pk_add_f32 {vr(t,2)}, {vr(S,2)}, {vr(S+2,2)}")
                if r_ > 4 and r_ % 2 == 0: L.append(f"v_pk_add_f32 {vr(t,2)}, {vr(t,2)}, {vr(S+r_-2,2)}")
            L += ["s_nop 0", f"v_pk_add_f32 {vr(t,2)}, {vr(t,2)}, {vr(S+14,2)}", f"v_add_f32 v{t}, v{t}, v{t+1}", f"v_rcp_f32 v{t}, v{t}", "s_nop 0"]
            L += [f"v_pk_mul_f32 {vr(S+r_,2)}, {vr(S+r_,2)}, {vr(t,2)} op_sel_hi:[1,0]" for r_ in range(0, 16, 2)]
        else:
            L += [f"v_fma_f32 v{S+r_}, v{S+r_}, v{t}, -v{t+1}" for r_ in range(16)]
            for r_ in range(16):
                L.append(f"v_exp_f32 v{S+r_}, v{S+r_}")
                if r_ == 2: L.append(f"v_add_f32 v{t}, v{S}, v{S+1}")
                if r_ > 2: L.append(f"v_add_f32 v{t}, v{t}, v{S+r_-1}")
            L += [f"v_add_f32 v{t}, v{t}, v{S+15}", f"v_rcp_f32 v{t}, v{t}", "s_nop 0"]
            L += [f"v_mul_f32 v{S+r_}, v{S+r_}, v{t}" for r_ in range(16)]
        L += [f"v_cvt_pk_bf16_f32 v{P+i}, v{S+2*i}, v{S+2*i+1}" for i in range(8)]
        return L

    def q_epi1():
        acc = vACC0; S = vE
        side.add(f"v_add_f32 v{vGA}, v{vGA}, v{vGACC+7}\nds_write_b32 v{vAGP}, v{vGA}\nv_and_b32 v{vAGP}, 0xfffffcff, v{vAGP}")
        side.dist("p0end", 12)
        for i in range(6): side.add(f"v_cvt_pk_bf16_f32 v{acc+i}, v{acc+2*i}, v{acc+2*i+1}")
        side.add(f"{MF} {vr(S,16)}, {vr(vWPHI,4)}, {vr(acc,4)}, 0"); side.note("pk")
        for i in range(6, 8): side.add(f"v_cvt_pk_bf16_f32 v{acc+i}, v{acc+2*i}, v{acc+2*i+1}")
        side.add(f"ds_write_b128 v{vAVW}, {vr(acc+4,4)} offset:2176")
        for i in range(4): side.add(f"v_mov_b32 v{acc+12+i}, 0x3f803f80")
        side.dist("pk", 12)
        sl = softmax16(S, S, vE+16, False)
        sl = sl[:-4] + [f"ds_write_b128 v{vAPW}, {vr(S,4)}"] + sl[-4:] + [f"ds_write_b128 v{vAPW}, {vr(S+4,4)} offset:1088"]
        for ln in sl: side.add(ln)
        side.sync()
        for m_ in range(2):
            for t in range(2):
                side.add(f"ds_read_b64_tr_b16 {vr(vE+8*m_+t*2,2)}, v{vAPR} offset:{m_*SCRW + 64*t}")
                side.add(f"ds_read_b64_tr_b16 {vr(vE+8*m_+4+t*2,2)}, v{vAVR} offset:{m_*SCRW + 2176 + 64*t}")
            if m_ == 0: side.block(lambda: None, 100); side.block(lambda: a("s_waitcnt lgkmcnt(8)"), 0)
        side.add(f"ds_read2_b32 {vr(vXR,2)}, v{vAGP} offset0:0 offset1:64\nds_read2_b32 {vr(vXR+2,2)}, v{vAGP} offset0:128 offset1:192")
        side.add(f"ds_read_b128 {vr(vAVW2,4)}, v{vPK4}\nv_mov_b32 v{vNON}, s{sNON}")
        side.sync()
        side.add(f"{MF16} {vr(acc,4)}, {vr(vE,4)}, {vr(vE+4,4)}, 0\n{MF16} {vr(acc+4,4)}, {vr(vE,4)}, {vr(acc+12,4)}, 0")
        side.add(f"{MF16} {vr(acc,4)}, {vr(vE+8,4)}, {vr(vE+12,4)}, {vr(acc,4)}\n{MF16} {vr(acc+4,4)}, {vr(vE+8,4)}, {vr(acc+12,4)}, {vr(acc+4,4)}")
        side.dist("kvm", 8)
        def b_store():
            a.vm(f"buffer_store_dwordx4 {vr(acc,4)}, v{vPO}, {WS}, s{sPART} offen sc1", "part0")
            setexec(0x000f000f, 0x000f000f)
            a.vm(f"buffer_store_dwordx4 {vr(acc+4,4)}, v{vPO}, {WS}, s{sPART} offen offset:256 sc1", "part")
            a("s_mov_b64 exec, -1")
        side.block(b_store, 100)
        side.sync()
        side.add(f"v_add_f32 v{vXR}, v{vXR}, v{vXR+1}\nv_add_f32 v{vXR+2}, v{vXR+2}, v{vXR+3}\nv_add_f32 v{vXR}, v{vXR}, v{vXR+2}")
        side.add(f"v_mul_f32 v{vXR}, {f32(-LOG2E)}, v{vXR}\nv_exp_f32 v{vXR}, v{vXR}\ns_nop 0\nv_add_f32 v{vXR}, 1.0, v{vXR}\nv_rcp_f32 v{vG}, v{vXR}")
    def q_epi2():
        acc = vACC1; kf = vE + 4
        side.dist("p1end", 12)
        for i in range(4): side.add(f"v_cvt_pk_bf16_f32 v{kf+i}, v{acc+2*i}, v{acc+2*i+1}")
        side.block(lambda: a.vm(f"buffer_store_dwordx4 {vr(kf,4)}, v{vL16}, {WS}, s{sKVB} offen sc1", "kvb0"), 0)
        side.add(f"ds_read_b128 {vr(acc,4)}, v{vAK8}\nds_read_b128 {vr(acc+4,4)}, v{vAK8} offset:1024")
        for i in range(4, 8): side.add(f"v_cvt_pk_bf16_f32 v{kf+i}, v{acc+2*i}, v{acc+2*i+1}")
        side.block(lambda: a.vm(f"buffer_store_dwordx4 {vr(kf+4,4)}, v{vVO}, {WS}, s{sKVB} offen offset:1024 sc1", "kvb"), 0)
        side.sync()
        side.add(f"ds_write_b128 v{vAK8}, {vr(kf,4)}\nds_write_b128 v{vAVW2}, {vr(kf+4,4)} offset:1024")
    vHD = 88 if o['h1_load'] >= 100 else 176
    def h1load():
        poll_check(vHP, sF1P, 15, "h1p", rec=26)
        for i in range(2): a.vm(f"buffer_load_dwordx4 {vr(vHD+4*i,4)}, v{vPO2}, {WS}, s{sH1L} offen offset:{i*2*PSTR} sc1", "h1l")
    def h1write():
        a(f"s_waitcnt vmcnt({a.cnt_after('h1l')})")
        for j in range(4): a(f"v_add_f32 v{vHD+j}, v{vHD+j}, v{vHD+4+j}")
        a(f"ds_write_b128 v{vHOW}, {vr(vHD,4)}")
    def h1fin():
        vX = 208
        n0 = a.ni
        lab = only(f"s_cmp_eq_u32 s{sW}, 0")
        for i in range(8): a(f"ds_read_b128 {vr(vX+4*i,4)}, v{vHOW} offset:{i*1024}")
        a(f"v_lshlrev_b32 v{vE+28}, 3, v{vL}\ns_waitcnt lgkmcnt(0)")
        for st in (16, 8, 4):
            for j in range(0, st, 2): a(f"v_pk_add_f32 {vr(vX+j,2)}, {vr(vX+j,2)}, {vr(vX+st+j,2)}")
        for j in range(4): a(f"v_mov_b32 v{vX+4+j}, v{vX+j}")
        a("s_nop 0")
        for j in range(4): a(f"v_permlane32_swap_b32 v{vX+j}, v{vX+4+j}")
        a("s_nop 0")
        a(f"v_pk_add_f32 {vr(vX,2)}, {vr(vX,2)}, {vr(vX+4,2)}\nv_pk_add_f32 {vr(vX+2,2)}, {vr(vX+2,2)}, {vr(vX+6,2)}")
        a(f"v_cvt_pk_bf16_f32 v{vX+10}, v{vX}, v{vX+1}\nv_cvt_pk_bf16_f32 v{vX+11}, v{vX+2}, v{vX+3}")
        setexec(0xffffff, 0)
        a(f"buffer_store_dwordx2 {vr(vX+10,2)}, v{vE+28}, {WS}, s{sKVFS} offen sc1\ns_mov_b64 exec, -1")
        a(f"{lab}:"); a.ni = n0 + 2

    wh_ = [w_ for w_ in (2, 3) if o[f"wpf{w_}"] == -2]
    if wh_: wprefetch(wh_)
    if o["wopf"] == -2: woprefetch()
    stamp("pre")
    a(f"s_waitcnt vmcnt({a.cnt_after('misc')}) lgkmcnt(0)\ns_barrier")
    stamp("first")
    for s in range(4): a(rd_w(0, s, 0)); a(rd_w(0, s, 1))
    c2late = ("w", 2, 1) not in a.q
    if c2late: dma(2, "x")
    for s in range(4): a(rd_x(0, s))
    a(rd_g(0))
    if c2late: dma(2, 0); dma(2, 1)
    if o.get("sched") == 4:
        order = {5: [8, 9], 6: [10, 11], 7: [12, 13], 8: [14], 9: [15], 10: [16], 11: [17], 12: [18], 13: [19, 20], 14: [21, 22], 15: [23]}
    if o.get("sched") == 5:
        order = {5: [8], 6: [9, 10], 7: [11], 8: [12, 13], 9: [14, 15], 10: [16], 11: [17], 12: [18], 13: [19, 20], 14: [21, 22], 15: [23]}
    if o.get("sched") == 3: dma(3, "x"); dma(3, 0); dma(3, 1)
    a(f"s_mul_i32 s{sNON}, s82, 0x9E3779B1\ns_add_u32 s{sNON}, s{sNON}, 0x7F4A7C15\ns_cmp_eq_u32 s{sNON}, -1\ns_cselect_b32 s{sNON}, 0x2545F491, s{sNON}")
    a("s_waitcnt lgkmcnt(8)")
    a(f"ds_read_b64_tr_b16 {vr(vWPHI,2)}, v{vWPA}\nds_read_b64_tr_b16 {vr(vWPHI+2,2)}, v{vWPA} offset:256")
    side.sync()
    for ln in Z: side.add(ln)
    if not pre_done: side.block(prewrite, 8)
    for i in range(4): side.add(f"v_xor_b32 v{vWPHI+i}, v{vWPHI+i}, v{vSG}")
    W2 = lambda c_: [(c_, 0), (c_, 1)]
    sched = {n: [(n+3, "x")] + W2(n+3) for n in range(5)}
    if o["xpair"]:
        sched = {0: [(3, "x"), (4, "x")] + W2(3), 1: W2(4), 2: [(5, "x"), (6, "x"), (7, "x")] + W2(5), 3: W2(6), 4: W2(7)}
    order = {5: [8], 6: [9], 7: [10], 8: [11, 12], 9: [13, 14], 10: [15, 16], 11: [17], 12: [18], 13: [19, 20], 14: [21], 15: [22], 16: [], 17: [23]}
    if o.get("sched") == 1: order = {5: [8, 9], 6: [10], 7: [11], 8: [12, 13], 9: [14, 15], 10: [16], 11: [17], 12: [18], 13: [19], 14: [20], 15: [21], 17: [22], 18: [23]}
    if o.get("sched") == 2: order = {5: [8], 6: [9], 7: [10], 8: [11, 12], 9: [13, 14], 10: [15, 16], 11: [17], 12: [18], 13: [19, 20], 14: [21, 22], 15: [23]}
    if o.get("sched") == 4:
        order = {5: [8, 9], 6: [10, 11], 7: [12, 13], 8: [14], 9: [15], 10: [16], 11: [17], 12: [18], 13: [19, 20], 14: [21, 22], 15: [23]}
    if o.get("sched") == 5:
        order = {5: [8], 6: [9, 10], 7: [11], 8: [12, 13], 9: [14, 15], 10: [16], 11: [17], 12: [18], 13: [19, 20], 14: [21, 22], 15: [23]}
    if o.get("sched") == 3:
        sched = {n: [(n+4, "x")] + W2(n+4) for n in range(4)}
        order = {4: [8, 9], 5: [10, 11], 6: [12], 7: [13], 8: [14], 9: [15], 10: [16], 11: [17], 12: [18], 13: [19, 20], 14: [21, 22], 15: [23]}
    for n_, cs in order.items():
        sched[n_] = [d_ for c_ in cs for d_ in W2(c_)]
        for c_ in cs:
            prev = [m_ for m_ in range(c_) if slot(m_) == slot(c_)]
            assert not prev or prev[-1] <= n_, (c_, n_)
            assert n_ < c_ - 1
    woa_its = [o["woa0"], o["woa1"], o["woa2"], o["woa3"]]
    for k_, it_ in enumerate(woa_its):
        assert it_ >= 16 + k_
        if it_ < 24: sched.setdefault(it_, []).extend(W2(24 + k_))
    for n in range(24):
        p, i = divmod(n, 8)
        a.c(f"---- iteration {n}")
        w = a.cnt_after(("w", n+1, 1)) if n < 23 else 63
        if n < 7: w = min(w, a.cnt_after(("x", n+1)))
        if n == o["f2_it"]: w = min(w, a.cnt_after("kvb"))
        if n == o["f1_it"]: w = min(w, a.cnt_after("part"))
        a(f"s_waitcnt vmcnt({w}) lgkmcnt(0)" if w < 63 else "s_waitcnt lgkmcnt(0)")
        a("s_barrier")
        stamp_b()
        side.barrier_passed()
        if n == 6: assert "rec" in a.q
        if n == 14: assert "part" in a.q
        if n == 8: assert not side.u; q_epi1()
        if n == 16: assert not side.u, side.u; q_epi2()
        acc = vACC0 if p != 1 else vACC1
        def M(s):
            cc = "0" if (i == 0 and s == 0) else vr(acc, 16)
            a(f"{MF} {vr(acc,16)}, {vr(vWF+(n%2)*16+s*4,4)}, {vr(vX+i*16+s*4,4)}, {cc}")
        nx = n + 1
        dl = list(sched.get(n, []))
        def D(pos, npos):
            tot = len(sched.get(n, []))
            k0, k1 = -(-tot * pos // npos), -(-tot * (pos + 1) // npos)
            for _ in range(k1 - k0): dma(*dl.pop(0))
        if p == 0:
            if i == 1: a(f"v_mov_b32 v{vGA}, v{vGACC}")
            if i > 1: a(f"v_add_f32 v{vGA}, v{vGA}, v{vGACC+i-1}")
            a(f"{MF} {vr(vGACC,16)}, {vr(vGF,4)}, {vr(vGXF,4)}, 0")
            if nx < 8:
                for s in range(3): a(rd_x(nx, s))
            D(0, 3)
            M(0)
            if nx < 8: a(rd_x(nx, 3)); a(rd_g(nx))
            if n == 7:
                for i_ in range(4): a(f"v_mov_b32 v{vXR+i_}, -1")
            wh_ = [w_ for w_ in (2, 3) if o[f"wpf{w_}"] == n]
            if wh_: wprefetch(wh_)
            if n == o["wopf"]: woprefetch()
            side.slot(o["bud0"])
            M(1)
            for s in range(2): a(rd_w(nx, s, 0)); a(rd_w(nx, s, 1))
            D(1, 3)
            M(2)
            for s in range(2, 4): a(rd_w(nx, s, 0)); a(rd_w(nx, s, 1))
            side.slot(o["bud0"])
            D(2, 3)
            M(3)
            if n == 7: side.pos["p0end"] = a.ni
        else:
            B = o["bud1"] if p == 1 else 12
            M(0)
            if n == o["f2_it"]: flag(sF2S)
            if n == o["f1_it"]: flag(sF1S, sF4S)
            if n == o["h1_poll"]: poll_issue(vHP, sF1P, 15, "h1p")
            if n == o["f2pos"] + 24: poll_issue(vFP, sF2P, sr(sF2M,2), "f2p")
            if nx < 24:
                for s in range(2): a(rd_w(nx, s, 0)); a(rd_w(nx, s, 1))
            if n == o["h1_load"]: h1load()
            if n == o["poi_it"]: a.vm(f"buffer_store_dwordx4 {vr(vXR,4)}, v{vL16}, {WS}, s{sOA} offen sc1", "poisonA")
            if n == o["poi_it2"]: a.vm(f"buffer_store_dwordx4 {vr(vXR,4)}, v{vL16}, {WS}, s{sOB} offen sc1", "poison")
            D(0, 4)
            side.slot(B)
            M(1)
            if nx < 24:
                for s in range(2, 4): a(rd_w(nx, s, 0)); a(rd_w(nx, s, 1))
            D(1, 4)
            side.slot(B)
            M(2)
            D(2, 4)
            if n == o["wpf3"]: wprefetch([3])
            if n == o["wopf"]: woprefetch()
            if n == o["h1_wr"]: h1write()
            side.slot(B)
            D(3, 4)
            M(3)
            if n == 15: side.pos["p1end"] = a.ni
        assert not dl
        if o.get("allit"):
            if n < 23: stamp_a(f"it{n}")
        elif n in (3, 7, 11, 15, 19): stamp_a(f"it{n}")
    assert not side.u, side.u
    nend = a.ni
    stamp("T3")
    vQ, vPHI, vKV = 8, 64, 72
    vSA, vSB, vO = 192, 208, 224
    vP, vKA, vKB = 240, 248, 252
    vVA, vVB = 80, 88
    vWO = 128
    vT = 30
    acc = vACC0; vPOI = acc + 4
    def rdK(dst, j): a(f"ds_read_b128 {vr(dst,4)}, v{vAK8}" if j == 8 else f"ds_read_b128 {vr(dst,4)}, v{vAK} offset:{j*8192}")
    def rdV(dst, ad_):
        for mf in range(2):
            for t in range(2): a(f"ds_read_b64_tr_b16 {vr(dst+4*mf+2*t,2)}, v{ad_} offset:{256*mf+128*t}")
    def qk(S, K, C="0"): a(f"{MF} {vr(S,16)}, {vr(K,4)}, {vr(vQ,4)}, {C}")
    def pv(V, P, first=False): a(f"{MF} {vr(vO,16)}, {vr(V,4)}, {vr(P,4)}, {'0' if first else vr(vO,16)}")
    def rdwo_list(dst, ads):
        return [f"ds_read_b64_tr_b16 {vr(dst + hd*8 + ct*4 + t*2, 2)}, v{ads[ct]} offset:{(16*hd+4*t)*128}"
                for hd in range(8) for ct in range(2) for t in range(2)]
    def kv_loads(tag="kvl"):
        for fq in range(4):
            ln = f"buffer_load_dwordx2 {vr(vKV+2*fq,2)}, v{vKVO}, {WS}, s{sKVS} offen offset:{fq*256} sc1"
            if tag: a.vm(ln, tag)
            else: yield ln
    if o["h1_wr"] <= 22: h1fin()
    rdK(vKA, 8); rdV(vVA, vAV)
    a(f"v_sub_u32 v{vAV}, v{vAV}, v{vAVI}\nv_mov_b32 v{vE+16}, {f32(0.25*LOG2E)}")
    for k_, it_ in enumerate(woa_its):
        if it_ >= 24: dma(24 + k_, 0); dma(24 + k_, 1)
    a.pad(nend, 12)
    for i in range(4): a(f"v_cvt_pk_bf16_f32 v{acc+i}, v{acc+2*i}, v{acc+2*i+1}")
    for r_ in range(8, 16, 2): a(f"v_pk_mul_f32 {vr(acc+r_,2)}, {vr(acc+r_,2)}, {vr(vE+16,2)} op_sel_hi:[1,0]")
    a(f"{MF} {vr(vE,16)}, {vr(vWPHI,4)}, {vr(acc,4)}, 0"); n0 = a.ni
    for i in range(4): a(f"v_cvt_pk_bf16_f32 v{vQ+i}, v{acc+8+2*i}, v{acc+8+2*i+1}")
    a("s_nop 0\ns_waitcnt lgkmcnt(0)"); qk(vSA, vKA)
    a.pad(n0, 12)
    fill = softmax16(vE, vPHI, vE+16)
    for r_ in range(16): fill.append(f"v_exp_f32 v{vSA+r_}, v{vSA+r_}")
    for i in range(8): fill.append(f"v_cvt_pk_bf16_f32 v{vP+i}, v{vSA+2*i}, v{vSA+2*i+1}")
    for i in range(8): fill.append(f"v_and_b32 v{vP+i}, v{vP+i}, v{vM+i}")
    for i in range(8): fill.append(f"v_not_b32 v{vM+i}, v{vM+i}")
    fill.append(f"{MF} {vr(vO,16)}, {vr(vVA,4)}, {vr(vP,4)}, 0"); fill.append(f"{MF} {vr(vO,16)}, {vr(vVA+4,4)}, {vr(vP+4,4)}, {vr(vO,16)}")
    hl = list(range(7, -1, -1))
    def halo():
        if not hl: return
        s = hl.pop(0)
        lab = only(f"s_cmp_ge_u32 s{sRB}, {4 - s//2}")
        a(f"s_add_u32 m0, s{sW1K}, {s*8192}\ns_sub_u32 s{sHAL}, s{sHAL}, 8192\nbuffer_load_dwordx4 v{vL16}, {WS}, s{sHAL} offen sc1 lds\n{lab}:")
    f2a, f2b, hb = o["f2pos"], o["f2chk"], o["h1_wr"] - 100
    wl = rdwo_list(vWO, (vWA0, vWA1)); nrd = 0
    for k_, ln in enumerate(fill):
        if k_ == o["h1_load"] - 100: h1load()
        if k_ == f2a: poll_issue(vFP, sF2P, sr(sF2M,2), "f2p")
        if k_ == hb: h1write(); a("s_waitcnt lgkmcnt(0)\ns_barrier"); stamp("Bm"); h1fin()
        if k_ == f2b:
            poll_check(vFP, sF2P, sr(sF2M,2), "f2p", rec=27)
            halo(); halo()
        a(ln)
        if k_ > f2b and (k_ - f2b) % 3 == 0: halo()
        if k_ >= hb and wl:
            a(wl.pop(0)); nrd += 1
            if nrd % 8 == 0: a("s_waitcnt lgkmcnt(6)")
    assert hb >= 0 and f2b >= hb
    if f2b >= len(fill): poll_check(vFP, sF2P, sr(sF2M,2), "f2p", rec=27)
    while hl: halo()
    a.mark("halo")
    while wl:
        a(wl.pop(0)); nrd += 1
        if nrd % 8 == 0: a("s_waitcnt lgkmcnt(6)")
    stamp("fill")
    if o["kvl_blk"] == 9: list(kv_loads())
    a(f"s_waitcnt vmcnt({a.cnt_after('halo')}) lgkmcnt(0)\ns_barrier")
    stamp("B1")
    rdK(vKA, 7); rdK(vKB, 6); rdV(vVB, vAV)
    if o["kvl_blk"] == 8: list(kv_loads())
    a("s_waitcnt lgkmcnt(5)")
    qk(vSB, vKA); n0 = a.ni
    def kv_check():
        lp, ld = a.label("Lkv"), a.label("Lkvd")
        k0 = vE + 24
        chk = f"v_max3_u32 v{k0}, v{vKV}, v{vKV+2}, v{vKV+4}\nv_max_u32 v{k0}, v{k0}, v{vKV+6}\nv_cmp_eq_u32 vcc, -1, v{k0}"
        if o["stamps"]: a(f"s_mov_b32 s{sSPIN}, 0")
        a(f"s_waitcnt vmcnt({a.cnt_after('kvl')})\n{chk}\ns_cbranch_vccnz {lp}\n{ld}:")
        stubs.append(f"{lp}:\ns_mov_b32 s{sSPIN}, 0\n{lp}b:\n" + "\n".join(kv_loads(None)) + f"\ns_add_u32 s{sSPIN}, s{sSPIN}, 1\ns_cmp_gt_u32 s{sSPIN}, {SPIN_MAX}\ns_waitcnt vmcnt(0)\ns_cbranch_scc1 {ld}\n{chk}\ns_cbranch_vccnz {lp}b\ns_branch {ld}")
        spinrec(28)
        a(f"{MF} {vr(vE,16)}, {vr(vKV,4)}, {vr(vPHI,4)}, 0\n{MF} {vr(vE,16)}, {vr(vKV+4,4)}, {vr(vPHI+4,4)}, {vr(vE,16)}")
    def oa_1(): a(f"v_add_f32 v{vE+24}, {f32(1e-6)}, v{vE+8}\nv_rcp_f32 v{vE+24}, v{vE+24}")
    def oa_2():
        a(f"v_mul_f32 v{vE+24}, v{vE+24}, v{vG}")
        for r2 in range(8): a(f"v_mul_f32 v{vE+r2}, v{vE+r2}, v{vE+24}")
        for i in range(4): a(f"v_cvt_pk_bf16_f32 v{vE+16+i}, v{vE+2*i}, v{vE+2*i+1}")
    def oa_3():
        a.vm(f"buffer_store_dwordx4 {vr(vE+16,4)}, v{vL16}, {WS}, s{sOA} offen sc1", "oa")
    dm = [(k_, b) for k_ in range(4) for b in range(2)]
    def dma_wob():
        if dm:
            k_, b = dm.pop(0)
            a(f"s_add_u32 m0, s{sW1K}, {RING + k_*16384 + b*8192}\ns_nop 0")
            a.vm(f"buffer_load_dwordx4 v{vWOD}, {sr(sWOB,4)}, s{sWOF+2*k_+b} offen lds", "wob")
    vOFA, vOFB = 96, 64
    def ofr(k_): return (vOFA + 4*k_) if k_ < 8 else (vOFB + 4*(k_-8))
    def oload_ln(k_): return f"buffer_load_dwordx4 {vr(ofr(k_),4)}, v{vL16}, {WS}, s{sOL + k_//4} offen offset:{(k_%4)*1024} sc1"
    cur, nxt, vc, vn, kc, kn = vSB, vSA, vVB, vVA, vKB, vKA
    oal = list(range(8))
    wob0 = o.get("wob_blk", 7)
    for j in range(7, -1, -1):
        a.c(f"block {j}")
        a("s_waitcnt lgkmcnt(0)")
        if j in (6, 3): stamp(f"blk{j}")
        if j > 0:
            qk(nxt, kc)
            if j > 1: rdK(kn, j-2)
            a(f"v_sub_u32 v{vAV}, v{vAV}, v{vAVI}")
            rdV(vn, vAV)
        if j == 7: a.pad(n0, 12)
        if j == o["kvl_blk"]: list(kv_loads())
        if j == o["oal_blk"] + 1 or (j == 0 and o["oal_blk"] < 0): poll_issue(vF4P, sF4P, 3, "f4p")
        if j == o["oal_blk"]: poll_check(vF4P, sF4P, 3, "f4p", rec=25)
        def mem(k):
            if dm:
                if j <= wob0 and k % 2 == 0: dma_wob()
            elif j <= o["oal_blk"] and oal:
                k_ = oal.pop(0); a.vm(oload_ln(k_), ("ol", k_))
        if j == o["kv_blk"]: kv_check()
        valid = f"s_cmp_ge_u32 s{sQB}, {8-j}"
        for r_ in range(8):
            a(f"v_exp_f32 v{cur+r_}, v{cur+r_}")
            if r_ in (2, 6): mem(r_ // 4)
        for i in range(4): a(f"v_cvt_pk_bf16_f32 v{vP+i}, v{cur+2*i}, v{cur+2*i+1}")
        if j == 0:
            for i in range(4): a(f"v_and_b32 v{vP+i}, v{vP+i}, v{vM+i}")
        if j == o["kv_blk"]: oa_1()
        for r_ in range(8, 16):
            a(f"v_exp_f32 v{cur+r_}, v{cur+r_}")
            if r_ == 10:
                lab = only(valid); pv(vc, vP); a(f"{lab}:")
            if r_ == 9 and j == o["kv_blk"]:
                oa_2()
                oa_3()
            if r_ in (11, 15): mem(r_ // 4)
        for i in range(4, 8): a(f"v_cvt_pk_bf16_f32 v{vP+i}, v{cur+2*i}, v{cur+2*i+1}")
        if j == 0:
            for i in range(4, 8): a(f"v_and_b32 v{vP+i}, v{vP+i}, v{vM+i}")
        lab = only(valid); pv(vc+4, vP+4); a(f"{lab}:")
        cur, nxt = nxt, cur; vc, vn = vn, vc; kc, kn = kn, kc
    assert not dm
    a(f"v_sub_f32 v{vT+1}, 1.0, v{vG}\nv_mov_b32 v12, v{vWA0}\nv_mov_b32 v13, v{vWA1}\ns_nop 8")
    a(f"v_cmp_lt_f32 vcc, {f32(2.0**-64)}, v{vO+8}\nv_rcp_f32 v{vT}, v{vO+8}\ns_mov_b64 {sr(sP,2)}, vcc\nv_cmp_gt_f32 vcc, {f32(2.0**64)}, v{vO+8}\ns_nop 1")
    a(f"s_and_b64 {sr(sP,2)}, {sr(sP,2)}, vcc\ns_cmp_eq_u64 {sr(sP,2)}, -1")
    a("s_branch L_maxpath" if o["force_fallback"] else "s_cbranch_scc0 L_maxpath")
    a("L_attn_ok:")
    a(f"v_mul_f32 v{vT}, v{vT}, v{vT+1}")
    for r_ in range(0, 8, 2): a(f"v_pk_mul_f32 {vr(vO+r_,2)}, {vr(vO+r_,2)}, {vr(vT,2)} op_sel_hi:[1,0]")
    for i in range(4): a(f"v_cvt_pk_bf16_f32 v{vQ+i}, v{vO+2*i}, v{vO+2*i+1}")
    a.vm(f"buffer_store_dwordx4 {vr(vQ,4)}, v{vL16}, {WS}, s{sOB} offen sc1", "ob")
    stamp("attn")
    if o["oal_blk"] < 0: poll_check(vF4P, sF4P, 3, "f4p", rec=25)
    for k_ in oal: a.vm(oload_ln(k_), ("ol", k_))
    a(f"s_waitcnt vmcnt({a.cnt_after('wob')})\ns_barrier")
    wl = rdwo_list(vWO + 64, (12, 13))
    row, bw, br0, br1, vout = 24, 25, 26, 27, 28
    ad = []
    ad += f"v_and_b32 v{row}, 31, v{vL}\ns_lshl_b32 s{sT0}, s{sRW}, 5\nv_add_u32 v{row}, s{sT0}, v{row}\nv_lshrrev_b32 v{bw}, 5, v{vL}".split("\n")
    ad += f"v_and_b32 v{br0}, 15, v{row}\nv_xor_b32 v{bw}, v{bw}, v{br0}\nv_lshlrev_b32 v{bw}, 4, v{bw}\nv_lshl_add_u32 v{bw}, v{row}, 8, v{bw}".split("\n")
    ad += f"s_lshl_b32 s{sT0}, s{sH}, 14\nv_add_u32 v{bw}, s{sT0}, v{bw}".split("\n")
    ad += [f"v_xor_b32 v{vM+k_}, {2*k_*16}, v{bw}" for k_ in range(8)]
    ad += f"v_lshrrev_b32 v{row}, 3, v{vL}\ns_lshl_b32 s{sT0}, s{sW}, 3\nv_add_u32 v{row}, s{sT0}, v{row}".split("\n")
    ad += f"v_and_b32 v{br0}, 7, v{vL}\nv_lshlrev_b32 v{br0}, 1, v{br0}\nv_and_b32 v{br1}, 15, v{row}\nv_xor_b32 v{br0}, v{br0}, v{br1}".split("\n")
    ad += f"v_lshlrev_b32 v{br0}, 4, v{br0}\nv_lshl_add_u32 v{br0}, v{row}, 8, v{br0}\nv_xor_b32 v{br1}, 16, v{br0}".split("\n")
    ad += f"v_and_b32 v{vout}, 7, v{vL}\nv_lshlrev_b32 v{vout}, 4, v{vout}\nv_lshl_add_u32 v{vout}, v{row}, 10, v{vout}".split("\n")
    a(f"s_mov_b32 s{sSPIN}, 0")
    obk = o["obk"]
    for k_ in range(16):
        if k_ == obk:
            a(f"s_waitcnt vmcnt({a.cnt_after('ob')})")
            stamp("obAck")
            for k2 in range(8, 16): a.vm(oload_ln(k2), ("ol", k2))
        if k_ == 8: a("s_waitcnt lgkmcnt(0)")
        a(f"s_waitcnt vmcnt({a.cnt_after(('ol', k_))})")
        a(f"L_ob{k_}:\nv_cmp_eq_u32 vcc, -1, v{ofr(k_)}\ns_cbranch_vccnz L_obre{k_}\nL_obok{k_}:")
        for ct in range(2):
            ac = vACC0 + 16*ct
            a(f"{MF} {vr(ac,16)}, {vr(vWO+k_*8+ct*4,4)}, {vr(ofr(k_),4)}, {'0' if k_ == 0 else vr(ac,16)}")
            if k_ < 8:
                for _ in range(2):
                    if ad: a(ad.pop(0))
                for _ in range(2):
                    if wl: a(wl.pop(0))
        if k_ < 8 and k_ % 2 == 1: a("s_waitcnt lgkmcnt(4)")
        if k_ == 7: stamp("Ahalf")
    assert not ad and not wl
    spinrec(24)
    stamp("Bhalf")
    a("s_nop 10")
    for k_ in range(8): a(f"ds_write_b128 v{vM+k_}, {vr(vACC0+4*k_,4)}")
    a("s_waitcnt lgkmcnt(0)\ns_barrier")
    stamp("redw")
    R = 128
    for kq in range(4):
        a(f"ds_read_b128 {vr(R+kq*8,4)}, v{br0} offset:{kq*16384}\nds_read_b128 {vr(R+kq*8+4,4)}, v{br1} offset:{kq*16384}")
    for kq in range(1, 4):
        a(f"s_waitcnt lgkmcnt({6-2*kq})")
        for j in range(0, 8, 2): a(f"v_pk_add_f32 {vr(R+j,2)}, {vr(R+j,2)}, {vr(R+8*kq+j,2)}")
    for i in range(4): a(f"v_cvt_pk_bf16_f32 v{R+32+i}, v{R+2*i}, v{R+2*i+1}")
    a(f"buffer_store_dwordx4 {vr(R+32,4)}, v{vout}, {sr(sOUT,4)}, s{sOUTO} offen")
    a(f"s_or_b32 s{sT1}, s2, s{sW}")
    lab = only(f"s_cmp_eq_u32 s{sT1}, 0")
    a(f"v_mov_b32 v{row}, s{sNON}\nv_lshlrev_b32 v{bw}, 2, v{vL}")
    setexec(0xffff, 0)
    a(f"buffer_store_dword v{row}, v{bw}, {WS}, 0 offen sc1\ns_mov_b64 exec, -1")
    a(f"{lab}:")
    if o["stamps"]:
        stamp("issued")
        a("s_waitcnt vmcnt(0)")
        stamp("end")
        a(f"s_memrealtime s[{sTS}:{sTS+1}]\ns_waitcnt lgkmcnt(0)\nv_writelane_b32 v7, s100, 29\nv_writelane_b32 v7, s98, 30\nv_writelane_b32 v7, s{sTS}, 31")
        a(f"s_lshl_b32 s{sT0}, s2, 3\ns_add_u32 s{sT0}, s{sT0}, s{sW}\ns_lshl_b32 s{sT0}, s{sT0}, 7\ns_add_u32 s{sT0}, s{sT0}, {WS_DBG}")
        a(f"v_lshlrev_b32 v{row}, 2, v{vL}\ns_mov_b32 exec_hi, 0\nbuffer_store_dword v7, v{row}, {WS}, s{sT0} offen")
    if o.get("probe"):
        if o["probe"] == "fin": a("s_waitcnt vmcnt(0)"); stamp("fin")
        a("s_sub_u32 s100, s100, s98\ns_lshl_b32 s100, s100, 1\ns_add_u32 s100, s100, 3000")
        a("L_pad:\ns_memrealtime s[96:97]\ns_waitcnt lgkmcnt(0)\ns_sub_u32 s96, s96, s98\ns_cmp_lt_u32 s96, s100\ns_cbranch_scc1 L_pad")
    a("L_exit:\ns_endpgm")
    for k_ in range(16):
        a(f"L_obre{k_}:\ns_add_u32 s{sSPIN}, s{sSPIN}, 1\ns_cmp_gt_u32 s{sSPIN}, {SPIN_MAX}\ns_cbranch_scc1 L_obok{k_}\ns_waitcnt vmcnt(0)")
        hi = 8 if k_ < 8 else 16
        for k2 in range(k_, hi): a(oload_ln(k2))
        a(f"s_waitcnt vmcnt({0 if k_ < 8 else 15-k_})\ns_branch L_ob{k_}")
    for s_ in stubs: a(s_)
    a("L_maxpath:")
    m, ninf, ak, d = vT, 4, 5, 6
    vNEG = vACC0
    a(f"v_mov_b32 v{ninf}, 0xff800000\nv_lshrrev_b32 v{d}, 5, v{vL}\nv_lshlrev_b32 v{d}, 2, v{d}\nv_and_b32 v{ak}, 31, v{vL}\nv_sub_u32 v{d}, v{ak}, v{d}")
    for ph in range(2):
        C = "0" if ph == 0 else vr(vNEG, 16)
        if ph == 0: a(f"v_mov_b32 v{m}, v{ninf}")
        else:
            for r_ in range(16): a(f"v_mov_b32 v{vO+r_}, 0")
        a(f"s_mov_b32 s{sT0}, 8\ns_min_u32 s{sT1}, s{sQB}, 8\ns_sub_u32 s{sT1}, 8, s{sT1}\nv_mov_b32 v{ak}, v{vAK8}\nv_lshl_add_u32 v{vAV}, v{vAVI}, 3, v{vAV0}")
        a(f"L_mx{ph}:\nds_read_b128 {vr(vKA,4)}, v{ak}")
        if ph: rdV(vVA, vAV)
        a("s_waitcnt lgkmcnt(0)")
        qk(vSA, vKA, C); a("s_nop 15")
        for (blk, op) in ((8, "gt"), (0, "le")):
            lab = only(f"s_cmp_eq_u32 s{sT0}, {blk}")
            for r_ in range(16):
                a(f"v_cmp_{op}_i32 vcc, {8*(r_//4) + r_ % 4}, v{d}\ns_nop 1\nv_cndmask_b32_e64 v{vSA+r_}, v{vSA+r_}, v{ninf}, vcc")
            a(f"{lab}:")
        if ph == 0:
            for r_ in range(0, 16, 2): a(f"v_max3_f32 v{m}, v{m}, v{vSA+r_}, v{vSA+r_+1}")
        else:
            for r_ in range(16): a(f"v_exp_f32 v{vSA+r_}, v{vSA+r_}")
            for i in range(8): a(f"v_cvt_pk_bf16_f32 v{vP+i}, v{vSA+2*i}, v{vSA+2*i+1}")
            a("s_nop 1"); pv(vVA, vP); pv(vVA+4, vP+4)
        a(f"v_subrev_u32 v{ak}, 8192, v{ak}\nv_sub_u32 v{vAV}, v{vAV}, v{vAVI}\ns_sub_u32 s{sT0}, s{sT0}, 1\ns_cmp_ge_i32 s{sT0}, s{sT1}\ns_cbranch_scc1 L_mx{ph}")
        if ph == 0:
            a(f"v_mov_b32 v{ak}, v{m}\ns_nop 1\nv_permlane32_swap_b32 v{m}, v{ak}\ns_nop 1\nv_max_f32 v{m}, v{m}, v{ak}")
            for r_ in range(16): a(f"v_sub_f32 v{vNEG+r_}, 0, v{m}")
    a(f"s_nop 15\nv_rcp_f32 v{vT}, v{vO+8}\ns_branch L_attn_ok")
    a("L_codeend:")
    return a, o

HDR = open("gated_mix__linear_kernel_hedgehog__sliding_block__prompt.s.ref").read().split("; Override launch")[0]
def full(a, o):
    names = "; stamps: " + ",".join(o.get("_names", [])) + "\n" if o["stamps"] else ""
    return (HDR + names + f"; @launch grid=(256,1,1) block=(512,1,1) lds={LDS_BYTES}\n"
            '.amdgcn_target "amdgcn-amd-amdhsa--gfx950"\n.text\n'
            f".globl {NAME}\n.p2align 8\n.type {NAME},@function\n{NAME}:\n" + a.text() +
            '.section .rodata,"a"\n.p2align 6\n'
            f".amdhsa_kernel {NAME}\n  .amdhsa_next_free_vgpr 256\n  .amdhsa_next_free_sgpr 102\n"
            "  .amdhsa_accum_offset 256\n  .amdhsa_group_segment_fixed_size 0\n  .amdhsa_kernarg_size 88\n"
            "  .amdhsa_user_sgpr_count 2\n  .amdhsa_user_sgpr_kernarg_segment_ptr 1\n"
            "  .amdhsa_system_sgpr_workgroup_id_x 1\n.end_amdhsa_kernel\n")
if __name__ == "__main__":
    out = sys.argv[1]
    opts = {}
    for kv in sys.argv[2:]:
        if "=" in kv:
            k, v = kv.split("="); opts[k] = int(v) if v.lstrip("-").isdigit() else v
        else: opts[kv] = True
    open(out, "w").write(full(*gen(opts)))
```

```python
import sys, struct
NAME = "gated_mix__linear_kernel_hedgehog__sliding_block__prompt_kernel"

class Asm:
    def __init__(self):
        self.L = []; self.nlab = 0; self.q = []; self.ni = 0
    def __call__(self, s):
        for line in s.split("\n"):
            line = line.strip()
            if not line: continue
            if line.endswith(":"): self.L.append(line)
            else:
                self.L.append("    " + line)
                if not line.startswith(";"):
                    self.ni += (1 + int(line.split()[1])) if line.startswith("s_nop") else 1
    def c(self, s): self.L.append("    ; " + s)
    def label(self, b="L"):
        self.nlab += 1; return f"{b}_{self.nlab}"
    def vm(self, s, tag=None): self(s); self.q.append(tag)
    def mark(self, tag): self.q.append(("mark", tag))
    def cnt_after(self, tag):
        idx = None
        for i, t in enumerate(self.q):
            if t == tag or t == ("mark", tag): idx = i
        assert idx is not None, tag
        return sum(1 for t in self.q[idx+1:] if not (isinstance(t, tuple) and t[0] == "mark"))
    def pad(self, n0, need):
        have = self.ni - n0
        if have < need: self(f"s_nop {need - have - 1}")
    def text(self): return "\n".join(self.L) + "\n"

def icost(line):
    m = line.split()[0]
    if m.startswith(("v_exp", "v_rcp", "v_permlane")): return 2
    if m in ("v_mul_f32", "v_add_f32", "v_fma_f32", "v_mov_b32", "v_and_b32", "v_xor_b32"): return 0.7
    return 1

class Side:
    def __init__(self, a): self.a = a; self.u = []; self.pos = {}; self.deferred = False
    def add(self, s):
        for line in s.split("\n"):
            line = line.strip()
            if line: self.u.append(("i", line))
    def block(self, fn, cost): self.u.append(("b", fn, cost))
    def sync(self): self.u.append(("sync",))
    def note(self, name): self.u.append(("note", name))
    def dist(self, name, n): self.u.append(("dist", name, n))
    def slot(self, budget):
        while self.u and budget > 0:
            u = self.u[0]
            if u[0] == "sync": return
            if u[0] == "dist":
                have = self.a.ni - self.pos[u[1]]
                if have < u[2]:
                    if budget < 1e8 and not self.deferred:
                        self.deferred = True; return
                    self.a(f"s_nop {u[2]-have-1}")
                self.deferred = False
            self.u.pop(0)
            if u[0] == "i": self.a(u[1]); budget -= icost(u[1])
            elif u[0] == "b": u[1](); budget -= u[2]
            elif u[0] == "note": self.pos[u[1]] = self.a.ni
    def barrier_passed(self):
        if self.u and self.u[0][0] == "sync": self.u.pop(0)

def vr(b, n=1): return f"v{b}" if n == 1 else f"v[{b}:{b+n-1}]"
def sr(b, n=1): return f"s{b}" if n == 1 else f"s[{b}:{b+n-1}]"
def f32(x): return "0x%08x" % struct.unpack("<I", struct.pack("<f", x))[0]
MF = "v_mfma_f32_32x32x16_bf16"
MF16 = "v_mfma_f32_16x16x32_bf16"

XB, OWN, RING, MISC = 0, 65536, 81920, 147456
WPHI, GATEW, GP, ONES, H1S = MISC, MISC + 2048, MISC + 3072, MISC + 4096, MISC + 8192
LDS_BYTES = 163840
SCR, SCRW = XB + 32768, 3328
def slot(n):
    R = lambda i: RING + i * 16384
    X = lambda i: XB + i * 16384
    if n < 8: return R(n % 4)
    return [X(0), X(1), R(0), R(1), R(2), R(3), X(0), X(1), R(0), R(1), R(2), R(3), X(2), X(3), X(0), X(1), R(0), R(1), R(2), R(3)][n - 8]
WS_F1, WS_F2, WS_F4, WS_KVF = 0x10000, 0x20000, 0x30000, 0x40000
WS_PART = 0x100000
PSTR, SSTR = 320, 320 * 32
WS_KVB, WS_O, WS_DBG, WS_SIZE = 0x500000, 0x900000, 0xD00000, 0x1000000
LOG2E = 1.4426950408889634
sX, sWA, sWB, sWS, sWOA, sWOB, sOUT = 4, 8, 12, 16, 20, 24, 28
sCH = 32
sW, sRW, sH, sHG, sRB, sROT, sNON, sW1K, sQB = 40, 41, 42, 43, 44, 45, 46, 47, 48
sT0, sT1, sT2 = 50, 51, 52
sSPIN, sRB3, sCB = 53, 54, 55
sOA, sOB = 56, 57
sP = 58
sPART, sKVB, sF1S, sF2S, sF4S, sKVFS = 60, 61, 62, 63, 49, 3
sF1P, sH1L, sF2P, sHAL, sKVS, sF4P, sOUTO = 83, 84, 85, 86, 87, 88, 89
sF2M = 90
sWOF = 64
sOL = 72
sXO = 76
sTS = 96
sU0, sU1, sU2, sV0, sV1 = 92, 93, 94, 95, 81
vG, vL, vL16, vXD, vWDX, vWDY, vWRD = 0, 1, 2, 3, 4, 5, 6
vXR, vWPHI, vM = 8, 12, 16
vAPW, vAVW, vAPR, vAVR, vAGP, vAK8, vPO, vVO = 24, 25, 26, 27, 28, 29, 30, 31
vAVW2, vPO2, vWOD, vHOW = 24, 25, 26, 27
vNON = vAGP
vACC0, vACC1, vWF, vE, vX = 32, 48, 64, 96, 128
vAK, vAV, vAVI, vAV0, vKVO, vWA0, vWA1, vL128 = range(vACC1, vACC1 + 8)
vFP, vF4P, vHP, vF4O = vACC1 + 8, vACC1 + 9, vACC1 + 10, vACC1 + 11
vWRD2 = 124
SPIN_MAX = 200000

def gen(opts=None):
    o = dict(stamps=False, force_fallback=False, bud0=10, bud1=13, f1_it=16, h1_poll=20, h1_load=23, h1_wr=108, obk=8, bark=8, hpos=10, hstep=5, hloop=2, wrd0=12, wrds=2, prio=1, prio_blk=2, f4s_blk=7, pkv_it=8, pkv_it2=10, rsleep=0, nwob=32, poi_it=24, poi_it2=24, x1late=0,
             map24=True, kvl_blk=8, kv_blk=5, oal_blk=0, woa0=17, woa1=18, woa2=19, woa3=20, xpair=0, wopf=-2, wpf2=-2, wpf3=-2, sched=4,
             npro=110, c2pos=90)
    o.update(opts or {})
    a = Asm(); side = Side(a)
    nst = [0]; pend = []
    def stamp(name=""):
        if o.get("probe") == name: a("s_memrealtime s[100:101]\ns_waitcnt lgkmcnt(0)"); a.ni -= 2
        if not o["stamps"]: return
        if o.get("allit") and name != "first": return
        if o.get("light") and name != "end": return
        i = nst[0]; nst[0] += 1; assert i < 24
        a(f"s_memtime s[{sTS}:{sTS+1}]\ns_waitcnt lgkmcnt(0)\nv_writelane_b32 v7, s{sTS}, {i}"); a.ni -= 3
        o.setdefault("_names", []).append(name)
    def stamp_a(name):
        if o.get("probe") == name: a("s_memrealtime s[100:101]"); a.ni -= 1
        if not o["stamps"] or o.get("light"): return
        i = nst[0]; nst[0] += 1; assert i < 24
        a(f"s_memtime s[{sTS}:{sTS+1}]"); a.ni -= 1; pend.append(i); o.setdefault("_names", []).append(name)
    def stamp_b():
        if pend: a(f"v_writelane_b32 v7, s{sTS}, {pend.pop()}"); a.ni -= 1
    def spinrec(i):
        if o["stamps"]: a(f"v_writelane_b32 v7, s{sSPIN}, {i}"); a.ni -= 1
    def srd(d, src, nbytes):
        a(f"s_mov_b32 s{d}, s{src}\ns_and_b32 s{d+1}, s{src+1}, 0xffff\ns_mov_b32 s{d+2}, {nbytes}\ns_mov_b32 s{d+3}, 0x20000")
    def only(cond):
        lab = a.label("Lskip"); a(cond); a(f"s_cbranch_scc0 {lab}"); return lab
    def setexec(lo, hi):
        if hi == 0 and lo <= 64: a(f"s_mov_b64 exec, {lo}")
        else: a(f"s_mov_b32 exec_lo, 0x{lo:x}\ns_mov_b32 exec_hi, 0x{hi:x}")
    WS = sr(sWS, 4)
    t0, t1, t2, t3, t4, t5, t6, t7, t8, t9 = range(vACC1, vACC1 + 10)

    a("s_cmp_ge_u32 s2, 256\ns_cbranch_scc1 L_exit")
    a("s_load_dwordx4 s[64:67], s[0:1], 0\ns_load_dwordx4 s[68:71], s[0:1], 16\ns_load_dwordx4 s[76:79], s[0:1], 56")
    a("s_load_dwordx4 s[72:75], s[0:1], 40\ns_load_dwordx2 s[80:81], s[0:1], 80")
    if o["stamps"]: a("v_mov_b32 v7, 0\ns_memrealtime s[98:99]\ns_memtime s[100:101]")
    if o.get("probe"): a("s_memrealtime s[98:99]\ns_memrealtime s[100:101]")
    a(f"v_lshrrev_b32 v{t0}, 6, v0\nv_and_b32 v{vL}, 63, v0")
    a(f"s_lshr_b32 s{sT0}, s2, 3\nv_readfirstlane_b32 s{sW}, v{t0}")
    a(f"s_getpc_b64 s[{sP}:{sP+1}]\nL_pc:")
    a(f"s_sub_u32 s{sOUT}, s{sP}, L_pc-{NAME}\ns_subb_u32 s{sOUT+1}, s{sP+1}, 0\ns_and_b32 s{sOUT+1}, s{sOUT+1}, 0xffff\ns_mov_b32 s{sOUT+2}, L_codeend-{NAME}\ns_mov_b32 s{sOUT+3}, 0x20000")
    lab = only(f"s_cmp_eq_u32 s{sW}, 7")
    a(f"v_and_b32 v{t3}, 3, v{vL}\nv_lshlrev_b32 v{t3}, 7, v{t3}\ns_lshl_b32 s{sT1}, s{sT0}, 9")
    a(f"buffer_load_dword v{vE+31}, v{t3}, {sr(sOUT,4)}, s{sT1} offen")
    a(f"{lab}:")
    if not o["map24"]:
        a(f"s_and_b32 s{sHG}, s2, 7\ns_mov_b32 s{sRB}, s{sT0}\ns_add_u32 s{sROT}, s{sRB}, s{sHG}")
    else:
        a(f"s_and_b32 s{sRB}, s2, 1\ns_lshl_b32 s{sRB}, s{sRB}, 4\ns_and_b32 s{sT1}, s{sT0}, 15\ns_add_u32 s{sRB}, s{sRB}, s{sT1}")
        a(f"s_and_b32 s{sHG}, s2, 6\ns_lshr_b32 s{sT1}, s{sT0}, 4\ns_add_u32 s{sHG}, s{sHG}, s{sT1}")
        a(f"s_lshl_b32 s{sROT}, s{sHG}, 2\ns_lshr_b32 s{sT1}, s{sHG}, 1\ns_add_u32 s{sROT}, s{sROT}, s{sT1}\ns_add_u32 s{sROT}, s{sROT}, s{sRB}")
    a(f"s_and_b32 s{sROT}, s{sROT}, 7\ns_lshl_b32 s{sW1K}, s{sW}, 10\nv_lshlrev_b32 v{vL16}, 4, v{vL}")
    a(f"v_lshrrev_b32 v{t0}, 3, v0\nv_and_b32 v{t1}, 7, v{vL}\nv_bfe_u32 v{t2}, v{vL}, 4, 1")
    a(f"v_bfe_u32 v{t3}, v{t0}, 1, 3\nv_xor_b32 v{t3}, v{t3}, v{t1}\nv_lshlrev_b32 v{t3}, 4, v{t3}")
    a(f"s_lshl_b32 s{sT1}, s{sRB}, 6\nv_add_u32 v{t4}, s{sT1}, v{t0}\nv_lshl_add_u32 v{vXD}, v{t4}, 10, v{t3}")
    a(f"v_lshlrev_b32 v{t3}, 1, v{t2}\nv_xor_b32 v{t3}, v{t3}, v{t1}\nv_lshlrev_b32 v{t3}, 4, v{t3}")
    a(f"v_mul_u32_u24 v{t4}, 3072, v{t0}\ns_lshl_b32 s{sT1}, s{sHG}, 7\nv_add3_u32 v{vWDX}, v{t4}, v{t3}, s{sT1}")
    a(f"v_xor_b32 v{vWDY}, 64, v{vWDX}\ns_mul_i32 s{sCH}, s{sROT}, {64*3072}")
    a(f"s_lshl_b32 s{sT2}, s{sROT}, 7\nv_add_u32 v{t5}, s{sT2}, v{vL16}\nv_and_b32 v{t5}, 1023, v{t5}")
    a("s_waitcnt lgkmcnt(0)")
    if o.get("probe") == "karg": stamp("karg")
    srd(sX, 64, 2097152); srd(sWA, 66, 1572864)
    passes = [((sWA, 1024), (sWA, 2048)), ((sWB, 1024), (sWB, 2048)), ((sWA, 0), (sWB, 0))]
    def dma_x_m0(n): a(f"s_add_u32 m0, s{sW1K}, {XB + n*8192}")
    def dma_x_ld(n):
        if n == 0: so = sT2
        elif n < 3: a(f"s_add_u32 s{sT0}, s{sROT}, {n}\ns_and_b32 s{sT0}, s{sT0}, 7\ns_lshl_b32 s{sT0}, s{sT0}, 7"); so = sT0
        else: so = sXO + n - 3
        a.vm(f"buffer_load_dwordx4 v{vXD}, {sr(sX,4)}, s{so} offen lds", ("x", n))
    def dma_m0(n, b):
        if b == "x": return dma_x_m0(n)
        off = passes[n // 8][b][1] if n < 24 else 0
        v = slot(n) + b*8192 - off
        a(f"s_add_u32 m0, s{sW1K}, {v if v >= 0 else v + off}")
    def dma_ld(n, b):
        if a.L[-1].strip().startswith("s_add_u32 m0"): a("s_nop 0")
        if b == "x": return dma_x_ld(n)
        if n < 24:
            p, i = divmod(n, 8); d, off = passes[p][b]
            if slot(n) + b*8192 - off >= 0:
                a.vm(f"buffer_load_dwordx4 v{vWDX if b == 0 else vWDY}, {sr(d,4)}, s{sCH+i} offen offset:{off} lds", ("w", n, b))
            else:
                a(f"s_add_u32 s{sT2}, s{sCH+i}, {off}")
                a.vm(f"buffer_load_dwordx4 v{vWDX if b == 0 else vWDY}, {sr(d,4)}, s{sT2} offen lds", ("w", n, b))
        else:
            a.vm(f"buffer_load_dwordx4 v{vWOD}, {sr(sWOA,4)}, s{sWOF+2*(n-24)+b} offen lds", ("w", n, b))
    def dma(n, b): dma_m0(n, b); dma_ld(n, b)
    def wprefetch(which):
        nrow = 32 if o["map24"] else 16; per = nrow // 8
        p3 = vE + 30
        a(f"s_and_b32 s{sT0}, s{sRB}, {512//nrow-1}\ns_lshl_b32 s{sT0}, s{sT0}, 3\ns_add_u32 s{sT0}, s{sT0}, s{sW}\ns_mul_i32 s{sT0}, s{sT0}, {per*3072}\ns_lshl_b32 s{sT1}, s{sHG}, 7\ns_add_u32 s{sT0}, s{sT0}, s{sT1}")
        a(f"v_mul_u32_u24 v{p3}, 3072, v{vL}\ns_mov_b64 exec, {(1 << per) - 1}")
        for wh in which:
            for d_, off in passes[wh - 1]: a.vm(f"buffer_load_dword v{vE+31}, v{p3}, {sr(d_,4)}, s{sT0} offen offset:{off}")
        a("s_mov_b64 exec, -1")
    def woprefetch():
        a(f"v_lshlrev_b32 v{vE+30}, 7, v{vL}\ns_lshl_b32 s{sT0}, s2, 11\ns_lshr_b32 s{sT1}, s{sW1K}, 2\ns_add_u32 s{sT0}, s{sT0}, s{sT1}\ns_mov_b64 exec, 3")
        a.vm(f"buffer_load_dword v{vE+31}, v{vE+30}, {sr(sWOA,4)}, s{sT0} offen"); a.vm(f"buffer_load_dword v{vE+31}, v{vE+30}, {sr(sWOB,4)}, s{sT0} offen")
        a("s_mov_b64 exec, -1")
    dma(0, "x"); dma(0, 0); dma(0, 1)
    a("s_load_dword s82, s[80:81], 0")
    srd(sWOA, 68, 16384); srd(sWOB, 76, 1024)
    lab = only(f"s_cmp_lt_u32 s{sW}, 2")
    a(f"s_lshl_b32 s{sT0}, s{sHG}, 11\ns_add_u32 m0, s{sW1K}, {WPHI}\ns_add_u32 s{sT0}, s{sT0}, s{sW1K}")
    a(f"buffer_load_dwordx4 v{vL16}, {sr(sWOA,4)}, s{sT0} offen lds")
    a(f"{lab}:")
    lab = only(f"s_cmp_eq_u32 s{sW}, 2")
    a(f"s_mov_b32 m0, {GATEW}\ns_nop 0\nbuffer_load_dwordx4 v{t5}, {sr(sWOB,4)}, 0 offen lds")
    a(f"{lab}:")
    a.mark("misc")
    if not o["x1late"]: dma(1, "x")
    srd(sWB, 72, 1572864); srd(sWOA, 70, 524288); srd(sWOB, 74, 524288)
    wh_ = [w_ for w_ in (2, 3) if o[f"wpf{w_}"] == -3]
    if wh_: wprefetch(wh_)
    if o["wopf"] == -3: woprefetch()
    srd(sWS, 80, WS_SIZE); srd(sOUT, 78, 2097152)
    a(f"s_and_b32 s{sRW}, s{sW}, 1\ns_lshr_b32 s{sH}, s{sW}, 1")
    for i in range(1, 8):
        a(f"s_add_u32 s{sCH+i}, s{sROT}, {i}\ns_and_b32 s{sCH+i}, s{sCH+i}, 7")
        if i >= 3: a(f"s_lshl_b32 s{sXO+i-3}, s{sCH+i}, 7")
        a(f"s_mul_i32 s{sCH+i}, s{sCH+i}, {64*3072}")
    a(f"s_lshr_b32 s{sT0}, s2, 3\ns_and_b32 s{sRB3}, s2, 7\ns_lshl_b32 s{sRB3}, s{sRB3}, 2\ns_lshr_b32 s{sT1}, s{sT0}, 3\ns_add_u32 s{sRB3}, s{sRB3}, s{sT1}\ns_and_b32 s{sCB}, s{sT0}, 7")
    Q4 = 240; O8 = 244
    a(f"v_lshlrev_b32 v{t3}, 2, v{t2}\nv_xor_b32 v{t3}, v{t3}, v{t1}\nv_lshlrev_b32 v{t3}, 4, v{t3}\nv_lshl_add_u32 v{t3}, v{t0}, 10, v{t3}")
    a(f"s_lshl_b32 s{sT0}, s{sCB}, 7\nv_add_u32 v{Q4+2}, s{sT0}, v{t3}")
    l32, half, row, g, r, c = t6, t7, t0, t2, t8, t9
    a(f"v_and_b32 v{l32}, 31, v{vL}\nv_lshrrev_b32 v{half}, 5, v{vL}\nv_bfe_u32 v{r}, v{vL}, 2, 2\nv_and_b32 v{c}, 3, v{vL}")
    a(f"s_lshl_b32 s{sT0}, s{sRW}, 5\nv_add_u32 v{row}, s{sT0}, v{l32}")
    a(f"v_bfe_u32 v{t1}, v{row}, 1, 3\nv_xor_b32 v{t1}, v{t1}, v{half}\nv_lshlrev_b32 v{t1}, 4, v{t1}\nv_lshl_add_u32 v{vXR}, v{row}, 7, v{t1}")
    for s in range(1, 4): a(f"v_xor_b32 v{vXR+s}, {s*32}, v{vXR}")
    vGACC, vGXF, vGF, vGX, vGA, vWPA, vSG = vE, vE+16, vE+20, vE+24, vE+25, vE+26, vE+27
    a(f"s_lshl_b32 s{sT0}, s{sH}, 5\nv_xor_b32 v{vGX}, s{sT0}, v{vXR}\ns_add_u32 s{sT0}, s{sT0}, {GATEW}\nv_lshl_add_u32 v{vGA}, v{half}, 4, s{sT0}")
    a(f"v_bfe_u32 v{t1}, v{vL}, 3, 1\nv_lshl_add_u32 v{t1}, v{t1}, 2, v{c}\nv_lshl_add_u32 v{vGA}, v{t1}, 7, v{vGA}")
    a(f"v_lshrrev_b32 v{t3}, 1, v{r}\nv_lshl_add_u32 v{t3}, v{g}, 1, v{t3}\nv_xor_b32 v{t3}, s{sH}, v{t3}\nv_lshlrev_b32 v{t3}, 5, v{t3}")
    a(f"v_lshl_add_u32 v{t5}, v{half}, 3, v{r}\nv_lshlrev_b32 v{t5}, 7, v{t5}\nv_lshl_add_u32 v{t5}, v{c}, 3, v{t5}\nv_add_u32 v{t3}, v{t3}, v{t5}")
    a(f"v_lshl_add_u32 v{vWRD2}, v{g}, 13, v{t3}\nv_add_u32 v{vWRD}, {RING}, v{vWRD2}")
    a(f"v_lshrrev_b32 v{t4}, 1, v{c}\nv_lshl_add_u32 v{t1}, v{half}, 2, v{r}\nv_lshlrev_b32 v{vWPA}, 5, v{t1}")
    a(f"v_lshl_add_u32 v{vWPA}, v{g}, 4, v{vWPA}\nv_lshl_add_u32 v{vWPA}, v{t4}, 3, v{vWPA}")
    a(f"s_lshl_b32 s{sT0}, s{sH}, 9\ns_add_u32 s{sT0}, s{sT0}, {WPHI}\nv_add_u32 v{vWPA}, s{sT0}, v{vWPA}")
    a(f"v_bfe_u32 v{vSG}, v{vL}, 2, 1\nv_mul_u32_u24 v{vSG}, 0x8000, v{vSG}\nv_lshl_or_b32 v{vSG}, v{vSG}, 16, v{vSG}")
    if o["x1late"]: dma(1, "x")
    dma(1, 0); dma(1, 1)
    VL, SL = [], []
    V = lambda t_: VL.extend(t_.split('\n'))
    S = lambda t_: SL.extend(t_.split('\n'))
    lab = only(f"s_cmp_eq_u32 s{sW}, 3")
    for i in range(4): a(f"v_mov_b32 v{vE+i}, 0x3f803f80")
    a(f"v_add_u32 v{vE+4}, {ONES}, v{vL16}\nds_write_b128 v{vE+4}, {vr(vE,4)}")
    a(f"{lab}:")
    V(f"v_and_b32 v{t3}, 2, v{r}\nv_xor_b32 v{t3}, v{t3}, v{g}\nv_lshl_add_u32 v{t3}, v{t3}, 5, v{t5}")
    V(f"s_sub_u32 s{sV0}, s{sH}, s{sRB3}\ns_and_b32 s{sV0}, s{sV0}, 3\ns_lshl_b32 s{sV0}, s{sV0}, 14\ns_add_u32 s{sV0}, s{sV0}, {RING}\nv_add_u32 v{O8+5}, s{sV0}, v{t3}\nv_xor_b32 v{O8+6}, 64, v{O8+5}")
    V(f"s_lshl_b32 s{sV0}, s{sH}, 8\ns_add_u32 s{sV0}, s{sV0}, {GP}\nv_lshl_add_u32 v{vAGP}, v{row}, 2, s{sV0}")
    V(f"s_mul_i32 s{sV0}, s{sW}, {SCRW}\ns_add_u32 s{sV0}, s{sV0}, {SCR}\nv_add_u32 v{vAPW}, s{sV0}, v{vL16}\nv_lshl_add_u32 v{vAVW}, v{half}, 6, v{vAPW}")
    V(f"v_lshrrev_b32 v{t1}, 4, v{vL}\nv_lshl_add_u32 v{t5}, v{t1}, 3, v{r}\nv_and_b32 v{c}, 1, v{c}\nv_lshlrev_b32 v{c}, 3, v{c}")
    V(f"v_lshl_add_u32 v{t3}, v{t5}, 4, v{c}\ns_mul_i32 s{sV0}, s{sH}, {2*SCRW}\ns_add_u32 s{sV0}, s{sV0}, {SCR}\nv_add_u32 v{t3}, s{sV0}, v{t3}")
    V(f"v_mul_u32_u24 v{t5}, 576, v{t4}\nv_add_u32 v{vAVR}, v{t5}, v{t3}\nv_mul_u32_u24 v{t5}, 1088, v{t4}\ns_lshl_b32 s{sV0}, s{sRW}, 9\nv_add3_u32 v{vAPR}, v{t5}, v{t3}, s{sV0}")
    V(f"v_mul_u32_u24 v{t1}, {SSTR}, v{t1}\nv_and_b32 v{t3}, 15, v{vL}\nv_lshl_add_u32 v{vPO}, v{t3}, 4, v{t1}")
    V(f"v_lshlrev_b32 v{t1}, 6, v{half}\nv_xor_b32 v{vVO}, v{t1}, v{vL16}")
    V(f"s_lshl_b32 s{sV0}, s{sRW}, 13\ns_lshl_b32 s{sV1}, s{sH}, 11\ns_add_u32 s{sV0}, s{sV0}, s{sV1}\nv_add_u32 v{O8}, s{sV0}, v{vL16}\nv_add_u32 v{vAK8}, {OWN}, v{O8}\nv_xor_b32 v{Q4}, v{t1}, v{vAK8}")
    V(f"s_lshl_b32 s{sHAL}, s{sHG}, 19\ns_lshl_b32 s{sV1}, s{sRB}, 14\ns_add_u32 s{sHAL}, s{sHAL}, s{sV1}\ns_add_u32 s{sHAL}, s{sHAL}, {WS_KVB}\ns_add_u32 s{sKVB}, s{sHAL}, s{sV0}\ns_add_u32 s{sHAL}, s{sV1}, s{sW1K}\ns_sub_u32 s{sHAL}, s{sHAL}, 65536")
    V(f"v_xor_b32 v{t1}, v{half}, v{t4}\nv_lshl_add_u32 v{t1}, v{t1}, 2, v{r}\nv_lshl_add_u32 v{t1}, v{t1}, 4, v{c}\nv_lshl_add_u32 v{t1}, v{t4}, 9, v{t1}")
    V(f"s_add_u32 s{sV0}, s{sV0}, 1024\nv_add_u32 v{t1}, s{sV0}, v{t1}\nv_cmp_eq_u32 {sr(sP,2)}, 1, v{g}\nv_mov_b32 v{t3}, {ONES+128}\nv_mov_b32 v{t5}, 8192")
    V(f"v_lshlrev_b32 v{O8+7}, 7, v{vL}\nv_cndmask_b32 v{O8+3}, v{t1}, v{t3}, {sr(sP,2)}\nv_cndmask_b32 v{O8+2}, v{t5}, 0, {sr(sP,2)}\nv_lshl_add_u32 v{O8+1}, v{O8+2}, 3, v{O8+3}")
    V(f"v_min_u32 v{t1}, 16, v{l32}\nv_lshlrev_b32 v{t3}, 3, v{t1}\nv_lshl_add_u32 v{O8+4}, v{half}, 10, v{t3}\nv_mul_u32_u24 v{t3}, {PSTR}, v{half}\nv_lshl_add_u32 v{Q4+1}, v{t1}, 4, v{t3}")
    V(f"s_add_u32 s{sV0}, s{sW1K}, {H1S}\nv_add_u32 v{Q4+3}, s{sV0}, v{vL16}\nv_mov_b32 v{vE+29}, v{Q4+3}")
    V(f"ds_write_b128 v{Q4+3}, {vr(Q4,4)}\nds_write_b128 v{vAK8}, {vr(O8,4)}\nds_write_b128 v{vAK8}, {vr(O8+4,4)} offset:1024\ns_waitcnt lgkmcnt(5)")
    vPK4 = vE + 29
    V(f"v_lshlrev_b32 v{t1}, 2, v{half}\nv_sub_u32 v{t1}, v{l32}, v{t1}\nv_mov_b32 v{t3}, 0xffff")
    for i in range(8):
        k0 = 8*(i//2) + 2*(i % 2)
        V(f"v_cmp_le_i32 {sr(sP,2)}, {k0}, v{t1}\nv_cmp_lt_i32 vcc, {k0}, v{t1}\ns_nop 0\nv_cndmask_b32 v{vM+i}, 0, v{t3}, {sr(sP,2)}\nv_cndmask_b32_e64 v{vM+i}, v{vM+i}, -1, vcc")
    S(f"s_lshl_b32 s{sQB}, s{sRB}, 1\ns_add_u32 s{sQB}, s{sQB}, s{sRW}")
    S(f"s_lshl_b32 s{sU2}, s{sHG}, 5\ns_lshl_b32 s{sU1}, s{sW}, 2\ns_add_u32 s{sU1}, s{sU1}, s{sU2}")
    S(f"s_lshl_b32 s{sF1P}, s{sU1}, 7\ns_add_u32 s{sF1P}, s{sF1P}, {WS_F1}")
    S(f"s_mul_i32 s{sPART}, s{sU1}, {SSTR}\ns_mul_i32 s{sU1}, s{sRB}, {PSTR}\ns_add_u32 s{sPART}, s{sPART}, s{sU1}\ns_add_u32 s{sPART}, s{sPART}, {WS_PART}")
    S(f"s_add_u32 s{sU1}, s{sU2}, s{sRB}")
    S(f"s_mul_i32 s{sH1L}, s{sU1}, {SSTR}\ns_mul_i32 s{sU0}, s{sW}, {4*PSTR}\ns_add_u32 s{sH1L}, s{sH1L}, s{sU0}\ns_add_u32 s{sH1L}, s{sH1L}, {WS_PART}")
    S(f"s_lshl_b32 s{sKVFS}, s{sU1}, 8\ns_add_u32 s{sKVFS}, s{sKVFS}, {WS_KVF}\ns_lshl_b32 s{sU1}, s{sU1}, 7\ns_add_u32 s{sF1S}, s{sU1}, {WS_F1}\ns_sub_u32 s{sF2P}, s{sF1S}, 512")
    S(f"s_min_u32 s{sU0}, s{sRB}, 4\ns_sub_u32 s{sU0}, 4, s{sU0}\ns_lshl_b32 s{sF2M}, 31, s{sU0}\ns_and_b32 s{sF2M}, s{sF2M}, 31\ns_mov_b32 s{sF2M+1}, 0")
    S(f"s_lshl_b32 s{sU0}, s{sH}, 3\ns_add_u32 s{sU0}, s{sU0}, s{sU2}\ns_lshl_b32 s{sKVS}, s{sU0}, 8\ns_add_u32 s{sKVS}, s{sKVS}, {WS_KVF}")
    S(f"s_lshl_b32 s{sF4S}, s{sRB}, 3\ns_add_u32 s{sF4S}, s{sF4S}, s{sHG}\ns_lshl_b32 s{sF4S}, s{sF4S}, 7\ns_add_u32 s{sF4S}, s{sF4S}, {WS_F4}")
    S(f"s_lshl_b32 s{sF4P}, s{sRB3}, 10\ns_lshl_b32 s{sU0}, s{sH}, 8\ns_add_u32 s{sF4P}, s{sF4P}, s{sU0}\ns_add_u32 s{sF4P}, s{sF4P}, {WS_F4}")
    S(f"s_lshl_b32 s{sU2}, s{sRW}, 15\ns_add_u32 s{sU2}, s{sU2}, {WS_O}")
    S(f"s_lshl_b32 s{sOA}, s{sRB}, 17\ns_add_u32 s{sOA}, s{sOA}, s{sU2}\ns_lshl_b32 s{sU1}, s{sHG}, 2\ns_add_u32 s{sU1}, s{sU1}, s{sH}\ns_lshl_b32 s{sU1}, s{sU1}, 10\ns_add_u32 s{sOA}, s{sOA}, s{sU1}\ns_add_u32 s{sOB}, s{sOA}, 65536")
    S(f"s_lshl_b32 s{sOL}, s{sRB3}, 17\ns_add_u32 s{sOL}, s{sOL}, s{sU2}\ns_lshl_b32 s{sU1}, s{sH}, 13\ns_add_u32 s{sOL}, s{sOL}, s{sU1}")
    S(f"s_add_u32 s{sOL+1}, s{sOL}, 4096\ns_add_u32 s{sOL+2}, s{sOL}, 65536\ns_add_u32 s{sOL+3}, s{sOL}, {65536+4096}")
    S(f"s_lshl_b32 s{sOUTO}, s{sRB3}, 16\ns_lshl_b32 s{sU1}, s{sCB}, 7\ns_add_u32 s{sOUTO}, s{sOUTO}, s{sU1}")
    for i in range(4):
        S(f"s_add_u32 s{sWOF+2*i}, s{sRB3}, {i}\ns_and_b32 s{sWOF+2*i}, s{sWOF+2*i}, 3\ns_lshl_b32 s{sWOF+2*i}, s{sWOF+2*i}, 17\ns_add_u32 s{sWOF+2*i+1}, s{sWOF+2*i}, 65536")
    def prewrite():
        a(f"s_add_u32 s{sU0}, s{sKVFS}, 128\ns_cmp_eq_u32 s{sW}, 3\ns_cselect_b32 s{sU0}, s{sKVFS}, s{sU0}\ns_cmp_eq_u32 s{sW}, 2\ns_cselect_b32 s{sU0}, s{sF4S}, s{sU0}")
        a(f"s_cmp_eq_u32 s{sW}, 0\ns_cselect_b32 s{sU0}, s{sF1S}, s{sU0}")
        for i in range(4): a(f"v_mov_b32 v{252+i}, -1")
        setexec(0xff, 0)
        a.vm(f"buffer_store_dwordx4 {vr(252,4)}, v{vL16}, {WS}, s{sU0} offen sc1", "rec"); a("s_mov_b64 exec, -1")
    Z = []
    while VL or SL:
        if VL: Z.append(VL.pop(0))
        if SL and not (Z and Z[-1].startswith("s_") and VL): Z.append(SL.pop(0))
    npro = o["npro"]
    for k_, ln in enumerate(Z[:npro]):
        a(ln)
        if k_ == o["c2pos"]: dma(2, "x"); dma(2, 0); dma(2, 1)
    Z = Z[npro:]
    pre_done = not Z
    if pre_done: prewrite()

    def rd_w(n, s, t):
        ad_, of_ = (vWRD, slot(n) - RING) if slot(n) >= RING else (vWRD2, slot(n))
        return f"ds_read_b64_tr_b16 {vr(vWF + (n%2)*16 + s*4 + t*2, 2)}, v{ad_} offset:{of_ + (16*s+4*t)*128}"
    def rd_x(n, s): return f"ds_read_b128 {vr(vX + n*16 + s*4, 4)}, v{vXR+s} offset:{XB + n*8192}"
    def rd_g(n): return f"ds_read_b128 {vr(vGXF,4)}, v{vGX} offset:{XB + n*8192}" + (f"\nds_read_b128 {vr(vGF,4)}, v{vGA}" if n == 0 else "")
    def flag(*soffs):
        n0 = a.ni
        lab = only(f"s_cmp_eq_u32 s{sW}, 1")
        a("s_mov_b64 exec, 1")
        for soff in soffs: a(f"buffer_store_dword v{vNON}, v{vL16}, {WS}, s{soff} offen sc1")
        a(f"s_mov_b64 exec, -1\n{lab}:")
        a.ni = n0 + 2
    def poll_issue(dst, soff, mask, tag, vL128=vL128):
        a(f"s_mov_b64 exec, {mask}"); a.vm(f"buffer_load_dword v{dst}, v{vL128}, {WS}, s{soff} offen sc1", tag); a("s_mov_b64 exec, -1")
    stubs = []
    def poll_check(dst, soff, mask, tag, rec=None, vL128=vL128):
        lp, ld = a.label("Lpoll"), a.label("Lpd")
        if o["stamps"]: a(f"s_mov_b32 s{sSPIN}, 0"); a.ni -= 1
        a(f"s_mov_b64 exec, {mask}\ns_waitcnt vmcnt({a.cnt_after(tag)})\nv_cmp_ne_u32 vcc, v{vNON}, v{dst}\ns_cbranch_vccnz {lp}\n{ld}:\ns_mov_b64 exec, -1")
        stubs.append(f"{lp}:\ns_mov_b32 s{sSPIN}, 0\n{lp}b:\nbuffer_load_dword v{dst}, v{vL128}, {WS}, s{soff} offen sc1\ns_add_u32 s{sSPIN}, s{sSPIN}, 1\n"
                     f"s_cmp_gt_u32 s{sSPIN}, {SPIN_MAX}\ns_waitcnt vmcnt(0)\ns_cbranch_scc1 {ld}\nv_cmp_ne_u32 vcc, v{vNON}, v{dst}\ns_cbranch_vccnz {lp}b\ns_branch {ld}")
        if rec is not None: spinrec(rec)
    def softmax16(S, P, t, pk=True):
        L = [f"v_max3_f32 v{t+1+k}, v{S+3*k}, v{S+3*k+1}, v{S+3*k+2}" for k in range(5)]
        L += [f"v_mov_b32 v{t}, {f32(LOG2E)}", f"v_max3_f32 v{t+1}, v{t+1}, v{t+2}, v{S+15}", f"v_max3_f32 v{t+3}, v{t+3}, v{t+4}, v{t+5}",
              f"v_max_f32 v{t+1}, v{t+1}, v{t+3}", f"v_mul_f32 v{t+1}, v{t}, v{t+1}"]
        if pk:
            L += [f"v_pk_fma_f32 {vr(S+r_,2)}, {vr(S+r_,2)}, {vr(t,2)}, {vr(t,2)} op_sel:[0,0,1] op_sel_hi:[1,0,1] neg_lo:[0,0,1] neg_hi:[0,0,1]" for r_ in range(0, 16, 2)]
            for r_ in range(16):
                L.append(f"v_exp_f32 v{S+r_}, v{S+r_}")
                if r_ == 4: L.append(f"v_pk_add_f32 {vr(t,2)}, {vr(S,2)}, {vr(S+2,2)}")
                if r_ > 4 and r_ % 2 == 0: L.append(f"v_pk_add_f32 {vr(t,2)}, {vr(t,2)}, {vr(S+r_-2,2)}")
            L += ["s_nop 0", f"v_pk_add_f32 {vr(t,2)}, {vr(t,2)}, {vr(S+14,2)}", f"v_add_f32 v{t}, v{t}, v{t+1}", f"v_rcp_f32 v{t}, v{t}", "s_nop 0"]
            L += [f"v_pk_mul_f32 {vr(S+r_,2)}, {vr(S+r_,2)}, {vr(t,2)} op_sel_hi:[1,0]" for r_ in range(0, 16, 2)]
        else:
            L += [f"v_fma_f32 v{S+r_}, v{S+r_}, v{t}, -v{t+1}" for r_ in range(16)]
            for r_ in range(16):
                L.append(f"v_exp_f32 v{S+r_}, v{S+r_}")
                if r_ == 2: L.append(f"v_add_f32 v{t}, v{S}, v{S+1}")
                if r_ > 2: L.append(f"v_add_f32 v{t}, v{t}, v{S+r_-1}")
            L += [f"v_add_f32 v{t}, v{t}, v{S+15}", f"v_rcp_f32 v{t}, v{t}", "s_nop 0"]
            L += [f"v_mul_f32 v{S+r_}, v{S+r_}, v{t}" for r_ in range(16)]
        L += [f"v_cvt_pk_bf16_f32 v{P+i}, v{S+2*i}, v{S+2*i+1}" for i in range(8)]
        return L

    def q_epi1():
        acc = vACC0; S = vE
        side.add(f"v_add_f32 v{vGA}, v{vGA}, v{vGACC+7}\nds_write_b32 v{vAGP}, v{vGA}\nv_and_b32 v{vAGP}, 0xfffffcff, v{vAGP}")
        side.dist("p0end", 12)
        for i in range(6): side.add(f"v_cvt_pk_bf16_f32 v{acc+i}, v{acc+2*i}, v{acc+2*i+1}")
        side.add(f"{MF} {vr(S,16)}, {vr(vWPHI,4)}, {vr(acc,4)}, 0"); side.note("pk")
        for i in range(6, 8): side.add(f"v_cvt_pk_bf16_f32 v{acc+i}, v{acc+2*i}, v{acc+2*i+1}")
        side.add(f"ds_write_b128 v{vAVW}, {vr(acc+4,4)} offset:2176")
        for i in range(4): side.add(f"v_mov_b32 v{acc+12+i}, 0x3f803f80")
        side.dist("pk", 12)
        sl = softmax16(S, S, vE+16, False)
        sl = sl[:-4] + [f"ds_write_b128 v{vAPW}, {vr(S,4)}"] + sl[-4:] + [f"ds_write_b128 v{vAPW}, {vr(S+4,4)} offset:1088"]
        for ln in sl: side.add(ln)
        side.sync()
        for m_ in range(2):
            for t in range(2):
                side.add(f"ds_read_b64_tr_b16 {vr(vE+8*m_+t*2,2)}, v{vAPR} offset:{m_*SCRW + 64*t}")
                side.add(f"ds_read_b64_tr_b16 {vr(vE+8*m_+4+t*2,2)}, v{vAVR} offset:{m_*SCRW + 2176 + 64*t}")
            if m_ == 0: side.block(lambda: None, 100); side.block(lambda: a("s_waitcnt lgkmcnt(8)"), 0)
        side.add(f"ds_read2_b32 {vr(vXR,2)}, v{vAGP} offset0:0 offset1:64\nds_read2_b32 {vr(vXR+2,2)}, v{vAGP} offset0:128 offset1:192")
        side.add(f"ds_read_b128 {vr(vAVW2,4)}, v{vPK4}\nv_mov_b32 v{vNON}, s{sNON}")
        side.sync()
        side.add(f"{MF16} {vr(acc,4)}, {vr(vE,4)}, {vr(vE+4,4)}, 0\n{MF16} {vr(acc+4,4)}, {vr(vE,4)}, {vr(acc+12,4)}, 0")
        side.add(f"{MF16} {vr(acc,4)}, {vr(vE+8,4)}, {vr(vE+12,4)}, {vr(acc,4)}\n{MF16} {vr(acc+4,4)}, {vr(vE+8,4)}, {vr(acc+12,4)}, {vr(acc+4,4)}")
        side.dist("kvm", 8)
        def b_store():
            a.vm(f"buffer_store_dwordx4 {vr(acc,4)}, v{vPO}, {WS}, s{sPART} offen sc1", "part0")
            setexec(0x000f000f, 0x000f000f)
            a.vm(f"buffer_store_dwordx4 {vr(acc+4,4)}, v{vPO}, {WS}, s{sPART} offen offset:256 sc1", "part")
            a("s_mov_b64 exec, -1")
        side.block(b_store, 100)
        side.sync()
        side.add(f"v_add_f32 v{vXR}, v{vXR}, v{vXR+1}\nv_add_f32 v{vXR+2}, v{vXR+2}, v{vXR+3}\nv_add_f32 v{vXR}, v{vXR}, v{vXR+2}")
        side.add(f"v_mul_f32 v{vXR}, {f32(-LOG2E)}, v{vXR}\nv_exp_f32 v{vXR}, v{vXR}\ns_nop 0\nv_add_f32 v{vXR}, 1.0, v{vXR}\nv_rcp_f32 v{vG}, v{vXR}")
        if 14 < o["poi_it2"] < 24:
            for i in range(4): side.add(f"v_mov_b32 v{vXR+3-i}, -1")
    def q_epi2():
        acc = vACC1; kf = vE + 4
        side.dist("p1end", 12)
        for i in range(4): side.add(f"v_cvt_pk_bf16_f32 v{kf+i}, v{acc+2*i}, v{acc+2*i+1}")
        side.block(lambda: a.vm(f"buffer_store_dwordx4 {vr(kf,4)}, v{vL16}, {WS}, s{sKVB} offen sc1", "kvb0"), 0)
        side.add(f"ds_read_b128 {vr(acc,4)}, v{vAK8}\nds_read_b128 {vr(acc+4,4)}, v{vAK8} offset:1024")
        for i in range(4, 8): side.add(f"v_cvt_pk_bf16_f32 v{kf+i}, v{acc+2*i}, v{acc+2*i+1}")
        side.block(lambda: a.vm(f"buffer_store_dwordx4 {vr(kf+4,4)}, v{vVO}, {WS}, s{sKVB} offen offset:1024 sc1", "kvb"), 0)
        if o["poi_it"] == 16: side.block(lambda: a.vm(f"buffer_store_dwordx4 {vr(vXR,4)}, v{vL16}, {WS}, s{sOA} offen sc1", "poisonA"), 0)
        if o["poi_it2"] == 16: side.block(lambda: a.vm(f"buffer_store_dwordx4 {vr(vXR,4)}, v{vL16}, {WS}, s{sOB} offen sc1", "poison"), 0)
        side.sync()
        side.add(f"ds_write_b128 v{vAK8}, {vr(kf,4)}\nds_write_b128 v{vAVW2}, {vr(kf+4,4)} offset:1024")
    vHD = 208
    def h1load():
        poll_check(vFP, sF2P, sr(sF2M,2), "f2p")
        poll_check(vHP, sF1P, 15, "h1p", rec=26)
        for i in range(2): a.vm(f"buffer_load_dwordx4 {vr(vHD+4*i,4)}, v{vPO2}, {WS}, s{sH1L} offen offset:{i*2*PSTR} sc1", "h1l")
    def h1write(nhalo=0):
        if nhalo:
            a(f"s_waitcnt vmcnt({a.cnt_after('h1l') + nhalo})"); lab = only(f"s_cmp_lt_u32 s{sRB}, 4"); a(f"s_waitcnt vmcnt({a.cnt_after('h1l')})\n{lab}:")
        else: a(f"s_waitcnt vmcnt({a.cnt_after('h1l')})")
        for j in range(4): a(f"v_add_f32 v{vHD+j}, v{vHD+j}, v{vHD+4+j}")
        a(f"ds_write_b128 v{vHOW}, {vr(vHD,4)}")
    def h1fin():
        vX = 208
        n0 = a.ni
        lab = only(f"s_cmp_eq_u32 s{sW}, 0")
        for i in range(8): a(f"ds_read_b128 {vr(vX+4*i,4)}, v{vHOW} offset:{i*1024}")
        a(f"v_lshlrev_b32 v{vE+28}, 3, v{vL}\ns_waitcnt lgkmcnt(0)")
        for st in (16, 8, 4):
            for j in range(0, st, 2): a(f"v_pk_add_f32 {vr(vX+j,2)}, {vr(vX+j,2)}, {vr(vX+st+j,2)}")
        for j in range(4): a(f"v_mov_b32 v{vX+4+j}, v{vX+j}")
        a("s_nop 0")
        for j in range(4): a(f"v_permlane32_swap_b32 v{vX+j}, v{vX+4+j}")
        a("s_nop 0")
        a(f"v_pk_add_f32 {vr(vX,2)}, {vr(vX,2)}, {vr(vX+4,2)}\nv_pk_add_f32 {vr(vX+2,2)}, {vr(vX+2,2)}, {vr(vX+6,2)}")
        a(f"v_cvt_pk_bf16_f32 v{vX+10}, v{vX}, v{vX+1}\nv_cvt_pk_bf16_f32 v{vX+11}, v{vX+2}, v{vX+3}")
        setexec(0xffffff, 0)
        a(f"buffer_store_dwordx2 {vr(vX+10,2)}, v{vE+28}, {WS}, s{sKVFS} offen sc1\ns_mov_b64 exec, -1")
        a(f"{lab}:"); a.ni = n0 + 2

    vHV, vCA, vC0 = 3, 4, 5
    def halo_ln(s_): return f"s_add_u32 m0, s{sW1K}, {s_*8192}\nv_add_u32 v{vHV}, 8192, v{vHV}\nv_and_b32 v{vHV}, 0xffffff, v{vHV}\nbuffer_load_dwordx4 v{vHV}, {sr(sX,4)}, 0 offen sc1 lds"
    hl = list(range(8))
    def halo():
        if hl: t_ = halo_ln(hl.pop(0)).rsplit("\n", 1); a(t_[0]); a.vm(t_[1], "halo")
    def q_halo_setup():
        side.block(lambda: a(f"s_lshl_b32 s{sT0}, s{sHG}, 19\ns_add_u32 s{sT0}, s{sT0}, {WS_KVB}\ns_add_u32 s{sX}, s{sWS}, s{sT0}\ns_addc_u32 s{sX+1}, s{sWS+1}, 0\ns_mov_b32 s{sX+2}, 524288\ns_mov_b32 s{sX+3}, 0x20000"), 4)
        side.add(f"s_sub_u32 s{sHAL}, s{sHAL}, 8192\nv_add_u32 v{vHV}, s{sHAL}, v{vL16}")
        side.add(f"v_lshrrev_b32 v{vCA}, 4, v{vL}\nv_lshlrev_b32 v{vCA}, 13, v{vCA}\nv_and_b32 v{vC0}, 15, v{vL}\nv_lshl_add_u32 v{vCA}, v{vC0}, 6, v{vCA}")
        side.add(f"v_bfe_u32 v{vC0}, v{vL}, 1, 4\nv_lshl_add_u32 v{vCA}, v{vC0}, 2, v{vCA}\nv_add_u32 v{vCA}, s{sW1K}, v{vCA}")
        side.add(f"v_lshrrev_b32 v{vF4O}, 2, v{vL}\nv_lshlrev_b32 v{vF4O}, 7, v{vF4O}\nv_and_b32 v{vC0}, 3, v{vL}\nv_lshl_add_u32 v{vF4O}, v{vC0}, 3, v{vF4O}")
        side.add(f"s_lshl_b32 s{sU0}, s{sRW}, 2\ns_add_u32 s{sF4P}, s{sF4P}, s{sU0}\ns_lshl_b32 s{sU0}, s{sW}, 2\ns_add_u32 s{sF4S}, s{sF4S}, s{sU0}")
    wh_ = [w_ for w_ in (2, 3) if o[f"wpf{w_}"] == -2]
    if wh_: wprefetch(wh_)
    if o["wopf"] == -2: woprefetch()
    stamp("pre")
    a(f"s_waitcnt vmcnt({a.cnt_after('misc')}) lgkmcnt(0)\ns_barrier")
    stamp("first")
    for s in range(4): a(rd_w(0, s, 0)); a(rd_w(0, s, 1))
    c2late = ("w", 2, 1) not in a.q
    if c2late: dma(2, "x")
    for s in range(4): a(rd_x(0, s))
    a(rd_g(0))
    if c2late: dma(2, 0); dma(2, 1)
    if o.get("sched") == 4:
        order = {5: [8, 9], 6: [10, 11], 7: [12, 13], 8: [14], 9: [15], 10: [16], 11: [17], 12: [18], 13: [19, 20], 14: [21, 22], 15: [23]}
    if o.get("sched") == 5:
        order = {5: [8], 6: [9, 10], 7: [11], 8: [12, 13], 9: [14, 15], 10: [16], 11: [17], 12: [18], 13: [19, 20], 14: [21, 22], 15: [23]}
    if o.get("sched") == 3: dma(3, "x"); dma(3, 0); dma(3, 1)
    a(f"s_mul_i32 s{sNON}, s82, 0x9E3779B1\ns_add_u32 s{sNON}, s{sNON}, 0x7F4A7C15\ns_cmp_eq_u32 s{sNON}, -1\ns_cselect_b32 s{sNON}, 0x2545F491, s{sNON}")
    a("s_waitcnt lgkmcnt(8)")
    a(f"ds_read_b64_tr_b16 {vr(vWPHI,2)}, v{vWPA}\nds_read_b64_tr_b16 {vr(vWPHI+2,2)}, v{vWPA} offset:256")
    side.sync()
    for ln in Z: side.add(ln)
    if not pre_done: side.block(prewrite, 8)
    for i in range(4): side.add(f"v_xor_b32 v{vWPHI+i}, v{vWPHI+i}, v{vSG}")
    W2 = lambda c_: [(c_, 0), (c_, 1)]
    sched = {n: [(n+3, "x")] + W2(n+3) for n in range(5)}
    if o["xpair"]:
        sched = {0: [(3, "x"), (4, "x")] + W2(3), 1: W2(4), 2: [(5, "x"), (6, "x"), (7, "x")] + W2(5), 3: W2(6), 4: W2(7)}
    order = {5: [8], 6: [9], 7: [10], 8: [11, 12], 9: [13, 14], 10: [15, 16], 11: [17], 12: [18], 13: [19, 20], 14: [21], 15: [22], 16: [], 17: [23]}
    if o.get("sched") == 1: order = {5: [8, 9], 6: [10], 7: [11], 8: [12, 13], 9: [14, 15], 10: [16], 11: [17], 12: [18], 13: [19], 14: [20], 15: [21], 17: [22], 18: [23]}
    if o.get("sched") == 2: order = {5: [8], 6: [9], 7: [10], 8: [11, 12], 9: [13, 14], 10: [15, 16], 11: [17], 12: [18], 13: [19, 20], 14: [21, 22], 15: [23]}
    if o.get("sched") == 4:
        order = {5: [8, 9], 6: [10, 11], 7: [12, 13], 8: [14], 9: [15], 10: [16], 11: [17], 12: [18], 13: [19, 20], 14: [21, 22], 15: [23]}
    if o.get("sched") == 5:
        order = {5: [8], 6: [9, 10], 7: [11], 8: [12, 13], 9: [14, 15], 10: [16], 11: [17], 12: [18], 13: [19, 20], 14: [21, 22], 15: [23]}
    if o.get("sched") == 3:
        sched = {n: [(n+4, "x")] + W2(n+4) for n in range(4)}
        order = {4: [8, 9], 5: [10, 11], 6: [12], 7: [13], 8: [14], 9: [15], 10: [16], 11: [17], 12: [18], 13: [19, 20], 14: [21, 22], 15: [23]}
    for n_, cs in order.items():
        sched[n_] = [d_ for c_ in cs for d_ in W2(c_)]
        for c_ in cs:
            prev = [m_ for m_ in range(c_) if slot(m_) == slot(c_)]
            assert not prev or prev[-1] <= n_, (c_, n_)
            assert n_ < c_ - 1
    woa_its = [o["woa0"], o["woa1"], o["woa2"], o["woa3"]]
    for k_, it_ in enumerate(woa_its):
        assert it_ >= 16 + k_
        if it_ < 24: sched.setdefault(it_, []).extend(W2(24 + k_))
    for n in range(24):
        p, i = divmod(n, 8)
        a.c(f"---- iteration {n}")
        w = a.cnt_after(("w", n+1, 1)) if n < 23 else 63
        if n < 7: w = min(w, a.cnt_after(("x", n+1)))
        if n == o["f1_it"]: w = min(w, a.cnt_after("part"))
        if n == 23: w = min(w, a.cnt_after(("w", 27, 1)))
        a(f"s_waitcnt vmcnt({w}) lgkmcnt(0)" if w < 63 else "s_waitcnt lgkmcnt(0)")
        a("s_barrier")
        stamp_b()
        side.barrier_passed()
        if n == 6: assert "rec" in a.q
        if n == 14: assert "part" in a.q
        if n == 8: assert not side.u; q_epi1()
        if n == 16: assert not side.u, side.u; q_epi2()
        if n == 18: q_halo_setup()
        acc = vACC0 if p != 1 else vACC1
        def M(s):
            cc = "0" if (i == 0 and s == 0) else vr(acc, 16)
            a(f"{MF} {vr(acc,16)}, {vr(vWF+(n%2)*16+s*4,4)}, {vr(vX+i*16+s*4,4)}, {cc}")
        nx = n + 1
        dl = list(sched.get(n, []))
        def D(pos, npos):
            tot = len(sched.get(n, []))
            k0, k1 = -(-tot * pos // npos), -(-tot * (pos + 1) // npos)
            for _ in range(k1 - k0): dma(*dl.pop(0))
        if p == 0:
            if i == 1: a(f"v_mov_b32 v{vGA}, v{vGACC}")
            if i > 1: a(f"v_add_f32 v{vGA}, v{vGA}, v{vGACC+i-1}")
            a(f"{MF} {vr(vGACC,16)}, {vr(vGF,4)}, {vr(vGXF,4)}, 0")
            if nx < 8:
                for s in range(3): a(rd_x(nx, s))
            D(0, 3)
            M(0)
            if nx < 8: a(rd_x(nx, 3)); a(rd_g(nx))
            if n == 7:
                for i_ in range(4): a(f"v_mov_b32 v{vXR+i_}, -1")
                if o["pkv_it"] == 7: a.vm(f"buffer_store_dwordx4 {vr(vXR,4)}, v{vL16}, {WS}, s{sKVB} offen sc1", "pk0")
            wh_ = [w_ for w_ in (2, 3) if o[f"wpf{w_}"] == n]
            if wh_: wprefetch(wh_)
            if n == o["wopf"]: woprefetch()
            side.slot(o["bud0"])
            M(1)
            for s in range(2): a(rd_w(nx, s, 0)); a(rd_w(nx, s, 1))
            D(1, 3)
            M(2)
            for s in range(2, 4): a(rd_w(nx, s, 0)); a(rd_w(nx, s, 1))
            side.slot(o["bud0"])
            D(2, 3)
            M(3)
            if n == 7: side.pos["p0end"] = a.ni
        else:
            B = o["bud1"] if p == 1 else (12 if n < 18 else 3)
            M(0)
            if n == o["f1_it"]: flag(sF1S)
            if n == o["h1_poll"]: poll_issue(vFP, sF2P, sr(sF2M,2), "f2p"); poll_issue(vHP, sF1P, 15, "h1p")
            if nx < 24:
                for s in range(2): a(rd_w(nx, s, 0)); a(rd_w(nx, s, 1))
            if n == o["h1_load"]: h1load()
            if n == o["poi_it"] and n != 16 and n < 24: a.vm(f"buffer_store_dwordx4 {vr(vXR,4)}, v{vL16}, {WS}, s{sOA} offen sc1", "poisonA")
            if n == o["poi_it2"] and n != 16: a.vm(f"buffer_store_dwordx4 {vr(vXR,4)}, v{vL16}, {WS}, s{sOB} offen sc1", "poison")
            if n == o["pkv_it"]: a.vm(f"buffer_store_dwordx4 {vr(vXR,4)}, v{vL16}, {WS}, s{sKVB} offen sc1", "pk0")
            if n == o["pkv_it2"]: a.vm(f"buffer_store_dwordx4 {vr(vXR,4)}, v{vL16}, {WS}, s{sKVB} offen offset:1024 sc1", "pk1")
            D(0, 4)
            side.slot(B)
            M(1)
            if nx < 24:
                for s in range(2, 4): a(rd_w(nx, s, 0)); a(rd_w(nx, s, 1))
            D(1, 4)
            side.slot(B)
            if n == 23:
                for _ in range(o["hloop"] // 2): halo()
            M(2)
            if n == 23:
                for _ in range(o["hloop"] - o["hloop"] // 2): halo()
            D(2, 4)
            if n == o["wpf3"]: wprefetch([3])
            if n == o["wopf"]: woprefetch()
            if n == o["h1_wr"]: h1write()
            side.slot(B)
            D(3, 4)
            M(3)
            if n == 15: side.pos["p1end"] = a.ni
        assert not dl
        if o.get("allit"):
            if n < 23: stamp_a(f"it{n}")
        elif n in (3, 7, 11, 15, 19): stamp_a(f"it{n}")
    assert not side.u, side.u
    nend = a.ni
    stamp("T3")
    vQ, vPHI, vKV = 8, 64, 72
    vSA, vSB, vO = 192, 208, 224
    vP, vKA, vKB = 240, 248, 252
    vVA, vVB = 80, 88
    vWO = 128
    vT = 30
    acc = vACC0; vPOI = acc + 4
    def rdK(dst, j): a(f"ds_read_b128 {vr(dst,4)}, v{vAK8}" if j == 8 else f"ds_read_b128 {vr(dst,4)}, v{vAK} offset:{j*8192}")
    def rdV(dst, ad_):
        for mf in range(2):
            for t in range(2): a(f"ds_read_b64_tr_b16 {vr(dst+4*mf+2*t,2)}, v{ad_} offset:{256*mf+128*t}")
    def qk(S, K, C="0"): a(f"{MF} {vr(S,16)}, {vr(K,4)}, {vr(vQ,4)}, {C}")
    def pv(V, P, first=False): a(f"{MF} {vr(vO,16)}, {vr(V,4)}, {vr(P,4)}, {'0' if first else vr(vO,16)}")
    def rdwo_list(dst, ads):
        return [f"ds_read_b64_tr_b16 {vr(dst + hd*8 + ct*4 + t*2, 2)}, v{ads[ct]} offset:{(16*hd+4*t)*128}"
                for hd in range(8) for ct in range(2) for t in range(2)]
    def kv_loads(tag="kvl"):
        for fq in range(4):
            ln = f"buffer_load_dwordx2 {vr(vKV+2*fq,2)}, v{vKVO}, {WS}, s{sKVS} offen offset:{fq*256} sc1"
            if tag: a.vm(ln, tag)
            else: yield ln
    if o["h1_wr"] <= 22: h1fin()
    rdK(vKA, 8); rdV(vVA, vAV)
    a(f"v_sub_u32 v{vAV}, v{vAV}, v{vAVI}\nv_mov_b32 v{vE+16}, {f32(0.25*LOG2E)}")
    for k_, it_ in enumerate(woa_its):
        if it_ >= 24: dma(24 + k_, 0); dma(24 + k_, 1)
    a.pad(nend, 12)
    for i in range(4): a(f"v_cvt_pk_bf16_f32 v{acc+i}, v{acc+2*i}, v{acc+2*i+1}")
    for r_ in range(8, 16, 2): a(f"v_pk_mul_f32 {vr(acc+r_,2)}, {vr(acc+r_,2)}, {vr(vE+16,2)} op_sel_hi:[1,0]")
    a(f"{MF} {vr(vE,16)}, {vr(vWPHI,4)}, {vr(acc,4)}, 0"); n0 = a.ni
    for i in range(4): a(f"v_cvt_pk_bf16_f32 v{vQ+i}, v{acc+8+2*i}, v{acc+8+2*i+1}")
    a("s_nop 0\ns_waitcnt lgkmcnt(0)"); qk(vSA, vKA)
    a.pad(n0, 12)
    fill = softmax16(vE, vPHI, vE+16)
    for r_ in range(16): fill.append(f"v_exp_f32 v{vSA+r_}, v{vSA+r_}")
    for i in range(8): fill.append(f"v_cvt_pk_bf16_f32 v{vP+i}, v{vSA+2*i}, v{vSA+2*i+1}")
    for i in range(8): fill.append(f"v_and_b32 v{vP+i}, v{vP+i}, v{vM+i}")
    for i in range(8): fill.append(f"v_not_b32 v{vM+i}, v{vM+i}")
    fill.append(f"{MF} {vr(vO,16)}, {vr(vVA,4)}, {vr(vP,4)}, 0"); fill.append(f"{MF} {vr(vO,16)}, {vr(vVA+4,4)}, {vr(vP+4,4)}, {vr(vO,16)}")
    hb, h0, hstep = o["h1_wr"] - 100, o["hpos"], o["hstep"]
    wl = rdwo_list(vWO, (vWA0, vWA1)); nrd = 0
    vPOI = acc + 4
    pois = [("poisonA", sOA), ("poison", sOB)] if o["poi_it"] >= 24 else []
    if pois:
        for i in range(4): a(f"v_mov_b32 v{vPOI+i}, -1")
    for k_, ln in enumerate(fill):
        if k_ == hb:
            h1write()
            a("s_waitcnt lgkmcnt(0)\ns_barrier"); stamp("Bm"); h1fin(); a.mark("kvf")
        a(ln)
        if k_ >= h0 and (k_ - h0) % hstep == 0:
            if hl: halo()
            elif pois and o["poi_it"] == 24:
                t_, so_ = pois.pop(0); a.vm(f"buffer_store_dwordx4 {vr(vPOI,4)}, v{vL16}, {WS}, s{so_} offen sc1", t_)
        if k_ >= o["wrd0"] and wl and (k_ % o["wrds"] == 0):
            a(wl.pop(0)); nrd += 1
            if nrd % 8 == 0: a("s_waitcnt lgkmcnt(6)")
    while hl: halo()
    while wl:
        a(wl.pop(0)); nrd += 1
        if nrd % 8 == 0: a("s_waitcnt lgkmcnt(6)")
    stamp("fill")
    chk = (f"ds_read_b32 v{vC0}, v{vCA}\nds_read_b32 v{vC0+1}, v{vCA} offset:32768\ns_waitcnt lgkmcnt(0)\n"
           f"v_max_u32 v{vC0}, v{vC0}, v{vC0+1}\nv_cmp_eq_u32 vcc, -1, v{vC0}")
    if o["stamps"]: a(f"s_mov_b32 s{sSPIN}, 0")
    if a.cnt_after("kvf") <= a.cnt_after("halo"):
        a(f"s_waitcnt vmcnt({a.cnt_after('halo')+1})"); lab = only(f"s_cmp_lg_u32 s{sW}, 0"); a(f"s_waitcnt vmcnt({a.cnt_after('halo')})\n{lab}:")
    else: a(f"s_waitcnt vmcnt({a.cnt_after('halo')})")
    a(f"{chk}\ns_cbranch_vccnz L_hre\nL_hok:")
    stubs.append(f"L_hre:\ns_mov_b32 s{sSPIN}, 0\nL_hreb:\nv_subrev_u32 v{vHV}, 65536, v{vHV}\n" + "\n".join(halo_ln(s_) for s_ in range(8)) +
                 f"\ns_add_u32 s{sSPIN}, s{sSPIN}, 1\ns_cmp_gt_u32 s{sSPIN}, {SPIN_MAX}\ns_waitcnt vmcnt(0)\ns_cbranch_scc1 L_hok\n{chk}\ns_cbranch_vccnz L_hreb\ns_branch L_hok")
    spinrec(27)
    a("s_barrier")
    stamp("B1")
    rdK(vKA, 7); rdK(vKB, 6); rdV(vVB, vAV)
    if o["prio"]:
        lab = only(f"s_cmp_ge_u32 s{sW}, 4"); a(f"s_setprio 1\n{lab}:")
    while pois:
        t_, so_ = pois.pop(0); a.vm(f"buffer_store_dwordx4 {vr(vPOI,4)}, v{vL16}, {WS}, s{so_} offen sc1", t_)
    a("s_waitcnt lgkmcnt(5)")
    qk(vSB, vKA); n0 = a.ni
    if o["kvl_blk"] == 8: list(kv_loads())
    def flag4():
        a(f"s_waitcnt vmcnt({a.cnt_after('poison')})\ns_mov_b64 exec, 1"); a.vm(f"buffer_store_dword v{vNON}, v{vL16}, {WS}, s{sF4S} offen sc1", "f4s"); a("s_mov_b64 exec, -1")
    if o["f4s_blk"] == 8: flag4()
    def kv_check():
        lp, ld = a.label("Lkv"), a.label("Lkvd")
        k0 = vE + 24
        chk = f"v_max3_u32 v{k0}, v{vKV}, v{vKV+2}, v{vKV+4}\nv_max_u32 v{k0}, v{k0}, v{vKV+6}\nv_cmp_eq_u32 vcc, -1, v{k0}"
        if o["stamps"]: a(f"s_mov_b32 s{sSPIN}, 0")
        a(f"s_waitcnt vmcnt({a.cnt_after('kvl')})\n{chk}\ns_cbranch_vccnz {lp}\n{ld}:")
        stubs.append(f"{lp}:\ns_mov_b32 s{sSPIN}, 0\n{lp}b:\n" + "\n".join(kv_loads(None)) + f"\ns_add_u32 s{sSPIN}, s{sSPIN}, 1\ns_cmp_gt_u32 s{sSPIN}, {SPIN_MAX}\ns_waitcnt vmcnt(0)\ns_cbranch_scc1 {ld}\n{chk}\ns_cbranch_vccnz {lp}b\ns_branch {ld}")
        spinrec(28)
        a(f"{MF} {vr(vE,16)}, {vr(vKV,4)}, {vr(vPHI,4)}, 0\n{MF} {vr(vE,16)}, {vr(vKV+4,4)}, {vr(vPHI+4,4)}, {vr(vE,16)}")
    def oa_1(): a(f"v_add_f32 v{vE+24}, {f32(1e-6)}, v{vE+8}\nv_rcp_f32 v{vE+24}, v{vE+24}")
    def oa_2():
        a(f"v_mul_f32 v{vE+24}, v{vE+24}, v{vG}")
        for r2 in range(8): a(f"v_mul_f32 v{vE+r2}, v{vE+r2}, v{vE+24}")
        for i in range(4): a(f"v_cvt_pk_bf16_f32 v{vE+16+i}, v{vE+2*i}, v{vE+2*i+1}")
    def oa_3():
        a.vm(f"buffer_store_dwordx4 {vr(vE+16,4)}, v{vL16}, {WS}, s{sOA} offen sc1", "oa")
    dm = [(k_, b) for k_ in range(4) for b in range(2)]
    def dma_wob():
        if dm:
            k_, b = dm.pop(0)
            a(f"s_add_u32 m0, s{sW1K}, {RING + k_*16384 + b*8192}\ns_nop 0")
            a.vm(f"buffer_load_dwordx4 v{vWOD}, {sr(sWOB,4)}, s{sWOF+2*k_+b} offen lds", "wob")
    vOFA, vOFB = 96, 64
    def ofr(k_): return (vOFA + 4*k_) if k_ < 8 else (vOFB + 4*(k_-8))
    def oload_ln(k_): return f"buffer_load_dwordx4 {vr(ofr(k_),4)}, v{vL16}, {WS}, s{sOL + k_//4} offen offset:{(k_%4)*1024} sc1"
    cur, nxt, vc, vn, kc, kn = vSB, vSA, vVB, vVA, vKB, vKA
    oal = list(range(8))
    wob0 = o.get("wob_blk", 7)
    exits = []
    class Rec:
        def __enter__(self): self.i = len(a.L); return self
        def __exit__(self, *e): exits[-1][1].extend(a.L[self.i:])
    for j in range(7, -1, -1):
        a.c(f"block {j}")
        E = lambda r_: a(f"v_exp_f32 v{cur+r_}, v{cur+r_}")
        def C(i_):
            a(f"v_cvt_pk_bf16_f32 v{vP+i_}, v{cur+2*i_}, v{cur+2*i_+1}")
        def A(i_):
            if j == 0: a(f"v_and_b32 v{vP+i_}, v{vP+i_}, v{vM+i_}")
        def mem(k):
            with Rec():
                if dm:
                    if j <= wob0 and k % 2 == 0: dma_wob()
                elif j <= o["oal_blk"] and oal:
                    k_ = oal.pop(0); a.vm(oload_ln(k_), ("ol", k_))
        if j == 7: a.pad(n0, 10)
        else: E(0); E(1); pv(vn+4, vP+4)
        exits.append((j, []))
        a(f"s_cmp_lt_u32 s{sQB}, {8-j}\ns_cbranch_scc1 L_ex{j}")
        if j == 7: E(0); E(1)
        if j == o["prio_blk"] and o["prio"]: a("s_setprio 0")
        if j in (3,): stamp(f"blk{j}")
        with Rec():
            if j == o["kvl_blk"]: list(kv_loads())
            if j == o["f4s_blk"]: flag4()
            if j == o["oal_blk"] + 1 or (j == 0 and o["oal_blk"] < 0): poll_issue(vF4P, sF4P, "0xff", "f4p", vF4O)
            if j == o["oal_blk"]: poll_check(vF4P, sF4P, "0xff", "f4p", 25, vF4O)
        E(2); E(3); mem(0); E(4); E(5)
        if j == o["kv_blk"]:
            with Rec(): kv_check()
            exits[-1][1].append("    s_nop 11")
        a("s_waitcnt lgkmcnt(0)")
        E(6); E(7)
        if j > 0:
            qk(nxt, kc)
            if j > 1: rdK(kn, j-2)
            a(f"v_sub_u32 v{vAV}, v{vAV}, v{vAVI}")
        C(0); C(1); mem(1); E(8); E(9); C(2); C(3); A(0); A(1); E(10); A(2); A(3); E(11)
        if j > 0: rdV(vn, vAV)
        E(12)
        if j == o["kv_blk"]:
            with Rec(): oa_1()
            exits[-1][1].append("    s_nop 0")
        pv(vc, vP); mem(2); E(13); E(14); E(15)
        if j == o["kv_blk"]:
            with Rec():
                oa_2()
                if o["f4s_blk"] < j: a(f"s_waitcnt vmcnt({a.cnt_after('poisonA')})")
                oa_3()
        C(4); C(5); mem(3); C(6); C(7); A(4); A(5); A(6); A(7)
        cur, nxt = nxt, cur; vc, vn = vn, vc; kc, kn = kn, kc
    a("s_nop 1"); pv(vn+4, vP+4)
    a("L_attn_end:")
    import re as _re
    ex = []
    for j, body in exits:
        ex.append(f"L_ex{j}:"); ex += body
    ex = "\n".join(ex)
    labs = set(_re.findall(r"^(L(?:poll|pd|kv|kvd)_\d+):", ex, _re.M)) | set(_re.findall(r"(L(?:poll|kv)_\d+)", ex))
    st2 = [t_ for t_ in stubs if any(t_.startswith(l_ + ":") for l_ in labs)]
    ren = lambda t_: _re.sub(r"(L(?:poll|pd|kv|kvd)_\d+)", r"\1x", t_)
    stubs.append(ren(ex) + "\ns_waitcnt lgkmcnt(0)\ns_setprio 0\ns_branch L_attn_end")
    stubs.extend(ren(t_) for t_ in st2)
    assert not dm
    a(f"v_sub_f32 v{vT+1}, 1.0, v{vG}\nv_mov_b32 v12, v{vWA0}\nv_mov_b32 v13, v{vWA1}\ns_nop 8")
    a(f"v_cmp_lt_f32 vcc, {f32(2.0**-64)}, v{vO+8}\nv_rcp_f32 v{vT}, v{vO+8}\ns_mov_b64 {sr(sP,2)}, vcc\nv_cmp_gt_f32 vcc, {f32(2.0**64)}, v{vO+8}\ns_nop 1")
    a(f"s_and_b64 {sr(sP,2)}, {sr(sP,2)}, vcc\ns_cmp_eq_u64 {sr(sP,2)}, -1")
    a("s_branch L_maxpath" if o["force_fallback"] else "s_cbranch_scc0 L_maxpath")
    a("L_attn_ok:")
    a(f"v_mul_f32 v{vT}, v{vT}, v{vT+1}")
    for r_ in range(0, 8, 2): a(f"v_pk_mul_f32 {vr(vO+r_,2)}, {vr(vO+r_,2)}, {vr(vT,2)} op_sel_hi:[1,0]")
    for i in range(4): a(f"v_cvt_pk_bf16_f32 v{vQ+i}, v{vO+2*i}, v{vO+2*i+1}")
    a.vm(f"buffer_store_dwordx4 {vr(vQ,4)}, v{vL16}, {WS}, s{sOB} offen sc1", "ob")
    stamp("attn")
    if o["oal_blk"] < 0: poll_check(vF4P, sF4P, "0xff", "f4p", 25, vF4O)
    for k_ in oal: a.vm(oload_ln(k_), ("ol", k_))
    pass
    wl = rdwo_list(vWO + 64, (12, 13))
    row, bw, br0, br1, vout = 24, 25, 26, 27, 28
    ad = []
    ad += f"v_and_b32 v{row}, 31, v{vL}\ns_lshl_b32 s{sT0}, s{sRW}, 5\nv_add_u32 v{row}, s{sT0}, v{row}\nv_lshrrev_b32 v{bw}, 5, v{vL}".split("\n")
    ad += f"v_and_b32 v{br0}, 15, v{row}\nv_xor_b32 v{bw}, v{bw}, v{br0}\nv_lshlrev_b32 v{bw}, 4, v{bw}\nv_lshl_add_u32 v{bw}, v{row}, 8, v{bw}".split("\n")
    ad += f"s_lshl_b32 s{sT0}, s{sH}, 14\nv_add_u32 v{bw}, s{sT0}, v{bw}".split("\n")
    ad += [f"v_xor_b32 v{vM+k_}, {2*k_*16}, v{bw}" for k_ in range(8)]
    ad += f"v_lshrrev_b32 v{row}, 3, v{vL}\ns_lshl_b32 s{sT0}, s{sW}, 3\nv_add_u32 v{row}, s{sT0}, v{row}".split("\n")
    ad += f"v_and_b32 v{br0}, 7, v{vL}\nv_lshlrev_b32 v{br0}, 1, v{br0}\nv_and_b32 v{br1}, 15, v{row}\nv_xor_b32 v{br0}, v{br0}, v{br1}".split("\n")
    ad += f"v_lshlrev_b32 v{br0}, 4, v{br0}\nv_lshl_add_u32 v{br0}, v{row}, 8, v{br0}\nv_xor_b32 v{br1}, 16, v{br0}".split("\n")
    ad += f"v_and_b32 v{vout}, 7, v{vL}\nv_lshlrev_b32 v{vout}, 4, v{vout}\nv_lshl_add_u32 v{vout}, v{row}, 10, v{vout}".split("\n")
    a(f"s_mov_b32 s{sSPIN}, 0")
    obk = o["obk"]; bk = o["bark"]; nissued = 0
    for k_ in range(16):
        if k_ == bk:
            a(f"s_waitcnt vmcnt({a.cnt_after('wob')})\ns_barrier")
            stamp("B5")
            for q_ in range(o["nwob"]):
                a(wl.pop(0)); nissued += 1
                if q_ % 8 == 3 and q_ > 4: a("s_waitcnt lgkmcnt(4)")
        if k_ == obk:
            a(f"s_waitcnt vmcnt({a.cnt_after('ob')})")
            stamp("obAck")
            for k2 in range(8, 16): a.vm(oload_ln(k2), ("ol", k2))
        if k_ >= 8: a(f"s_waitcnt vmcnt({a.cnt_after(('ol', k_))}) lgkmcnt({min(8, max(0, nissued - 4*(k_-7)))})")
        else: a(f"s_waitcnt vmcnt({a.cnt_after(('ol', k_))})")
        a(f"L_ob{k_}:\nv_cmp_eq_u32 vcc, -1, v{ofr(k_)}\ns_cbranch_vccnz L_obre{k_}\nL_obok{k_}:")
        for ct in range(2):
            ac = vACC0 + 16*ct
            a(f"{MF} {vr(ac,16)}, {vr(vWO+k_*8+ct*4,4)}, {vr(ofr(k_),4)}, {'0' if k_ == 0 else vr(ac,16)}")
            for _ in range(2):
                if ad: a(ad.pop(0))
        if k_ >= bk and wl:
            if k_ < 8: a("s_waitcnt lgkmcnt(8)")
            for _ in range(4): a(wl.pop(0)); nissued += 1
        if k_ == 7: stamp("Ahalf")
    assert not ad and not wl
    spinrec(24)
    stamp("Bhalf")
    a("s_nop 10")
    for k_ in range(8): a(f"ds_write_b128 v{vM+k_}, {vr(vACC0+4*k_,4)}")
    a("s_waitcnt lgkmcnt(0)\ns_barrier")
    stamp("redw")
    R = 128
    for kq in range(4):
        a(f"ds_read_b128 {vr(R+kq*8,4)}, v{br0} offset:{kq*16384}\nds_read_b128 {vr(R+kq*8+4,4)}, v{br1} offset:{kq*16384}")
    for kq in range(1, 4):
        a(f"s_waitcnt lgkmcnt({6-2*kq})")
        for j in range(0, 8, 2): a(f"v_pk_add_f32 {vr(R+j,2)}, {vr(R+j,2)}, {vr(R+8*kq+j,2)}")
    for i in range(4): a(f"v_cvt_pk_bf16_f32 v{R+32+i}, v{R+2*i}, v{R+2*i+1}")
    a(f"buffer_store_dwordx4 {vr(R+32,4)}, v{vout}, {sr(sOUT,4)}, s{sOUTO} offen {o.get('oflag', '').replace('_', ' ')}")
    a(f"s_or_b32 s{sT1}, s2, s{sW}")
    lab = only(f"s_cmp_eq_u32 s{sT1}, 0")
    a(f"v_mov_b32 v{row}, s{sNON}\nv_lshlrev_b32 v{bw}, 2, v{vL}")
    setexec(0xffff, 0)
    a(f"buffer_store_dword v{row}, v{bw}, {WS}, 0 offen sc1\ns_mov_b64 exec, -1")
    a(f"{lab}:")
    if o["stamps"]:
        stamp("issued")
        a("s_waitcnt vmcnt(0)")
        stamp("end")
        a(f"s_memrealtime s[{sTS}:{sTS+1}]\ns_waitcnt lgkmcnt(0)\nv_writelane_b32 v7, s100, 29\nv_writelane_b32 v7, s98, 30\nv_writelane_b32 v7, s{sTS}, 31")
        a(f"s_lshl_b32 s{sT0}, s2, 3\ns_add_u32 s{sT0}, s{sT0}, s{sW}\ns_lshl_b32 s{sT0}, s{sT0}, 7\ns_add_u32 s{sT0}, s{sT0}, {WS_DBG}")
        a(f"v_lshlrev_b32 v{row}, 2, v{vL}\ns_mov_b32 exec_hi, 0\nbuffer_store_dword v7, v{row}, {WS}, s{sT0} offen")
    if o.get("probe"):
        if o["probe"] == "fin": a("s_waitcnt vmcnt(0)"); stamp("fin")
        if "padx" in o: a(f"s_and_b32 s96, s2, 7\ns_cmp_lg_u32 s96, {o['padx']}\ns_cbranch_scc1 L_exit")
        a("s_sub_u32 s100, s100, s98\ns_lshl_b32 s100, s100, 1\ns_add_u32 s100, s100, 3000")
        a("L_pad:\ns_memrealtime s[96:97]\ns_waitcnt lgkmcnt(0)\ns_sub_u32 s96, s96, s98\ns_cmp_lt_u32 s96, s100\ns_cbranch_scc1 L_pad")
    a("L_exit:\ns_endpgm")
    for hf_ in range(2):
        for k_ in range(8*hf_, 8*hf_ + 8): a(f"L_obre{k_}:\ns_mov_b32 s{sT2}, {k_}\ns_branch L_scan{hf_}")
        a(f"L_scan{hf_}:\ns_waitcnt vmcnt(0)")
        if o["rsleep"]: a(f"s_sleep {o['rsleep']}")
        for k_ in range(8*hf_, 8*hf_ + 8):
            a(f"v_cmp_eq_u32 vcc, -1, v{ofr(k_)}\ns_cbranch_vccz L_sc{k_}\n{oload_ln(k_)}\nL_sc{k_}:")
        a(f"s_add_u32 s{sSPIN}, s{sSPIN}, 1\ns_cmp_gt_u32 s{sSPIN}, {SPIN_MAX}\ns_waitcnt vmcnt(0)\ns_cbranch_scc1 L_give{hf_}")
        for k_ in range(8*hf_, 8*hf_ + 7): a(f"s_cmp_eq_u32 s{sT2}, {k_}\ns_cbranch_scc1 L_ob{k_}")
        a(f"s_branch L_ob{8*hf_+7}\nL_give{hf_}:")
        for k_ in range(8*hf_, 8*hf_ + 7): a(f"s_cmp_eq_u32 s{sT2}, {k_}\ns_cbranch_scc1 L_obok{k_}")
        a(f"s_branch L_obok{8*hf_+7}")
    for s_ in stubs: a(s_)
    a("L_maxpath:")
    m, ninf, ak, d = vT, 4, 5, 6
    vNEG = vACC0
    a(f"v_mov_b32 v{ninf}, 0xff800000\nv_lshrrev_b32 v{d}, 5, v{vL}\nv_lshlrev_b32 v{d}, 2, v{d}\nv_and_b32 v{ak}, 31, v{vL}\nv_sub_u32 v{d}, v{ak}, v{d}")
    for ph in range(2):
        C = "0" if ph == 0 else vr(vNEG, 16)
        if ph == 0: a(f"v_mov_b32 v{m}, v{ninf}")
        else:
            for r_ in range(16): a(f"v_mov_b32 v{vO+r_}, 0")
        a(f"s_mov_b32 s{sT0}, 8\ns_min_u32 s{sT1}, s{sQB}, 8\ns_sub_u32 s{sT1}, 8, s{sT1}\nv_mov_b32 v{ak}, v{vAK8}\nv_lshl_add_u32 v{vAV}, v{vAVI}, 3, v{vAV0}")
        a(f"L_mx{ph}:\nds_read_b128 {vr(vKA,4)}, v{ak}")
        if ph: rdV(vVA, vAV)
        a("s_waitcnt lgkmcnt(0)")
        qk(vSA, vKA, C); a("s_nop 15")
        for (blk, op) in ((8, "gt"), (0, "le")):
            lab = only(f"s_cmp_eq_u32 s{sT0}, {blk}")
            for r_ in range(16):
                a(f"v_cmp_{op}_i32 vcc, {8*(r_//4) + r_ % 4}, v{d}\ns_nop 1\nv_cndmask_b32_e64 v{vSA+r_}, v{vSA+r_}, v{ninf}, vcc")
            a(f"{lab}:")
        if ph == 0:
            for r_ in range(0, 16, 2): a(f"v_max3_f32 v{m}, v{m}, v{vSA+r_}, v{vSA+r_+1}")
        else:
            for r_ in range(16): a(f"v_exp_f32 v{vSA+r_}, v{vSA+r_}")
            for i in range(8): a(f"v_cvt_pk_bf16_f32 v{vP+i}, v{vSA+2*i}, v{vSA+2*i+1}")
            a("s_nop 1"); pv(vVA, vP); pv(vVA+4, vP+4)
        a(f"v_subrev_u32 v{ak}, 8192, v{ak}\nv_sub_u32 v{vAV}, v{vAV}, v{vAVI}\ns_sub_u32 s{sT0}, s{sT0}, 1\ns_cmp_ge_i32 s{sT0}, s{sT1}\ns_cbranch_scc1 L_mx{ph}")
        if ph == 0:
            a(f"v_mov_b32 v{ak}, v{m}\ns_nop 1\nv_permlane32_swap_b32 v{m}, v{ak}\ns_nop 1\nv_max_f32 v{m}, v{m}, v{ak}")
            for r_ in range(16): a(f"v_sub_f32 v{vNEG+r_}, 0, v{m}")
    a(f"s_nop 15\nv_rcp_f32 v{vT}, v{vO+8}\ns_branch L_attn_ok")
    a("L_codeend:")
    return a, o

HDR = open("gated_mix__linear_kernel_hedgehog__sliding_block__prompt.s.ref").read().split("; Override launch")[0]
def full(a, o):
    names = "; stamps: " + ",".join(o.get("_names", [])) + "\n" if o["stamps"] else ""
    return (HDR + names + f"; @launch grid=(256,1,1) block=(512,1,1) lds={LDS_BYTES}\n"
            '.amdgcn_target "amdgcn-amd-amdhsa--gfx950"\n.text\n'
            f".globl {NAME}\n.p2align 8\n.type {NAME},@function\n{NAME}:\n" + a.text() +
            '.section .rodata,"a"\n.p2align 6\n'
            f".amdhsa_kernel {NAME}\n  .amdhsa_next_free_vgpr 256\n  .amdhsa_next_free_sgpr 102\n"
            "  .amdhsa_accum_offset 256\n  .amdhsa_group_segment_fixed_size 0\n  .amdhsa_kernarg_size 88\n"
            "  .amdhsa_user_sgpr_count 2\n  .amdhsa_user_sgpr_kernarg_segment_ptr 1\n"
            "  .amdhsa_system_sgpr_workgroup_id_x 1\n.end_amdhsa_kernel\n")
if __name__ == "__main__":
    out = sys.argv[1]
    opts = {}
    for kv in sys.argv[2:]:
        if "=" in kv:
            k, v = kv.split("="); opts[k] = int(v) if v.lstrip("-").isdigit() else v
        else: opts[kv] = True
    open(out, "w").write(full(*gen(opts)))
```

```python
import sys, struct
NAME = "gated_mix__linear_kernel_hedgehog__sliding_block__prompt_kernel"

class Asm:
    def __init__(self):
        self.L = []; self.nlab = 0; self.q = []; self.ni = 0
    def __call__(self, s):
        for line in s.split("\n"):
            line = line.strip()
            if not line: continue
            if line.endswith(":"): self.L.append(line)
            else:
                self.L.append("    " + line)
                if not line.startswith(";"):
                    self.ni += (1 + int(line.split()[1])) if line.startswith("s_nop") else 1
    def c(self, s): self.L.append("    ; " + s)
    def label(self, b="L"):
        self.nlab += 1; return f"{b}_{self.nlab}"
    def vm(self, s, tag=None): self(s); self.q.append(tag)
    def mark(self, tag): self.q.append(("mark", tag))
    def cnt_after(self, tag):
        idx = None
        for i, t in enumerate(self.q):
            if t == tag or t == ("mark", tag): idx = i
        assert idx is not None, tag
        return sum(1 for t in self.q[idx+1:] if not (isinstance(t, tuple) and t[0] == "mark"))
    def pad(self, n0, need):
        have = self.ni - n0
        if have < need: self(f"s_nop {need - have - 1}")
    def text(self): return "\n".join(self.L) + "\n"

def icost(line):
    m = line.split()[0]
    if m.startswith(("v_exp", "v_rcp", "v_permlane")): return 2
    if m in ("v_mul_f32", "v_add_f32", "v_fma_f32", "v_mov_b32", "v_and_b32", "v_xor_b32"): return 0.7
    return 1

class Side:
    def __init__(self, a): self.a = a; self.u = []; self.pos = {}; self.deferred = False
    def add(self, s):
        for line in s.split("\n"):
            line = line.strip()
            if line: self.u.append(("i", line))
    def block(self, fn, cost): self.u.append(("b", fn, cost))
    def sync(self): self.u.append(("sync",))
    def note(self, name): self.u.append(("note", name))
    def dist(self, name, n): self.u.append(("dist", name, n))
    def slot(self, budget):
        while self.u and budget > 0:
            u = self.u[0]
            if u[0] == "sync": return
            if u[0] == "dist":
                have = self.a.ni - self.pos[u[1]]
                if have < u[2]:
                    if budget < 1e8 and not self.deferred:
                        self.deferred = True; return
                    self.a(f"s_nop {u[2]-have-1}")
                self.deferred = False
            self.u.pop(0)
            if u[0] == "i": self.a(u[1]); budget -= icost(u[1])
            elif u[0] == "b": u[1](); budget -= u[2]
            elif u[0] == "note": self.pos[u[1]] = self.a.ni
    def barrier_passed(self):
        if self.u and self.u[0][0] == "sync": self.u.pop(0)

def vr(b, n=1): return f"v{b}" if n == 1 else f"v[{b}:{b+n-1}]"
def sr(b, n=1): return f"s{b}" if n == 1 else f"s[{b}:{b+n-1}]"
def f32(x): return "0x%08x" % struct.unpack("<I", struct.pack("<f", x))[0]
MF = "v_mfma_f32_32x32x16_bf16"
MF16 = "v_mfma_f32_16x16x32_bf16"

XB, OWN, RING, MISC = 0, 65536, 81920, 147456
WPHI, GATEW, GP, ONES, H1S = MISC, MISC + 2048, MISC + 3072, MISC + 4096, MISC + 8192
LDS_BYTES = 163840
SCR, SCRW = XB + 32768, 3328
def slot(n):
    R = lambda i: RING + i * 16384
    X = lambda i: XB + i * 16384
    if n < 8: return R(n % 4)
    return [X(0), X(1), R(0), R(1), R(2), R(3), X(0), X(1), R(0), R(1), R(2), R(3), X(2), X(3), X(0), X(1), R(0), R(1), R(2), R(3)][n - 8]
WS_F1, WS_F2, WS_F4, WS_KVF = 0x10000, 0x20000, 0x30000, 0x40000
WS_PART = 0x100000
PSTR, SSTR = 320, 320 * 32
WS_KVB, WS_O, WS_DBG, WS_SIZE = 0x500000, 0x900000, 0xD00000, 0x1000000
LOG2E = 1.4426950408889634
sX, sWA, sWB, sWS, sWOA, sWOB, sOUT = 4, 8, 12, 16, 20, 24, 28
sCH = 32
sW, sRW, sH, sHG, sRB, sROT, sNON, sW1K, sQB = 40, 41, 42, 43, 44, 45, 46, 47, 48
sT0, sT1, sT2 = 50, 51, 52
sSPIN, sRB3, sCB = 53, 54, 55
sOA, sOB = 56, 57
sP = 58
sPART, sKVB, sF1S, sF2S, sF4S, sKVFS = 60, 61, 62, 63, 49, 3
sF1P, sH1L, sF2P, sHAL, sKVS, sF4P, sOUTO = 83, 84, 85, 86, 87, 88, 89
sF2M = 90
sWOF = 64
sOL = 72
sXO = 76
sTS = 96
sU0, sU1, sU2, sV0, sV1 = 92, 93, 94, 95, 81
vG, vL, vL16, vXD, vWDX, vWDY, vWRD = 0, 1, 2, 3, 4, 5, 6
vXR, vWPHI, vM = 8, 12, 16
vAPW, vAVW, vAPR, vAVR, vAGP, vAK8, vPO, vVO = 24, 25, 26, 27, 28, 29, 30, 31
vAVW2, vPO2, vWOD, vHOW = 24, 25, 26, 27
vNON = vAGP
vACC0, vACC1, vWF, vE, vX = 32, 48, 64, 96, 128
vAK, vAV, vAVI, vAV0, vKVO, vWA0, vWA1, vL128 = range(vACC1, vACC1 + 8)
vFP, vF4P, vHP, vF4O = vACC1 + 8, vACC1 + 9, vACC1 + 10, vACC1 + 11
vWRD2 = 124
SPIN_MAX = 200000

def gen(opts=None):
    o = dict(stamps=False, force_fallback=False, bud0=10, bud1=13, f1_it=16, h1_poll=20, h1_load=23, h1_wr=108, obk=8, bark=8, hpos=10, hstep=5, hloop=2, wrd0=12, wrds=2, prio=1, prio_blk=2, f4s_blk=7, pkv_it=8, pkv_it2=10, rsleep=0, nwob=32, poi_it=24, poi_it2=24, x1late=0,
             map24=True, kvl_blk=8, kv_blk=5, oal_blk=0, woa0=17, woa1=18, woa2=19, woa3=20, xpair=0, wopf=-2, wpf2=-2, wpf3=-2, sched=4,
             npro=110, c2pos=90)
    o.update(opts or {})
    a = Asm(); side = Side(a)
    nst = [0]; pend = []
    def stamp(name=""):
        if o.get("probe") == name: a("s_memrealtime s[100:101]\ns_waitcnt lgkmcnt(0)"); a.ni -= 2
        if not o["stamps"]: return
        if o.get("allit") and name != "first": return
        if o.get("light") and name != "end": return
        i = nst[0]; nst[0] += 1; assert i < 24
        a(f"s_memtime s[{sTS}:{sTS+1}]\ns_waitcnt lgkmcnt(0)\nv_writelane_b32 v7, s{sTS}, {i}"); a.ni -= 3
        o.setdefault("_names", []).append(name)
    def stamp_a(name):
        if o.get("probe") == name: a("s_memrealtime s[100:101]"); a.ni -= 1
        if not o["stamps"] or o.get("light"): return
        i = nst[0]; nst[0] += 1; assert i < 24
        a(f"s_memtime s[{sTS}:{sTS+1}]"); a.ni -= 1; pend.append(i); o.setdefault("_names", []).append(name)
    def stamp_b():
        if pend: a(f"v_writelane_b32 v7, s{sTS}, {pend.pop()}"); a.ni -= 1
    def spinrec(i):
        if o["stamps"]: a(f"v_writelane_b32 v7, s{sSPIN}, {i}"); a.ni -= 1
    def srd(d, src, nbytes):
        a(f"s_mov_b32 s{d}, s{src}\ns_and_b32 s{d+1}, s{src+1}, 0xffff\ns_mov_b32 s{d+2}, {nbytes}\ns_mov_b32 s{d+3}, 0x20000")
    def only(cond):
        lab = a.label("Lskip"); a(cond); a(f"s_cbranch_scc0 {lab}"); return lab
    def setexec(lo, hi):
        if hi == 0 and lo <= 64: a(f"s_mov_b64 exec, {lo}")
        else: a(f"s_mov_b32 exec_lo, 0x{lo:x}\ns_mov_b32 exec_hi, 0x{hi:x}")
    WS = sr(sWS, 4)
    t0, t1, t2, t3, t4, t5, t6, t7, t8, t9 = range(vACC1, vACC1 + 10)

    a("s_cmp_ge_u32 s2, 256\ns_cbranch_scc1 L_exit")
    a("s_load_dwordx4 s[64:67], s[0:1], 0\ns_load_dwordx4 s[68:71], s[0:1], 16\ns_load_dwordx4 s[76:79], s[0:1], 56")
    a("s_load_dwordx4 s[72:75], s[0:1], 40\ns_load_dwordx2 s[80:81], s[0:1], 80")
    if o["stamps"]: a("v_mov_b32 v7, 0\ns_memrealtime s[98:99]\ns_memtime s[100:101]")
    if o.get("probe"): a("s_memrealtime s[98:99]\ns_memrealtime s[100:101]")
    a(f"v_lshrrev_b32 v{t0}, 6, v0\nv_and_b32 v{vL}, 63, v0")
    a(f"s_lshr_b32 s{sT0}, s2, 3\nv_readfirstlane_b32 s{sW}, v{t0}")
    a(f"s_getpc_b64 s[{sP}:{sP+1}]\nL_pc:")
    a(f"s_sub_u32 s{sOUT}, s{sP}, L_pc-{NAME}\ns_subb_u32 s{sOUT+1}, s{sP+1}, 0\ns_and_b32 s{sOUT+1}, s{sOUT+1}, 0xffff\ns_mov_b32 s{sOUT+2}, L_codeend-{NAME}\ns_mov_b32 s{sOUT+3}, 0x20000")
    lab = only(f"s_cmp_eq_u32 s{sW}, 7")
    a(f"v_and_b32 v{t3}, 3, v{vL}\nv_lshlrev_b32 v{t3}, 7, v{t3}\ns_lshl_b32 s{sT1}, s{sT0}, 9")
    a(f"buffer_load_dword v{vE+31}, v{t3}, {sr(sOUT,4)}, s{sT1} offen")
    a(f"{lab}:")
    if not o["map24"]:
        a(f"s_and_b32 s{sHG}, s2, 7\ns_mov_b32 s{sRB}, s{sT0}\ns_add_u32 s{sROT}, s{sRB}, s{sHG}")
    else:
        a(f"s_and_b32 s{sRB}, s2, 1\ns_lshl_b32 s{sRB}, s{sRB}, 4\ns_and_b32 s{sT1}, s{sT0}, 15\ns_add_u32 s{sRB}, s{sRB}, s{sT1}")
        a(f"s_and_b32 s{sHG}, s2, 6\ns_lshr_b32 s{sT1}, s{sT0}, 4\ns_add_u32 s{sHG}, s{sHG}, s{sT1}")
        a(f"s_lshl_b32 s{sROT}, s{sHG}, 2\ns_lshr_b32 s{sT1}, s{sHG}, 1\ns_add_u32 s{sROT}, s{sROT}, s{sT1}\ns_add_u32 s{sROT}, s{sROT}, s{sRB}")
    a(f"s_and_b32 s{sROT}, s{sROT}, 7\ns_lshl_b32 s{sW1K}, s{sW}, 10\nv_lshlrev_b32 v{vL16}, 4, v{vL}")
    a(f"v_lshrrev_b32 v{t0}, 3, v0\nv_and_b32 v{t1}, 7, v{vL}\nv_bfe_u32 v{t2}, v{vL}, 4, 1")
    a(f"v_bfe_u32 v{t3}, v{t0}, 1, 3\nv_xor_b32 v{t3}, v{t3}, v{t1}\nv_lshlrev_b32 v{t3}, 4, v{t3}")
    a(f"s_lshl_b32 s{sT1}, s{sRB}, 6\nv_add_u32 v{t4}, s{sT1}, v{t0}\nv_lshl_add_u32 v{vXD}, v{t4}, 10, v{t3}")
    a(f"v_lshlrev_b32 v{t3}, 1, v{t2}\nv_xor_b32 v{t3}, v{t3}, v{t1}\nv_lshlrev_b32 v{t3}, 4, v{t3}")
    a(f"v_mul_u32_u24 v{t4}, 3072, v{t0}\ns_lshl_b32 s{sT1}, s{sHG}, 7\nv_add3_u32 v{vWDX}, v{t4}, v{t3}, s{sT1}")
    a(f"v_xor_b32 v{vWDY}, 64, v{vWDX}\ns_mul_i32 s{sCH}, s{sROT}, {64*3072}")
    a(f"s_lshl_b32 s{sT2}, s{sROT}, 7\nv_add_u32 v{t5}, s{sT2}, v{vL16}\nv_and_b32 v{t5}, 1023, v{t5}")
    a("s_waitcnt lgkmcnt(0)")
    if o.get("probe") == "karg": stamp("karg")
    srd(sX, 64, 2097152); srd(sWA, 66, 1572864)
    passes = [((sWA, 1024), (sWA, 2048)), ((sWB, 1024), (sWB, 2048)), ((sWA, 0), (sWB, 0))]
    def dma_x_m0(n): a(f"s_add_u32 m0, s{sW1K}, {XB + n*8192}")
    def dma_x_ld(n):
        if n == 0: so = sT2
        elif n < 3: a(f"s_add_u32 s{sT0}, s{sROT}, {n}\ns_and_b32 s{sT0}, s{sT0}, 7\ns_lshl_b32 s{sT0}, s{sT0}, 7"); so = sT0
        else: so = sXO + n - 3
        a.vm(f"buffer_load_dwordx4 v{vXD}, {sr(sX,4)}, s{so} offen lds", ("x", n))
    def dma_m0(n, b):
        if b == "x": return dma_x_m0(n)
        off = passes[n // 8][b][1] if n < 24 else 0
        v = slot(n) + b*8192 - off
        a(f"s_add_u32 m0, s{sW1K}, {v if v >= 0 else v + off}")
    def dma_ld(n, b):
        if a.L[-1].strip().startswith("s_add_u32 m0"): a("s_nop 0")
        if b == "x": return dma_x_ld(n)
        if n < 24:
            p, i = divmod(n, 8); d, off = passes[p][b]
            if slot(n) + b*8192 - off >= 0:
                a.vm(f"buffer_load_dwordx4 v{vWDX if b == 0 else vWDY}, {sr(d,4)}, s{sCH+i} offen offset:{off} lds", ("w", n, b))
            else:
                a(f"s_add_u32 s{sT2}, s{sCH+i}, {off}")
                a.vm(f"buffer_load_dwordx4 v{vWDX if b == 0 else vWDY}, {sr(d,4)}, s{sT2} offen lds", ("w", n, b))
        else:
            a.vm(f"buffer_load_dwordx4 v{vWOD}, {sr(sWOA,4)}, s{sWOF+2*(n-24)+b} offen lds", ("w", n, b))
    def dma(n, b): dma_m0(n, b); dma_ld(n, b)
    def wprefetch(which):
        nrow = 32 if o["map24"] else 16; per = nrow // 8
        p3 = vE + 30
        a(f"s_and_b32 s{sT0}, s{sRB}, {512//nrow-1}\ns_lshl_b32 s{sT0}, s{sT0}, 3\ns_add_u32 s{sT0}, s{sT0}, s{sW}\ns_mul_i32 s{sT0}, s{sT0}, {per*3072}\ns_lshl_b32 s{sT1}, s{sHG}, 7\ns_add_u32 s{sT0}, s{sT0}, s{sT1}")
        a(f"v_mul_u32_u24 v{p3}, 3072, v{vL}\ns_mov_b64 exec, {(1 << per) - 1}")
        for wh in which:
            for d_, off in passes[wh - 1]: a.vm(f"buffer_load_dword v{vE+31}, v{p3}, {sr(d_,4)}, s{sT0} offen offset:{off}")
        a("s_mov_b64 exec, -1")
    def woprefetch():
        a(f"v_lshlrev_b32 v{vE+30}, 7, v{vL}\ns_lshl_b32 s{sT0}, s2, 11\ns_lshr_b32 s{sT1}, s{sW1K}, 2\ns_add_u32 s{sT0}, s{sT0}, s{sT1}\ns_mov_b64 exec, 3")
        a.vm(f"buffer_load_dword v{vE+31}, v{vE+30}, {sr(sWOA,4)}, s{sT0} offen"); a.vm(f"buffer_load_dword v{vE+31}, v{vE+30}, {sr(sWOB,4)}, s{sT0} offen")
        a("s_mov_b64 exec, -1")
    dma(0, "x"); dma(0, 0); dma(0, 1)
    a("s_load_dword s82, s[80:81], 0")
    srd(sWOA, 68, 16384); srd(sWOB, 76, 1024)
    lab = only(f"s_cmp_lt_u32 s{sW}, 2")
    a(f"s_lshl_b32 s{sT0}, s{sHG}, 11\ns_add_u32 m0, s{sW1K}, {WPHI}\ns_add_u32 s{sT0}, s{sT0}, s{sW1K}")
    a(f"buffer_load_dwordx4 v{vL16}, {sr(sWOA,4)}, s{sT0} offen lds")
    a(f"{lab}:")
    lab = only(f"s_cmp_eq_u32 s{sW}, 2")
    a(f"s_mov_b32 m0, {GATEW}\ns_nop 0\nbuffer_load_dwordx4 v{t5}, {sr(sWOB,4)}, 0 offen lds")
    a(f"{lab}:")
    a.mark("misc")
    if not o["x1late"]: dma(1, "x")
    srd(sWB, 72, 1572864); srd(sWOA, 70, 524288); srd(sWOB, 74, 524288)
    wh_ = [w_ for w_ in (2, 3) if o[f"wpf{w_}"] == -3]
    if wh_: wprefetch(wh_)
    if o["wopf"] == -3: woprefetch()
    srd(sWS, 80, WS_SIZE); srd(sOUT, 78, 2097152)
    a(f"s_and_b32 s{sRW}, s{sW}, 1\ns_lshr_b32 s{sH}, s{sW}, 1")
    for i in range(1, 8):
        a(f"s_add_u32 s{sCH+i}, s{sROT}, {i}\ns_and_b32 s{sCH+i}, s{sCH+i}, 7")
        if i >= 3: a(f"s_lshl_b32 s{sXO+i-3}, s{sCH+i}, 7")
        a(f"s_mul_i32 s{sCH+i}, s{sCH+i}, {64*3072}")
    a(f"s_lshr_b32 s{sT0}, s2, 3\ns_and_b32 s{sRB3}, s2, 7\ns_lshl_b32 s{sRB3}, s{sRB3}, 2\ns_lshr_b32 s{sT1}, s{sT0}, 3\ns_add_u32 s{sRB3}, s{sRB3}, s{sT1}\ns_and_b32 s{sCB}, s{sT0}, 7")
    Q4 = 240; O8 = 244
    a(f"v_lshlrev_b32 v{t3}, 2, v{t2}\nv_xor_b32 v{t3}, v{t3}, v{t1}\nv_lshlrev_b32 v{t3}, 4, v{t3}\nv_lshl_add_u32 v{t3}, v{t0}, 10, v{t3}")
    a(f"s_lshl_b32 s{sT0}, s{sCB}, 7\nv_add_u32 v{Q4+2}, s{sT0}, v{t3}")
    l32, half, row, g, r, c = t6, t7, t0, t2, t8, t9
    a(f"v_and_b32 v{l32}, 31, v{vL}\nv_lshrrev_b32 v{half}, 5, v{vL}\nv_bfe_u32 v{r}, v{vL}, 2, 2\nv_and_b32 v{c}, 3, v{vL}")
    a(f"s_lshl_b32 s{sT0}, s{sRW}, 5\nv_add_u32 v{row}, s{sT0}, v{l32}")
    a(f"v_bfe_u32 v{t1}, v{row}, 1, 3\nv_xor_b32 v{t1}, v{t1}, v{half}\nv_lshlrev_b32 v{t1}, 4, v{t1}\nv_lshl_add_u32 v{vXR}, v{row}, 7, v{t1}")
    for s in range(1, 4): a(f"v_xor_b32 v{vXR+s}, {s*32}, v{vXR}")
    vGACC, vGXF, vGF, vGX, vGA, vWPA, vSG = vE, vE+16, vE+20, vE+24, vE+25, vE+26, vE+27
    a(f"s_lshl_b32 s{sT0}, s{sH}, 5\nv_xor_b32 v{vGX}, s{sT0}, v{vXR}\ns_add_u32 s{sT0}, s{sT0}, {GATEW}\nv_lshl_add_u32 v{vGA}, v{half}, 4, s{sT0}")
    a(f"v_bfe_u32 v{t1}, v{vL}, 3, 1\nv_lshl_add_u32 v{t1}, v{t1}, 2, v{c}\nv_lshl_add_u32 v{vGA}, v{t1}, 7, v{vGA}")
    a(f"v_lshrrev_b32 v{t3}, 1, v{r}\nv_lshl_add_u32 v{t3}, v{g}, 1, v{t3}\nv_xor_b32 v{t3}, s{sH}, v{t3}\nv_lshlrev_b32 v{t3}, 5, v{t3}")
    a(f"v_lshl_add_u32 v{t5}, v{half}, 3, v{r}\nv_lshlrev_b32 v{t5}, 7, v{t5}\nv_lshl_add_u32 v{t5}, v{c}, 3, v{t5}\nv_add_u32 v{t3}, v{t3}, v{t5}")
    a(f"v_lshl_add_u32 v{vWRD2}, v{g}, 13, v{t3}\nv_add_u32 v{vWRD}, {RING}, v{vWRD2}")
    a(f"v_lshrrev_b32 v{t4}, 1, v{c}\nv_lshl_add_u32 v{t1}, v{half}, 2, v{r}\nv_lshlrev_b32 v{vWPA}, 5, v{t1}")
    a(f"v_lshl_add_u32 v{vWPA}, v{g}, 4, v{vWPA}\nv_lshl_add_u32 v{vWPA}, v{t4}, 3, v{vWPA}")
    a(f"s_lshl_b32 s{sT0}, s{sH}, 9\ns_add_u32 s{sT0}, s{sT0}, {WPHI}\nv_add_u32 v{vWPA}, s{sT0}, v{vWPA}")
    a(f"v_bfe_u32 v{vSG}, v{vL}, 2, 1\nv_mul_u32_u24 v{vSG}, 0x8000, v{vSG}\nv_lshl_or_b32 v{vSG}, v{vSG}, 16, v{vSG}")
    if o["x1late"]: dma(1, "x")
    dma(1, 0); dma(1, 1)
    VL, SL = [], []
    V = lambda t_: VL.extend(t_.split('\n'))
    S = lambda t_: SL.extend(t_.split('\n'))
    lab = only(f"s_cmp_eq_u32 s{sW}, 3")
    for i in range(4): a(f"v_mov_b32 v{vE+i}, 0x3f803f80")
    a(f"v_add_u32 v{vE+4}, {ONES}, v{vL16}\nds_write_b128 v{vE+4}, {vr(vE,4)}")
    a(f"{lab}:")
    V(f"v_and_b32 v{t3}, 2, v{r}\nv_xor_b32 v{t3}, v{t3}, v{g}\nv_lshl_add_u32 v{t3}, v{t3}, 5, v{t5}")
    V(f"s_sub_u32 s{sV0}, s{sH}, s{sRB3}\ns_and_b32 s{sV0}, s{sV0}, 3\ns_lshl_b32 s{sV0}, s{sV0}, 14\ns_add_u32 s{sV0}, s{sV0}, {RING}\nv_add_u32 v{O8+5}, s{sV0}, v{t3}\nv_xor_b32 v{O8+6}, 64, v{O8+5}")
    V(f"s_lshl_b32 s{sV0}, s{sH}, 8\ns_add_u32 s{sV0}, s{sV0}, {GP}\nv_lshl_add_u32 v{vAGP}, v{row}, 2, s{sV0}")
    V(f"s_mul_i32 s{sV0}, s{sW}, {SCRW}\ns_add_u32 s{sV0}, s{sV0}, {SCR}\nv_add_u32 v{vAPW}, s{sV0}, v{vL16}\nv_lshl_add_u32 v{vAVW}, v{half}, 6, v{vAPW}")
    V(f"v_lshrrev_b32 v{t1}, 4, v{vL}\nv_lshl_add_u32 v{t5}, v{t1}, 3, v{r}\nv_and_b32 v{c}, 1, v{c}\nv_lshlrev_b32 v{c}, 3, v{c}")
    V(f"v_lshl_add_u32 v{t3}, v{t5}, 4, v{c}\ns_mul_i32 s{sV0}, s{sH}, {2*SCRW}\ns_add_u32 s{sV0}, s{sV0}, {SCR}\nv_add_u32 v{t3}, s{sV0}, v{t3}")
    V(f"v_mul_u32_u24 v{t5}, 576, v{t4}\nv_add_u32 v{vAVR}, v{t5}, v{t3}\nv_mul_u32_u24 v{t5}, 1088, v{t4}\ns_lshl_b32 s{sV0}, s{sRW}, 9\nv_add3_u32 v{vAPR}, v{t5}, v{t3}, s{sV0}")
    V(f"v_mul_u32_u24 v{t1}, {SSTR}, v{t1}\nv_and_b32 v{t3}, 15, v{vL}\nv_lshl_add_u32 v{vPO}, v{t3}, 4, v{t1}")
    V(f"v_lshlrev_b32 v{t1}, 6, v{half}\nv_xor_b32 v{vVO}, v{t1}, v{vL16}")
    V(f"s_lshl_b32 s{sV0}, s{sRW}, 13\ns_lshl_b32 s{sV1}, s{sH}, 11\ns_add_u32 s{sV0}, s{sV0}, s{sV1}\nv_add_u32 v{O8}, s{sV0}, v{vL16}\nv_add_u32 v{vAK8}, {OWN}, v{O8}\nv_xor_b32 v{Q4}, v{t1}, v{vAK8}")
    V(f"s_lshl_b32 s{sHAL}, s{sHG}, 19\ns_lshl_b32 s{sV1}, s{sRB}, 14\ns_add_u32 s{sHAL}, s{sHAL}, s{sV1}\ns_add_u32 s{sHAL}, s{sHAL}, {WS_KVB}\ns_add_u32 s{sKVB}, s{sHAL}, s{sV0}\ns_add_u32 s{sHAL}, s{sV1}, s{sW1K}\ns_sub_u32 s{sHAL}, s{sHAL}, 65536")
    V(f"v_xor_b32 v{t1}, v{half}, v{t4}\nv_lshl_add_u32 v{t1}, v{t1}, 2, v{r}\nv_lshl_add_u32 v{t1}, v{t1}, 4, v{c}\nv_lshl_add_u32 v{t1}, v{t4}, 9, v{t1}")
    V(f"s_add_u32 s{sV0}, s{sV0}, 1024\nv_add_u32 v{t1}, s{sV0}, v{t1}\nv_cmp_eq_u32 {sr(sP,2)}, 1, v{g}\nv_mov_b32 v{t3}, {ONES+128}\nv_mov_b32 v{t5}, 8192")
    V(f"v_lshlrev_b32 v{O8+7}, 7, v{vL}\nv_cndmask_b32 v{O8+3}, v{t1}, v{t3}, {sr(sP,2)}\nv_cndmask_b32 v{O8+2}, v{t5}, 0, {sr(sP,2)}\nv_lshl_add_u32 v{O8+1}, v{O8+2}, 3, v{O8+3}")
    V(f"v_min_u32 v{t1}, 16, v{l32}\nv_lshlrev_b32 v{t3}, 3, v{t1}\nv_lshl_add_u32 v{O8+4}, v{half}, 10, v{t3}\nv_mul_u32_u24 v{t3}, {PSTR}, v{half}\nv_lshl_add_u32 v{Q4+1}, v{t1}, 4, v{t3}")
    V(f"s_add_u32 s{sV0}, s{sW1K}, {H1S}\nv_add_u32 v{Q4+3}, s{sV0}, v{vL16}\nv_mov_b32 v{vE+29}, v{Q4+3}")
    V(f"ds_write_b128 v{Q4+3}, {vr(Q4,4)}\nds_write_b128 v{vAK8}, {vr(O8,4)}\nds_write_b128 v{vAK8}, {vr(O8+4,4)} offset:1024\ns_waitcnt lgkmcnt(5)")
    vPK4 = vE + 29
    V(f"v_lshlrev_b32 v{t1}, 2, v{half}\nv_sub_u32 v{t1}, v{l32}, v{t1}\nv_mov_b32 v{t3}, 0xffff")
    for i in range(8):
        k0 = 8*(i//2) + 2*(i % 2)
        V(f"v_cmp_le_i32 {sr(sP,2)}, {k0}, v{t1}\nv_cmp_lt_i32 vcc, {k0}, v{t1}\ns_nop 0\nv_cndmask_b32 v{vM+i}, 0, v{t3}, {sr(sP,2)}\nv_cndmask_b32_e64 v{vM+i}, v{vM+i}, -1, vcc")
    S(f"s_lshl_b32 s{sQB}, s{sRB}, 1\ns_add_u32 s{sQB}, s{sQB}, s{sRW}")
    S(f"s_lshl_b32 s{sU2}, s{sHG}, 5\ns_lshl_b32 s{sU1}, s{sW}, 2\ns_add_u32 s{sU1}, s{sU1}, s{sU2}")
    S(f"s_lshl_b32 s{sF1P}, s{sU1}, 7\ns_add_u32 s{sF1P}, s{sF1P}, {WS_F1}")
    S(f"s_mul_i32 s{sPART}, s{sU1}, {SSTR}\ns_mul_i32 s{sU1}, s{sRB}, {PSTR}\ns_add_u32 s{sPART}, s{sPART}, s{sU1}\ns_add_u32 s{sPART}, s{sPART}, {WS_PART}")
    S(f"s_add_u32 s{sU1}, s{sU2}, s{sRB}")
    S(f"s_mul_i32 s{sH1L}, s{sU1}, {SSTR}\ns_mul_i32 s{sU0}, s{sW}, {4*PSTR}\ns_add_u32 s{sH1L}, s{sH1L}, s{sU0}\ns_add_u32 s{sH1L}, s{sH1L}, {WS_PART}")
    S(f"s_lshl_b32 s{sKVFS}, s{sU1}, 8\ns_add_u32 s{sKVFS}, s{sKVFS}, {WS_KVF}\ns_lshl_b32 s{sU1}, s{sU1}, 7\ns_add_u32 s{sF1S}, s{sU1}, {WS_F1}\ns_sub_u32 s{sF2P}, s{sF1S}, 512")
    S(f"s_min_u32 s{sU0}, s{sRB}, 4\ns_sub_u32 s{sU0}, 4, s{sU0}\ns_lshl_b32 s{sF2M}, 31, s{sU0}\ns_and_b32 s{sF2M}, s{sF2M}, 31\ns_mov_b32 s{sF2M+1}, 0")
    S(f"s_lshl_b32 s{sU0}, s{sH}, 3\ns_add_u32 s{sU0}, s{sU0}, s{sU2}\ns_lshl_b32 s{sKVS}, s{sU0}, 8\ns_add_u32 s{sKVS}, s{sKVS}, {WS_KVF}")
    S(f"s_lshl_b32 s{sF4S}, s{sRB}, 3\ns_add_u32 s{sF4S}, s{sF4S}, s{sHG}\ns_lshl_b32 s{sF4S}, s{sF4S}, 7\ns_add_u32 s{sF4S}, s{sF4S}, {WS_F4}")
    S(f"s_lshl_b32 s{sF4P}, s{sRB3}, 10\ns_lshl_b32 s{sU0}, s{sH}, 8\ns_add_u32 s{sF4P}, s{sF4P}, s{sU0}\ns_add_u32 s{sF4P}, s{sF4P}, {WS_F4}")
    S(f"s_lshl_b32 s{sU2}, s{sRW}, 15\ns_add_u32 s{sU2}, s{sU2}, {WS_O}")
    S(f"s_lshl_b32 s{sOA}, s{sRB}, 17\ns_add_u32 s{sOA}, s{sOA}, s{sU2}\ns_lshl_b32 s{sU1}, s{sHG}, 2\ns_add_u32 s{sU1}, s{sU1}, s{sH}\ns_lshl_b32 s{sU1}, s{sU1}, 10\ns_add_u32 s{sOA}, s{sOA}, s{sU1}\ns_add_u32 s{sOB}, s{sOA}, 65536")
    S(f"s_lshl_b32 s{sOL}, s{sRB3}, 17\ns_add_u32 s{sOL}, s{sOL}, s{sU2}\ns_lshl_b32 s{sU1}, s{sH}, 13\ns_add_u32 s{sOL}, s{sOL}, s{sU1}")
    S(f"s_add_u32 s{sOL+1}, s{sOL}, 4096\ns_add_u32 s{sOL+2}, s{sOL}, 65536\ns_add_u32 s{sOL+3}, s{sOL}, {65536+4096}")
    S(f"s_lshl_b32 s{sOUTO}, s{sRB3}, 16\ns_lshl_b32 s{sU1}, s{sCB}, 7\ns_add_u32 s{sOUTO}, s{sOUTO}, s{sU1}")
    for i in range(4):
        S(f"s_add_u32 s{sWOF+2*i}, s{sRB3}, {i}\ns_and_b32 s{sWOF+2*i}, s{sWOF+2*i}, 3\ns_lshl_b32 s{sWOF+2*i}, s{sWOF+2*i}, 17\ns_add_u32 s{sWOF+2*i+1}, s{sWOF+2*i}, 65536")
    def prewrite():
        a(f"s_add_u32 s{sU0}, s{sKVFS}, 128\ns_cmp_eq_u32 s{sW}, 3\ns_cselect_b32 s{sU0}, s{sKVFS}, s{sU0}\ns_cmp_eq_u32 s{sW}, 2\ns_cselect_b32 s{sU0}, s{sF4S}, s{sU0}")
        a(f"s_cmp_eq_u32 s{sW}, 0\ns_cselect_b32 s{sU0}, s{sF1S}, s{sU0}")
        for i in range(4): a(f"v_mov_b32 v{252+i}, -1")
        setexec(0xff, 0)
        a.vm(f"buffer_store_dwordx4 {vr(252,4)}, v{vL16}, {WS}, s{sU0} offen sc1", "rec"); a("s_mov_b64 exec, -1")
    Z = []
    while VL or SL:
        if VL: Z.append(VL.pop(0))
        if SL and not (Z and Z[-1].startswith("s_") and VL): Z.append(SL.pop(0))
    npro = o["npro"]
    for k_, ln in enumerate(Z[:npro]):
        a(ln)
        if k_ == o["c2pos"]: dma(2, "x"); dma(2, 0); dma(2, 1)
    Z = Z[npro:]
    pre_done = not Z
    if pre_done: prewrite()

    def rd_w(n, s, t):
        ad_, of_ = (vWRD, slot(n) - RING) if slot(n) >= RING else (vWRD2, slot(n))
        return f"ds_read_b64_tr_b16 {vr(vWF + (n%2)*16 + s*4 + t*2, 2)}, v{ad_} offset:{of_ + (16*s+4*t)*128}"
    def rd_x(n, s): return f"ds_read_b128 {vr(vX + n*16 + s*4, 4)}, v{vXR+s} offset:{XB + n*8192}"
    def rd_g(n): return f"ds_read_b128 {vr(vGXF,4)}, v{vGX} offset:{XB + n*8192}" + (f"\nds_read_b128 {vr(vGF,4)}, v{vGA}" if n == 0 else "")
    def flag(*soffs):
        n0 = a.ni
        lab = only(f"s_cmp_eq_u32 s{sW}, 1")
        a("s_mov_b64 exec, 1")
        for soff in soffs: a(f"buffer_store_dword v{vNON}, v{vL16}, {WS}, s{soff} offen sc1")
        a(f"s_mov_b64 exec, -1\n{lab}:")
        a.ni = n0 + 2
    def poll_issue(dst, soff, mask, tag, vL128=vL128):
        a(f"s_mov_b64 exec, {mask}"); a.vm(f"buffer_load_dword v{dst}, v{vL128}, {WS}, s{soff} offen sc1", tag); a("s_mov_b64 exec, -1")
    stubs = []
    def poll_check(dst, soff, mask, tag, rec=None, vL128=vL128):
        lp, ld = a.label("Lpoll"), a.label("Lpd")
        if o["stamps"]: a(f"s_mov_b32 s{sSPIN}, 0"); a.ni -= 1
        a(f"s_mov_b64 exec, {mask}\ns_waitcnt vmcnt({a.cnt_after(tag)})\nv_cmp_ne_u32 vcc, v{vNON}, v{dst}\ns_cbranch_vccnz {lp}\n{ld}:\ns_mov_b64 exec, -1")
        stubs.append(f"{lp}:\ns_mov_b32 s{sSPIN}, 0\n{lp}b:\nbuffer_load_dword v{dst}, v{vL128}, {WS}, s{soff} offen sc1\ns_add_u32 s{sSPIN}, s{sSPIN}, 1\n"
                     f"s_cmp_gt_u32 s{sSPIN}, {SPIN_MAX}\ns_waitcnt vmcnt(0)\ns_cbranch_scc1 {ld}\nv_cmp_ne_u32 vcc, v{vNON}, v{dst}\ns_cbranch_vccnz {lp}b\ns_branch {ld}")
        if rec is not None: spinrec(rec)
    def softmax16(S, P, t, pk=True):
        L = [f"v_max3_f32 v{t+1+k}, v{S+3*k}, v{S+3*k+1}, v{S+3*k+2}" for k in range(5)]
        L += [f"v_mov_b32 v{t}, {f32(LOG2E)}", f"v_max3_f32 v{t+1}, v{t+1}, v{t+2}, v{S+15}", f"v_max3_f32 v{t+3}, v{t+3}, v{t+4}, v{t+5}",
              f"v_max_f32 v{t+1}, v{t+1}, v{t+3}", f"v_mul_f32 v{t+1}, v{t}, v{t+1}"]
        if pk:
            L += [f"v_pk_fma_f32 {vr(S+r_,2)}, {vr(S+r_,2)}, {vr(t,2)}, {vr(t,2)} op_sel:[0,0,1] op_sel_hi:[1,0,1] neg_lo:[0,0,1] neg_hi:[0,0,1]" for r_ in range(0, 16, 2)]
            for r_ in range(16):
                L.append(f"v_exp_f32 v{S+r_}, v{S+r_}")
                if r_ == 4: L.append(f"v_pk_add_f32 {vr(t,2)}, {vr(S,2)}, {vr(S+2,2)}")
                if r_ > 4 and r_ % 2 == 0: L.append(f"v_pk_add_f32 {vr(t,2)}, {vr(t,2)}, {vr(S+r_-2,2)}")
            L += ["s_nop 0", f"v_pk_add_f32 {vr(t,2)}, {vr(t,2)}, {vr(S+14,2)}", f"v_add_f32 v{t}, v{t}, v{t+1}", f"v_rcp_f32 v{t}, v{t}", "s_nop 0"]
            L += [f"v_pk_mul_f32 {vr(S+r_,2)}, {vr(S+r_,2)}, {vr(t,2)} op_sel_hi:[1,0]" for r_ in range(0, 16, 2)]
        else:
            L += [f"v_fma_f32 v{S+r_}, v{S+r_}, v{t}, -v{t+1}" for r_ in range(16)]
            for r_ in range(16):
                L.append(f"v_exp_f32 v{S+r_}, v{S+r_}")
                if r_ == 2: L.append(f"v_add_f32 v{t}, v{S}, v{S+1}")
                if r_ > 2: L.append(f"v_add_f32 v{t}, v{t}, v{S+r_-1}")
            L += [f"v_add_f32 v{t}, v{t}, v{S+15}", f"v_rcp_f32 v{t}, v{t}", "s_nop 0"]
            L += [f"v_mul_f32 v{S+r_}, v{S+r_}, v{t}" for r_ in range(16)]
        L += [f"v_cvt_pk_bf16_f32 v{P+i}, v{S+2*i}, v{S+2*i+1}" for i in range(8)]
        return L

    def q_epi1():
        acc = vACC0; S = vE
        side.add(f"v_add_f32 v{vGA}, v{vGA}, v{vGACC+7}\nds_write_b32 v{vAGP}, v{vGA}\nv_and_b32 v{vAGP}, 0xfffffcff, v{vAGP}")
        side.dist("p0end", 12)
        for i in range(6): side.add(f"v_cvt_pk_bf16_f32 v{acc+i}, v{acc+2*i}, v{acc+2*i+1}")
        side.add(f"{MF} {vr(S,16)}, {vr(vWPHI,4)}, {vr(acc,4)}, 0"); side.note("pk")
        for i in range(6, 8): side.add(f"v_cvt_pk_bf16_f32 v{acc+i}, v{acc+2*i}, v{acc+2*i+1}")
        side.add(f"ds_write_b128 v{vAVW}, {vr(acc+4,4)} offset:2176")
        for i in range(4): side.add(f"v_mov_b32 v{acc+12+i}, 0x3f803f80")
        side.dist("pk", 12)
        sl = softmax16(S, S, vE+16, False)
        sl = sl[:-4] + [f"ds_write_b128 v{vAPW}, {vr(S,4)}"] + sl[-4:] + [f"ds_write_b128 v{vAPW}, {vr(S+4,4)} offset:1088"]
        for ln in sl: side.add(ln)
        side.sync()
        for m_ in range(2):
            for t in range(2):
                side.add(f"ds_read_b64_tr_b16 {vr(vE+8*m_+t*2,2)}, v{vAPR} offset:{m_*SCRW + 64*t}")
                side.add(f"ds_read_b64_tr_b16 {vr(vE+8*m_+4+t*2,2)}, v{vAVR} offset:{m_*SCRW + 2176 + 64*t}")
            if m_ == 0: side.block(lambda: None, 100); side.block(lambda: a("s_waitcnt lgkmcnt(8)"), 0)
        side.add(f"ds_read2_b32 {vr(vXR,2)}, v{vAGP} offset0:0 offset1:64\nds_read2_b32 {vr(vXR+2,2)}, v{vAGP} offset0:128 offset1:192")
        side.add(f"ds_read_b128 {vr(vAVW2,4)}, v{vPK4}\nv_mov_b32 v{vNON}, s{sNON}")
        side.sync()
        side.add(f"{MF16} {vr(acc,4)}, {vr(vE,4)}, {vr(vE+4,4)}, 0\n{MF16} {vr(acc+4,4)}, {vr(vE,4)}, {vr(acc+12,4)}, 0")
        side.add(f"{MF16} {vr(acc,4)}, {vr(vE+8,4)}, {vr(vE+12,4)}, {vr(acc,4)}\n{MF16} {vr(acc+4,4)}, {vr(vE+8,4)}, {vr(acc+12,4)}, {vr(acc+4,4)}")
        side.dist("kvm", 8)
        def b_store():
            a.vm(f"buffer_store_dwordx4 {vr(acc,4)}, v{vPO}, {WS}, s{sPART} offen sc1", "part0")
            setexec(0x000f000f, 0x000f000f)
            a.vm(f"buffer_store_dwordx4 {vr(acc+4,4)}, v{vPO}, {WS}, s{sPART} offen offset:256 sc1", "part")
            a("s_mov_b64 exec, -1")
        side.block(b_store, 100)
        side.sync()
        side.add(f"v_add_f32 v{vXR}, v{vXR}, v{vXR+1}\nv_add_f32 v{vXR+2}, v{vXR+2}, v{vXR+3}\nv_add_f32 v{vXR}, v{vXR}, v{vXR+2}")
        side.add(f"v_mul_f32 v{vXR}, {f32(-LOG2E)}, v{vXR}\nv_exp_f32 v{vXR}, v{vXR}\ns_nop 0\nv_add_f32 v{vXR}, 1.0, v{vXR}\nv_rcp_f32 v{vG}, v{vXR}")
        if 14 < o["poi_it2"] < 24:
            for i in range(4): side.add(f"v_mov_b32 v{vXR+3-i}, -1")
    def q_epi2():
        acc = vACC1; kf = vE + 4
        side.dist("p1end", 12)
        for i in range(4): side.add(f"v_cvt_pk_bf16_f32 v{kf+i}, v{acc+2*i}, v{acc+2*i+1}")
        side.block(lambda: a.vm(f"buffer_store_dwordx4 {vr(kf,4)}, v{vL16}, {WS}, s{sKVB} offen sc1", "kvb0"), 0)
        side.add(f"ds_read_b128 {vr(acc,4)}, v{vAK8}\nds_read_b128 {vr(acc+4,4)}, v{vAK8} offset:1024")
        for i in range(4, 8): side.add(f"v_cvt_pk_bf16_f32 v{kf+i}, v{acc+2*i}, v{acc+2*i+1}")
        side.block(lambda: a.vm(f"buffer_store_dwordx4 {vr(kf+4,4)}, v{vVO}, {WS}, s{sKVB} offen offset:1024 sc1", "kvb"), 0)
        if o["poi_it"] == 16: side.block(lambda: a.vm(f"buffer_store_dwordx4 {vr(vXR,4)}, v{vL16}, {WS}, s{sOA} offen sc1", "poisonA"), 0)
        if o["poi_it2"] == 16: side.block(lambda: a.vm(f"buffer_store_dwordx4 {vr(vXR,4)}, v{vL16}, {WS}, s{sOB} offen sc1", "poison"), 0)
        side.sync()
        side.add(f"ds_write_b128 v{vAK8}, {vr(kf,4)}\nds_write_b128 v{vAVW2}, {vr(kf+4,4)} offset:1024")
    vHD = 208
    def h1load():
        poll_check(vFP, sF2P, sr(sF2M,2), "f2p")
        poll_check(vHP, sF1P, 15, "h1p", rec=26)
        for i in range(2): a.vm(f"buffer_load_dwordx4 {vr(vHD+4*i,4)}, v{vPO2}, {WS}, s{sH1L} offen offset:{i*2*PSTR} sc1", "h1l")
    def h1write(nhalo=0):
        if nhalo:
            a(f"s_waitcnt vmcnt({a.cnt_after('h1l') + nhalo})"); lab = only(f"s_cmp_lt_u32 s{sRB}, 4"); a(f"s_waitcnt vmcnt({a.cnt_after('h1l')})\n{lab}:")
        else: a(f"s_waitcnt vmcnt({a.cnt_after('h1l')})")
        for j in range(4): a(f"v_add_f32 v{vHD+j}, v{vHD+j}, v{vHD+4+j}")
        a(f"ds_write_b128 v{vHOW}, {vr(vHD,4)}")
    def h1fin():
        vX = 208
        n0 = a.ni
        lab = only(f"s_cmp_eq_u32 s{sW}, 0")
        for i in range(8): a(f"ds_read_b128 {vr(vX+4*i,4)}, v{vHOW} offset:{i*1024}")
        a(f"v_lshlrev_b32 v{vE+28}, 3, v{vL}\ns_waitcnt lgkmcnt(0)")
        for st in (16, 8, 4):
            for j in range(0, st, 2): a(f"v_pk_add_f32 {vr(vX+j,2)}, {vr(vX+j,2)}, {vr(vX+st+j,2)}")
        for j in range(4): a(f"v_mov_b32 v{vX+4+j}, v{vX+j}")
        a("s_nop 0")
        for j in range(4): a(f"v_permlane32_swap_b32 v{vX+j}, v{vX+4+j}")
        a("s_nop 0")
        a(f"v_pk_add_f32 {vr(vX,2)}, {vr(vX,2)}, {vr(vX+4,2)}\nv_pk_add_f32 {vr(vX+2,2)}, {vr(vX+2,2)}, {vr(vX+6,2)}")
        a(f"v_cvt_pk_bf16_f32 v{vX+10}, v{vX}, v{vX+1}\nv_cvt_pk_bf16_f32 v{vX+11}, v{vX+2}, v{vX+3}")
        setexec(0xffffff, 0)
        a(f"buffer_store_dwordx2 {vr(vX+10,2)}, v{vE+28}, {WS}, s{sKVFS} offen sc1\ns_mov_b64 exec, -1")
        a(f"{lab}:"); a.ni = n0 + 2

    vHV, vCA, vC0 = 3, 4, 5
    def halo_ln(s_): return f"s_add_u32 m0, s{sW1K}, {s_*8192}\nv_add_u32 v{vHV}, 8192, v{vHV}\nv_and_b32 v{vHV}, 0xffffff, v{vHV}\nbuffer_load_dwordx4 v{vHV}, {sr(sX,4)}, 0 offen sc1 lds"
    hl = list(range(8))
    def halo():
        if hl: t_ = halo_ln(hl.pop(0)).rsplit("\n", 1); a(t_[0]); a.vm(t_[1], "halo")
    def q_halo_setup():
        side.block(lambda: a(f"s_lshl_b32 s{sT0}, s{sHG}, 19\ns_add_u32 s{sT0}, s{sT0}, {WS_KVB}\ns_add_u32 s{sX}, s{sWS}, s{sT0}\ns_addc_u32 s{sX+1}, s{sWS+1}, 0\ns_mov_b32 s{sX+2}, 524288\ns_mov_b32 s{sX+3}, 0x20000"), 4)
        side.add(f"s_sub_u32 s{sHAL}, s{sHAL}, 8192\nv_add_u32 v{vHV}, s{sHAL}, v{vL16}")
        side.add(f"v_lshrrev_b32 v{vCA}, 4, v{vL}\nv_lshlrev_b32 v{vCA}, 13, v{vCA}\nv_and_b32 v{vC0}, 15, v{vL}\nv_lshl_add_u32 v{vCA}, v{vC0}, 6, v{vCA}")
        side.add(f"v_bfe_u32 v{vC0}, v{vL}, 1, 4\nv_lshl_add_u32 v{vCA}, v{vC0}, 2, v{vCA}\nv_add_u32 v{vCA}, s{sW1K}, v{vCA}")
        side.add(f"v_lshrrev_b32 v{vF4O}, 2, v{vL}\nv_lshlrev_b32 v{vF4O}, 7, v{vF4O}\nv_and_b32 v{vC0}, 3, v{vL}\nv_lshl_add_u32 v{vF4O}, v{vC0}, 3, v{vF4O}")
        side.add(f"s_lshl_b32 s{sU0}, s{sRW}, 2\ns_add_u32 s{sF4P}, s{sF4P}, s{sU0}\ns_lshl_b32 s{sU0}, s{sW}, 2\ns_add_u32 s{sF4S}, s{sF4S}, s{sU0}")
    wh_ = [w_ for w_ in (2, 3) if o[f"wpf{w_}"] == -2]
    if wh_: wprefetch(wh_)
    if o["wopf"] == -2: woprefetch()
    stamp("pre")
    a(f"s_waitcnt vmcnt({a.cnt_after('misc')}) lgkmcnt(0)\ns_barrier")
    stamp("first")
    for s in range(4): a(rd_w(0, s, 0)); a(rd_w(0, s, 1))
    c2late = ("w", 2, 1) not in a.q
    if c2late: dma(2, "x")
    for s in range(4): a(rd_x(0, s))
    a(rd_g(0))
    if c2late: dma(2, 0); dma(2, 1)
    if o.get("sched") == 4:
        order = {5: [8, 9], 6: [10, 11], 7: [12, 13], 8: [14], 9: [15], 10: [16], 11: [17], 12: [18], 13: [19, 20], 14: [21, 22], 15: [23]}
    if o.get("sched") == 5:
        order = {5: [8], 6: [9, 10], 7: [11], 8: [12, 13], 9: [14, 15], 10: [16], 11: [17], 12: [18], 13: [19, 20], 14: [21, 22], 15: [23]}
    if o.get("sched") == 3: dma(3, "x"); dma(3, 0); dma(3, 1)
    a(f"s_mul_i32 s{sNON}, s82, 0x9E3779B1\ns_add_u32 s{sNON}, s{sNON}, 0x7F4A7C15\ns_cmp_eq_u32 s{sNON}, -1\ns_cselect_b32 s{sNON}, 0x2545F491, s{sNON}")
    a("s_waitcnt lgkmcnt(8)")
    a(f"ds_read_b64_tr_b16 {vr(vWPHI,2)}, v{vWPA}\nds_read_b64_tr_b16 {vr(vWPHI+2,2)}, v{vWPA} offset:256")
    side.sync()
    for ln in Z: side.add(ln)
    if not pre_done: side.block(prewrite, 8)
    for i in range(4): side.add(f"v_xor_b32 v{vWPHI+i}, v{vWPHI+i}, v{vSG}")
    W2 = lambda c_: [(c_, 0), (c_, 1)]
    sched = {n: [(n+3, "x")] + W2(n+3) for n in range(5)}
    if o["xpair"]:
        sched = {0: [(3, "x"), (4, "x")] + W2(3), 1: W2(4), 2: [(5, "x"), (6, "x"), (7, "x")] + W2(5), 3: W2(6), 4: W2(7)}
    order = {5: [8], 6: [9], 7: [10], 8: [11, 12], 9: [13, 14], 10: [15, 16], 11: [17], 12: [18], 13: [19, 20], 14: [21], 15: [22], 16: [], 17: [23]}
    if o.get("sched") == 1: order = {5: [8, 9], 6: [10], 7: [11], 8: [12, 13], 9: [14, 15], 10: [16], 11: [17], 12: [18], 13: [19], 14: [20], 15: [21], 17: [22], 18: [23]}
    if o.get("sched") == 2: order = {5: [8], 6: [9], 7: [10], 8: [11, 12], 9: [13, 14], 10: [15, 16], 11: [17], 12: [18], 13: [19, 20], 14: [21, 22], 15: [23]}
    if o.get("sched") == 4:
        order = {5: [8, 9], 6: [10, 11], 7: [12, 13], 8: [14], 9: [15], 10: [16], 11: [17], 12: [18], 13: [19, 20], 14: [21, 22], 15: [23]}
    if o.get("sched") == 5:
        order = {5: [8], 6: [9, 10], 7: [11], 8: [12, 13], 9: [14, 15], 10: [16], 11: [17], 12: [18], 13: [19, 20], 14: [21, 22], 15: [23]}
    if o.get("sched") == 3:
        sched = {n: [(n+4, "x")] + W2(n+4) for n in range(4)}
        order = {4: [8, 9], 5: [10, 11], 6: [12], 7: [13], 8: [14], 9: [15], 10: [16], 11: [17], 12: [18], 13: [19, 20], 14: [21, 22], 15: [23]}
    for n_, cs in order.items():
        sched[n_] = [d_ for c_ in cs for d_ in W2(c_)]
        for c_ in cs:
            prev = [m_ for m_ in range(c_) if slot(m_) == slot(c_)]
            assert not prev or prev[-1] <= n_, (c_, n_)
            assert n_ < c_ - 1
    woa_its = [o["woa0"], o["woa1"], o["woa2"], o["woa3"]]
    for k_, it_ in enumerate(woa_its):
        assert it_ >= 16 + k_
        if it_ < 24: sched.setdefault(it_, []).extend(W2(24 + k_))
    for n in range(24):
        p, i = divmod(n, 8)
        a.c(f"---- iteration {n}")
        w = a.cnt_after(("w", n+1, 1)) if n < 23 else 63
        if n < 7: w = min(w, a.cnt_after(("x", n+1)))
        if n == o["f1_it"]: w = min(w, a.cnt_after("part"))
        if n == 23: w = min(w, a.cnt_after(("w", 27, 1)))
        a(f"s_waitcnt vmcnt({w}) lgkmcnt(0)" if w < 63 else "s_waitcnt lgkmcnt(0)")
        a("s_barrier")
        stamp_b()
        side.barrier_passed()
        if n == 6: assert "rec" in a.q
        if n == 14: assert "part" in a.q
        if n == 8: assert not side.u; q_epi1()
        if n == 16: assert not side.u, side.u; q_epi2()
        if n == 18: q_halo_setup()
        acc = vACC0 if p != 1 else vACC1
        def M(s):
            cc = "0" if (i == 0 and s == 0) else vr(acc, 16)
            a(f"{MF} {vr(acc,16)}, {vr(vWF+(n%2)*16+s*4,4)}, {vr(vX+i*16+s*4,4)}, {cc}")
        nx = n + 1
        dl = list(sched.get(n, []))
        def D(pos, npos):
            tot = len(sched.get(n, []))
            k0, k1 = -(-tot * pos // npos), -(-tot * (pos + 1) // npos)
            for _ in range(k1 - k0): dma(*dl.pop(0))
        if p == 0:
            if i == 1: a(f"v_mov_b32 v{vGA}, v{vGACC}")
            if i > 1: a(f"v_add_f32 v{vGA}, v{vGA}, v{vGACC+i-1}")
            a(f"{MF} {vr(vGACC,16)}, {vr(vGF,4)}, {vr(vGXF,4)}, 0")
            if nx < 8:
                for s in range(3): a(rd_x(nx, s))
            D(0, 3)
            M(0)
            if nx < 8: a(rd_x(nx, 3)); a(rd_g(nx))
            if n == 7:
                for i_ in range(4): a(f"v_mov_b32 v{vXR+i_}, -1")
                if o["pkv_it"] == 7: a.vm(f"buffer_store_dwordx4 {vr(vXR,4)}, v{vL16}, {WS}, s{sKVB} offen sc1", "pk0")
            wh_ = [w_ for w_ in (2, 3) if o[f"wpf{w_}"] == n]
            if wh_: wprefetch(wh_)
            if n == o["wopf"]: woprefetch()
            side.slot(o["bud0"])
            M(1)
            for s in range(2): a(rd_w(nx, s, 0)); a(rd_w(nx, s, 1))
            D(1, 3)
            M(2)
            for s in range(2, 4): a(rd_w(nx, s, 0)); a(rd_w(nx, s, 1))
            side.slot(o["bud0"])
            D(2, 3)
            M(3)
            if n == 7: side.pos["p0end"] = a.ni
        else:
            B = o["bud1"] if p == 1 else (12 if n < 18 else 3)
            M(0)
            if n == o["f1_it"]: flag(sF1S)
            if n == o["h1_poll"]: poll_issue(vFP, sF2P, sr(sF2M,2), "f2p"); poll_issue(vHP, sF1P, 15, "h1p")
            if nx < 24:
                for s in range(2): a(rd_w(nx, s, 0)); a(rd_w(nx, s, 1))
            if n == o["h1_load"]: h1load()
            if n == o["poi_it"] and n != 16 and n < 24: a.vm(f"buffer_store_dwordx4 {vr(vXR,4)}, v{vL16}, {WS}, s{sOA} offen sc1", "poisonA")
            if n == o["poi_it2"] and n != 16: a.vm(f"buffer_store_dwordx4 {vr(vXR,4)}, v{vL16}, {WS}, s{sOB} offen sc1", "poison")
            if n == o["pkv_it"]: a.vm(f"buffer_store_dwordx4 {vr(vXR,4)}, v{vL16}, {WS}, s{sKVB} offen sc1", "pk0")
            if n == o["pkv_it2"]: a.vm(f"buffer_store_dwordx4 {vr(vXR,4)}, v{vL16}, {WS}, s{sKVB} offen offset:1024 sc1", "pk1")
            D(0, 4)
            side.slot(B)
            M(1)
            if nx < 24:
                for s in range(2, 4): a(rd_w(nx, s, 0)); a(rd_w(nx, s, 1))
            D(1, 4)
            side.slot(B)
            if n == 23:
                for _ in range(o["hloop"] // 2): halo()
            M(2)
            if n == 23:
                for _ in range(o["hloop"] - o["hloop"] // 2): halo()
            D(2, 4)
            if n == o["wpf3"]: wprefetch([3])
            if n == o["wopf"]: woprefetch()
            if n == o["h1_wr"]: h1write()
            side.slot(B)
            D(3, 4)
            M(3)
            if n == 15: side.pos["p1end"] = a.ni
        assert not dl
        if o.get("allit"):
            if n < 23: stamp_a(f"it{n}")
        elif n in (3, 7, 11, 15, 19): stamp_a(f"it{n}")
    assert not side.u, side.u
    nend = a.ni
    stamp("T3")
    vQ, vPHI, vKV = 8, 64, 72
    vSA, vSB, vO = 192, 208, 224
    vP, vKA, vKB = 240, 248, 252
    vVA, vVB = 80, 88
    vWO = 128
    vT = 30
    acc = vACC0; vPOI = acc + 4
    def rdK(dst, j): a(f"ds_read_b128 {vr(dst,4)}, v{vAK8}" if j == 8 else f"ds_read_b128 {vr(dst,4)}, v{vAK} offset:{j*8192}")
    def rdV(dst, ad_):
        for mf in range(2):
            for t in range(2): a(f"ds_read_b64_tr_b16 {vr(dst+4*mf+2*t,2)}, v{ad_} offset:{256*mf+128*t}")
    def qk(S, K, C="0"): a(f"{MF} {vr(S,16)}, {vr(K,4)}, {vr(vQ,4)}, {C}")
    def pv(V, P, first=False): a(f"{MF} {vr(vO,16)}, {vr(V,4)}, {vr(P,4)}, {'0' if first else vr(vO,16)}")
    def rdwo_list(dst, ads):
        return [f"ds_read_b64_tr_b16 {vr(dst + hd*8 + ct*4 + t*2, 2)}, v{ads[ct]} offset:{(16*hd+4*t)*128}"
                for hd in range(8) for ct in range(2) for t in range(2)]
    def kv_loads(tag="kvl"):
        for fq in range(4):
            ln = f"buffer_load_dwordx2 {vr(vKV+2*fq,2)}, v{vKVO}, {WS}, s{sKVS} offen offset:{fq*256} sc1"
            if tag: a.vm(ln, tag)
            else: yield ln
    if o["h1_wr"] <= 22: h1fin()
    rdK(vKA, 8); rdV(vVA, vAV)
    a(f"v_sub_u32 v{vAV}, v{vAV}, v{vAVI}\nv_mov_b32 v{vE+16}, {f32(0.25*LOG2E)}")
    for k_, it_ in enumerate(woa_its):
        if it_ >= 24: dma(24 + k_, 0); dma(24 + k_, 1)
    a.pad(nend, 12)
    for i in range(4): a(f"v_cvt_pk_bf16_f32 v{acc+i}, v{acc+2*i}, v{acc+2*i+1}")
    for r_ in range(8, 16, 2): a(f"v_pk_mul_f32 {vr(acc+r_,2)}, {vr(acc+r_,2)}, {vr(vE+16,2)} op_sel_hi:[1,0]")
    a(f"{MF} {vr(vE,16)}, {vr(vWPHI,4)}, {vr(acc,4)}, 0"); n0 = a.ni
    for i in range(4): a(f"v_cvt_pk_bf16_f32 v{vQ+i}, v{acc+8+2*i}, v{acc+8+2*i+1}")
    a("s_nop 0\ns_waitcnt lgkmcnt(0)"); qk(vSA, vKA)
    a.pad(n0, 12)
    fill = softmax16(vE, vPHI, vE+16)
    for r_ in range(16): fill.append(f"v_exp_f32 v{vSA+r_}, v{vSA+r_}")
    for i in range(8): fill.append(f"v_cvt_pk_bf16_f32 v{vP+i}, v{vSA+2*i}, v{vSA+2*i+1}")
    for i in range(8): fill.append(f"v_and_b32 v{vP+i}, v{vP+i}, v{vM+i}")
    for i in range(8): fill.append(f"v_not_b32 v{vM+i}, v{vM+i}")
    fill.append(f"{MF} {vr(vO,16)}, {vr(vVA,4)}, {vr(vP,4)}, 0"); fill.append(f"{MF} {vr(vO,16)}, {vr(vVA+4,4)}, {vr(vP+4,4)}, {vr(vO,16)}")
    hb, h0, hstep = o["h1_wr"] - 100, o["hpos"], o["hstep"]
    wl = rdwo_list(vWO, (vWA0, vWA1)); nrd = 0
    vPOI = acc + 4
    pois = [("poisonA", sOA), ("poison", sOB)] if o["poi_it"] >= 24 else []
    if pois:
        for i in range(4): a(f"v_mov_b32 v{vPOI+i}, -1")
    for k_, ln in enumerate(fill):
        if k_ == hb:
            h1write()
            a("s_waitcnt lgkmcnt(0)\ns_barrier"); stamp("Bm"); h1fin(); a.mark("kvf")
        a(ln)
        if k_ >= h0 and (k_ - h0) % hstep == 0:
            if hl: halo()
            elif pois and o["poi_it"] == 24:
                t_, so_ = pois.pop(0); a.vm(f"buffer_store_dwordx4 {vr(vPOI,4)}, v{vL16}, {WS}, s{so_} offen sc1", t_)
        if k_ >= o["wrd0"] and wl and (k_ % o["wrds"] == 0):
            a(wl.pop(0)); nrd += 1
            if nrd % 8 == 0: a("s_waitcnt lgkmcnt(6)")
    while hl: halo()
    while wl:
        a(wl.pop(0)); nrd += 1
        if nrd % 8 == 0: a("s_waitcnt lgkmcnt(6)")
    stamp("fill")
    chk = (f"ds_read_b32 v{vC0}, v{vCA}\nds_read_b32 v{vC0+1}, v{vCA} offset:32768\ns_waitcnt lgkmcnt(0)\n"
           f"v_max_u32 v{vC0}, v{vC0}, v{vC0+1}\nv_cmp_eq_u32 vcc, -1, v{vC0}")
    if o["stamps"]: a(f"s_mov_b32 s{sSPIN}, 0")
    if a.cnt_after("kvf") <= a.cnt_after("halo"):
        a(f"s_waitcnt vmcnt({a.cnt_after('halo')+1})"); lab = only(f"s_cmp_lg_u32 s{sW}, 0"); a(f"s_waitcnt vmcnt({a.cnt_after('halo')})\n{lab}:")
    else: a(f"s_waitcnt vmcnt({a.cnt_after('halo')})")
    a(f"{chk}\ns_cbranch_vccnz L_hre\nL_hok:")
    stubs.append(f"L_hre:\ns_mov_b32 s{sSPIN}, 0\nL_hreb:\nv_subrev_u32 v{vHV}, 65536, v{vHV}\n" + "\n".join(halo_ln(s_) for s_ in range(8)) +
                 f"\ns_add_u32 s{sSPIN}, s{sSPIN}, 1\ns_cmp_gt_u32 s{sSPIN}, {SPIN_MAX}\ns_waitcnt vmcnt(0)\ns_cbranch_scc1 L_hok\n{chk}\ns_cbranch_vccnz L_hreb\ns_branch L_hok")
    spinrec(27)
    a("s_barrier")
    stamp("B1")
    rdK(vKA, 7); rdK(vKB, 6); rdV(vVB, vAV)
    if o["prio"]:
        lab = only(f"s_cmp_ge_u32 s{sW}, 4"); a(f"s_setprio 1\n{lab}:")
    while pois:
        t_, so_ = pois.pop(0); a.vm(f"buffer_store_dwordx4 {vr(vPOI,4)}, v{vL16}, {WS}, s{so_} offen sc1", t_)
    a("s_waitcnt lgkmcnt(5)")
    qk(vSB, vKA); n0 = a.ni
    if o["kvl_blk"] == 8: list(kv_loads())
    def flag4():
        a(f"s_waitcnt vmcnt({a.cnt_after('poison')})\ns_mov_b64 exec, 1"); a.vm(f"buffer_store_dword v{vNON}, v{vL16}, {WS}, s{sF4S} offen sc1", "f4s"); a("s_mov_b64 exec, -1")
    if o["f4s_blk"] == 8: flag4()
    def kv_check():
        lp, ld = a.label("Lkv"), a.label("Lkvd")
        k0 = vE + 24
        chk = f"v_max3_u32 v{k0}, v{vKV}, v{vKV+2}, v{vKV+4}\nv_max_u32 v{k0}, v{k0}, v{vKV+6}\nv_cmp_eq_u32 vcc, -1, v{k0}"
        if o["stamps"]: a(f"s_mov_b32 s{sSPIN}, 0")
        a(f"s_waitcnt vmcnt({a.cnt_after('kvl')})\n{chk}\ns_cbranch_vccnz {lp}\n{ld}:")
        stubs.append(f"{lp}:\ns_mov_b32 s{sSPIN}, 0\n{lp}b:\n" + "\n".join(kv_loads(None)) + f"\ns_add_u32 s{sSPIN}, s{sSPIN}, 1\ns_cmp_gt_u32 s{sSPIN}, {SPIN_MAX}\ns_waitcnt vmcnt(0)\ns_cbranch_scc1 {ld}\n{chk}\ns_cbranch_vccnz {lp}b\ns_branch {ld}")
        spinrec(28)
        a(f"{MF} {vr(vE,16)}, {vr(vKV,4)}, {vr(vPHI,4)}, 0\n{MF} {vr(vE,16)}, {vr(vKV+4,4)}, {vr(vPHI+4,4)}, {vr(vE,16)}")
    def oa_1(): a(f"v_add_f32 v{vE+24}, {f32(1e-6)}, v{vE+8}\nv_rcp_f32 v{vE+24}, v{vE+24}")
    def oa_2():
        a(f"v_mul_f32 v{vE+24}, v{vE+24}, v{vG}")
        for r2 in range(8): a(f"v_mul_f32 v{vE+r2}, v{vE+r2}, v{vE+24}")
        for i in range(4): a(f"v_cvt_pk_bf16_f32 v{vE+16+i}, v{vE+2*i}, v{vE+2*i+1}")
    def oa_3():
        a.vm(f"buffer_store_dwordx4 {vr(vE+16,4)}, v{vL16}, {WS}, s{sOA} offen sc1", "oa")
    dm = [(k_, b) for k_ in range(4) for b in range(2)]
    def dma_wob():
        if dm:
            k_, b = dm.pop(0)
            a(f"s_add_u32 m0, s{sW1K}, {RING + k_*16384 + b*8192}\ns_nop 0")
            a.vm(f"buffer_load_dwordx4 v{vWOD}, {sr(sWOB,4)}, s{sWOF+2*k_+b} offen lds", "wob")
    vOFA, vOFB = 96, 64
    def ofr(k_): return (vOFA + 4*k_) if k_ < 8 else (vOFB + 4*(k_-8))
    def oload_ln(k_): return f"buffer_load_dwordx4 {vr(ofr(k_),4)}, v{vL16}, {WS}, s{sOL + k_//4} offen offset:{(k_%4)*1024} sc1"
    cur, nxt, vc, vn, kc, kn = vSB, vSA, vVB, vVA, vKB, vKA
    oal = list(range(8))
    wob0 = o.get("wob_blk", 7)
    exits = []
    class Rec:
        def __enter__(self): self.i = len(a.L); return self
        def __exit__(self, *e): exits[-1][1].extend(a.L[self.i:])
    for j in range(7, -1, -1):
        a.c(f"block {j}")
        E = lambda r_: a(f"v_exp_f32 v{cur+r_}, v{cur+r_}")
        def C(i_):
            a(f"v_cvt_pk_bf16_f32 v{vP+i_}, v{cur+2*i_}, v{cur+2*i_+1}")
        def A(i_):
            if j == 0: a(f"v_and_b32 v{vP+i_}, v{vP+i_}, v{vM+i_}")
        def mem(k):
            with Rec():
                if dm:
                    if j <= wob0 and k % 2 == 0: dma_wob()
                elif j <= o["oal_blk"] and oal:
                    k_ = oal.pop(0); a.vm(oload_ln(k_), ("ol", k_))
        if j == 7: a.pad(n0, 10)
        else: E(0); E(1); pv(vn+4, vP+4)
        exits.append((j, []))
        a(f"s_cmp_lt_u32 s{sQB}, {8-j}\ns_cbranch_scc1 L_ex{j}")
        if j == 7: E(0); E(1)
        if j == o["prio_blk"] and o["prio"]: a("s_setprio 0")
        if j in (3,): stamp(f"blk{j}")
        with Rec():
            if j == o["kvl_blk"]: list(kv_loads())
            if j == o["f4s_blk"]: flag4()
            if j == o["oal_blk"] + 1 or (j == 0 and o["oal_blk"] < 0): poll_issue(vF4P, sF4P, "0xff", "f4p", vF4O)
            if j == o["oal_blk"]: poll_check(vF4P, sF4P, "0xff", "f4p", 25, vF4O)
        E(2); E(3); mem(0); E(4); E(5)
        if j == o["kv_blk"]:
            with Rec(): kv_check()
            exits[-1][1].append("    s_nop 11")
        a("s_waitcnt lgkmcnt(0)")
        E(6); E(7)
        if j > 0:
            qk(nxt, kc)
            if j > 1: rdK(kn, j-2)
            a(f"v_sub_u32 v{vAV}, v{vAV}, v{vAVI}")
        C(0); C(1); mem(1); E(8); E(9); C(2); C(3); A(0); A(1); E(10); A(2); A(3); E(11)
        if j > 0: rdV(vn, vAV)
        E(12)
        if j == o["kv_blk"]:
            with Rec(): oa_1()
            exits[-1][1].append("    s_nop 0")
        pv(vc, vP); mem(2); E(13); E(14); E(15)
        if j == o["kv_blk"]:
            with Rec():
                oa_2()
                if o["f4s_blk"] < j: a(f"s_waitcnt vmcnt({a.cnt_after('poisonA')})")
                oa_3()
        C(4); C(5); mem(3); C(6); C(7); A(4); A(5); A(6); A(7)
        cur, nxt = nxt, cur; vc, vn = vn, vc; kc, kn = kn, kc
    a("s_nop 1"); pv(vn+4, vP+4)
    a("L_attn_end:")
    import re as _re
    ex = []
    for j, body in exits:
        ex.append(f"L_ex{j}:"); ex += body
    ex = "\n".join(ex)
    labs = set(_re.findall(r"^(L(?:poll|pd|kv|kvd)_\d+):", ex, _re.M)) | set(_re.findall(r"(L(?:poll|kv)_\d+)", ex))
    st2 = [t_ for t_ in stubs if any(t_.startswith(l_ + ":") for l_ in labs)]
    ren = lambda t_: _re.sub(r"(L(?:poll|pd|kv|kvd)_\d+)", r"\1x", t_)
    stubs.append(ren(ex) + "\ns_waitcnt lgkmcnt(0)\ns_setprio 0\ns_branch L_attn_end")
    stubs.extend(ren(t_) for t_ in st2)
    assert not dm
    a(f"v_sub_f32 v{vT+1}, 1.0, v{vG}\nv_mov_b32 v12, v{vWA0}\nv_mov_b32 v13, v{vWA1}\ns_nop 8")
    a(f"v_cmp_lt_f32 vcc, {f32(2.0**-64)}, v{vO+8}\nv_rcp_f32 v{vT}, v{vO+8}\ns_mov_b64 {sr(sP,2)}, vcc\nv_cmp_gt_f32 vcc, {f32(2.0**64)}, v{vO+8}\ns_nop 1")
    a(f"s_and_b64 {sr(sP,2)}, {sr(sP,2)}, vcc\ns_cmp_eq_u64 {sr(sP,2)}, -1")
    a("s_branch L_maxpath" if o["force_fallback"] else "s_cbranch_scc0 L_maxpath")
    a("L_attn_ok:")
    a(f"v_mul_f32 v{vT}, v{vT}, v{vT+1}")
    for r_ in range(0, 8, 2): a(f"v_pk_mul_f32 {vr(vO+r_,2)}, {vr(vO+r_,2)}, {vr(vT,2)} op_sel_hi:[1,0]")
    for i in range(4): a(f"v_cvt_pk_bf16_f32 v{vQ+i}, v{vO+2*i}, v{vO+2*i+1}")
    a.vm(f"buffer_store_dwordx4 {vr(vQ,4)}, v{vL16}, {WS}, s{sOB} offen sc1", "ob")
    stamp("attn")
    if o["oal_blk"] < 0: poll_check(vF4P, sF4P, "0xff", "f4p", 25, vF4O)
    for k_ in oal: a.vm(oload_ln(k_), ("ol", k_))
    pass
    wl = rdwo_list(vWO + 64, (12, 13))
    row, bw, br0, br1, vout = 24, 25, 26, 27, 28
    ad = []
    ad += f"v_and_b32 v{row}, 31, v{vL}\ns_lshl_b32 s{sT0}, s{sRW}, 5\nv_add_u32 v{row}, s{sT0}, v{row}\nv_lshrrev_b32 v{bw}, 5, v{vL}".split("\n")
    ad += f"v_and_b32 v{br0}, 15, v{row}\nv_xor_b32 v{bw}, v{bw}, v{br0}\nv_lshlrev_b32 v{bw}, 4, v{bw}\nv_lshl_add_u32 v{bw}, v{row}, 8, v{bw}".split("\n")
    ad += f"s_lshl_b32 s{sT0}, s{sH}, 14\nv_add_u32 v{bw}, s{sT0}, v{bw}".split("\n")
    ad += [f"v_xor_b32 v{vM+k_}, {2*k_*16}, v{bw}" for k_ in range(8)]
    ad += f"v_lshrrev_b32 v{row}, 3, v{vL}\ns_lshl_b32 s{sT0}, s{sW}, 3\nv_add_u32 v{row}, s{sT0}, v{row}".split("\n")
    ad += f"v_and_b32 v{br0}, 7, v{vL}\nv_lshlrev_b32 v{br0}, 1, v{br0}\nv_and_b32 v{br1}, 15, v{row}\nv_xor_b32 v{br0}, v{br0}, v{br1}".split("\n")
    ad += f"v_lshlrev_b32 v{br0}, 4, v{br0}\nv_lshl_add_u32 v{br0}, v{row}, 8, v{br0}\nv_xor_b32 v{br1}, 16, v{br0}".split("\n")
    ad += f"v_and_b32 v{vout}, 7, v{vL}\nv_lshlrev_b32 v{vout}, 4, v{vout}\nv_lshl_add_u32 v{vout}, v{row}, 10, v{vout}".split("\n")
    a(f"s_mov_b32 s{sSPIN}, 0")
    obk = o["obk"]; bk = o["bark"]; nissued = 0
    for k_ in range(16):
        if k_ == bk:
            a(f"s_waitcnt vmcnt({a.cnt_after('wob')})\ns_barrier")
            stamp("B5")
            for q_ in range(o["nwob"]):
                a(wl.pop(0)); nissued += 1
                if q_ % 8 == 3 and q_ > 4: a("s_waitcnt lgkmcnt(4)")
        if k_ == obk:
            a(f"s_waitcnt vmcnt({a.cnt_after('ob')})")
            stamp("obAck")
            for k2 in range(8, 16): a.vm(oload_ln(k2), ("ol", k2))
        if k_ >= 8: a(f"s_waitcnt vmcnt({a.cnt_after(('ol', k_))}) lgkmcnt({min(8, max(0, nissued - 4*(k_-7)))})")
        else: a(f"s_waitcnt vmcnt({a.cnt_after(('ol', k_))})")
        a(f"L_ob{k_}:\nv_cmp_eq_u32 vcc, -1, v{ofr(k_)}\ns_cbranch_vccnz L_obre{k_}\nL_obok{k_}:")
        for ct in range(2):
            ac = vACC0 + 16*ct
            a(f"{MF} {vr(ac,16)}, {vr(vWO+k_*8+ct*4,4)}, {vr(ofr(k_),4)}, {'0' if k_ == 0 else vr(ac,16)}")
            for _ in range(2):
                if ad: a(ad.pop(0))
        if k_ >= bk and wl:
            if k_ < 8: a("s_waitcnt lgkmcnt(8)")
            for _ in range(4): a(wl.pop(0)); nissued += 1
        if k_ == 7: stamp("Ahalf")
    assert not ad and not wl
    spinrec(24)
    stamp("Bhalf")
    a("s_nop 10")
    for k_ in range(8): a(f"ds_write_b128 v{vM+k_}, {vr(vACC0+4*k_,4)}")
    a("s_waitcnt lgkmcnt(0)\ns_barrier")
    stamp("redw")
    R = 128
    for kq in range(4):
        a(f"ds_read_b128 {vr(R+kq*8,4)}, v{br0} offset:{kq*16384}\nds_read_b128 {vr(R+kq*8+4,4)}, v{br1} offset:{kq*16384}")
    for kq in range(1, 4):
        a(f"s_waitcnt lgkmcnt({6-2*kq})")
        for j in range(0, 8, 2): a(f"v_pk_add_f32 {vr(R+j,2)}, {vr(R+j,2)}, {vr(R+8*kq+j,2)}")
    for i in range(4): a(f"v_cvt_pk_bf16_f32 v{R+32+i}, v{R+2*i}, v{R+2*i+1}")
    a(f"buffer_store_dwordx4 {vr(R+32,4)}, v{vout}, {sr(sOUT,4)}, s{sOUTO} offen {o.get('oflag', '').replace('_', ' ')}")
    a(f"s_or_b32 s{sT1}, s2, s{sW}")
    lab = only(f"s_cmp_eq_u32 s{sT1}, 0")
    a(f"v_mov_b32 v{row}, s{sNON}\nv_lshlrev_b32 v{bw}, 2, v{vL}")
    setexec(0xffff, 0)
    a(f"buffer_store_dword v{row}, v{bw}, {WS}, 0 offen sc1\ns_mov_b64 exec, -1")
    a(f"{lab}:")
    if o["stamps"]:
        stamp("issued")
        a("s_waitcnt vmcnt(0)")
        stamp("end")
        a(f"s_memrealtime s[{sTS}:{sTS+1}]\ns_waitcnt lgkmcnt(0)\nv_writelane_b32 v7, s100, 29\nv_writelane_b32 v7, s98, 30\nv_writelane_b32 v7, s{sTS}, 31")
        a(f"s_lshl_b32 s{sT0}, s2, 3\ns_add_u32 s{sT0}, s{sT0}, s{sW}\ns_lshl_b32 s{sT0}, s{sT0}, 7\ns_add_u32 s{sT0}, s{sT0}, {WS_DBG}")
        a(f"v_lshlrev_b32 v{row}, 2, v{vL}\ns_mov_b32 exec_hi, 0\nbuffer_store_dword v7, v{row}, {WS}, s{sT0} offen")
    if o.get("probe"):
        if o["probe"] == "fin": a("s_waitcnt vmcnt(0)"); stamp("fin")
        if "padx" in o: a(f"s_and_b32 s96, s2, 7\ns_cmp_lg_u32 s96, {o['padx']}\ns_cbranch_scc1 L_exit")
        a("s_sub_u32 s100, s100, s98\ns_lshl_b32 s100, s100, 1\ns_add_u32 s100, s100, 3000")
        if "padwg" in o:
            a("s_getreg_b32 s96, hwreg(HW_REG_XCC_ID)\ns_sub_u32 s96, s2, s96\ns_and_b32 s96, s96, 7\ns_mul_i32 s96, s96, 200\ns_add_u32 s100, s100, s96")
            if o["padwg"] >= 0: a(f"s_cmp_lg_u32 s2, {o['padwg']}\ns_cbranch_scc1 L_exit")
        if "padxcc" in o: a(f"s_getreg_b32 s96, hwreg(HW_REG_XCC_ID)\ns_and_b32 s96, s96, 7\ns_cmp_lg_u32 s96, {o['padxcc']}\ns_cbranch_scc1 L_exit")
        a("L_pad:\ns_memrealtime s[96:97]\ns_waitcnt lgkmcnt(0)\ns_sub_u32 s96, s96, s98\ns_cmp_lt_u32 s96, s100\ns_cbranch_scc1 L_pad")
    a("L_exit:\ns_endpgm")
    for hf_ in range(2):
        for k_ in range(8*hf_, 8*hf_ + 8): a(f"L_obre{k_}:\ns_mov_b32 s{sT2}, {k_}\ns_branch L_scan{hf_}")
        a(f"L_scan{hf_}:\ns_waitcnt vmcnt(0)")
        if o["rsleep"]: a(f"s_sleep {o['rsleep']}")
        for k_ in range(8*hf_, 8*hf_ + 8):
            a(f"v_cmp_eq_u32 vcc, -1, v{ofr(k_)}\ns_cbranch_vccz L_sc{k_}\n{oload_ln(k_)}\nL_sc{k_}:")
        a(f"s_add_u32 s{sSPIN}, s{sSPIN}, 1\ns_cmp_gt_u32 s{sSPIN}, {SPIN_MAX}\ns_waitcnt vmcnt(0)\ns_cbranch_scc1 L_give{hf_}")
        for k_ in range(8*hf_, 8*hf_ + 7): a(f"s_cmp_eq_u32 s{sT2}, {k_}\ns_cbranch_scc1 L_ob{k_}")
        a(f"s_branch L_ob{8*hf_+7}\nL_give{hf_}:")
        for k_ in range(8*hf_, 8*hf_ + 7): a(f"s_cmp_eq_u32 s{sT2}, {k_}\ns_cbranch_scc1 L_obok{k_}")
        a(f"s_branch L_obok{8*hf_+7}")
    for s_ in stubs: a(s_)
    a("L_maxpath:")
    m, ninf, ak, d = vT, 4, 5, 6
    vNEG = vACC0
    a(f"v_mov_b32 v{ninf}, 0xff800000\nv_lshrrev_b32 v{d}, 5, v{vL}\nv_lshlrev_b32 v{d}, 2, v{d}\nv_and_b32 v{ak}, 31, v{vL}\nv_sub_u32 v{d}, v{ak}, v{d}")
    for ph in range(2):
        C = "0" if ph == 0 else vr(vNEG, 16)
        if ph == 0: a(f"v_mov_b32 v{m}, v{ninf}")
        else:
            for r_ in range(16): a(f"v_mov_b32 v{vO+r_}, 0")
        a(f"s_mov_b32 s{sT0}, 8\ns_min_u32 s{sT1}, s{sQB}, 8\ns_sub_u32 s{sT1}, 8, s{sT1}\nv_mov_b32 v{ak}, v{vAK8}\nv_lshl_add_u32 v{vAV}, v{vAVI}, 3, v{vAV0}")
        a(f"L_mx{ph}:\nds_read_b128 {vr(vKA,4)}, v{ak}")
        if ph: rdV(vVA, vAV)
        a("s_waitcnt lgkmcnt(0)")
        qk(vSA, vKA, C); a("s_nop 15")
        for (blk, op) in ((8, "gt"), (0, "le")):
            lab = only(f"s_cmp_eq_u32 s{sT0}, {blk}")
            for r_ in range(16):
                a(f"v_cmp_{op}_i32 vcc, {8*(r_//4) + r_ % 4}, v{d}\ns_nop 1\nv_cndmask_b32_e64 v{vSA+r_}, v{vSA+r_}, v{ninf}, vcc")
            a(f"{lab}:")
        if ph == 0:
            for r_ in range(0, 16, 2): a(f"v_max3_f32 v{m}, v{m}, v{vSA+r_}, v{vSA+r_+1}")
        else:
            for r_ in range(16): a(f"v_exp_f32 v{vSA+r_}, v{vSA+r_}")
            for i in range(8): a(f"v_cvt_pk_bf16_f32 v{vP+i}, v{vSA+2*i}, v{vSA+2*i+1}")
            a("s_nop 1"); pv(vVA, vP); pv(vVA+4, vP+4)
        a(f"v_subrev_u32 v{ak}, 8192, v{ak}\nv_sub_u32 v{vAV}, v{vAV}, v{vAVI}\ns_sub_u32 s{sT0}, s{sT0}, 1\ns_cmp_ge_i32 s{sT0}, s{sT1}\ns_cbranch_scc1 L_mx{ph}")
        if ph == 0:
            a(f"v_mov_b32 v{ak}, v{m}\ns_nop 1\nv_permlane32_swap_b32 v{m}, v{ak}\ns_nop 1\nv_max_f32 v{m}, v{m}, v{ak}")
            for r_ in range(16): a(f"v_sub_f32 v{vNEG+r_}, 0, v{m}")
    a(f"s_nop 15\nv_rcp_f32 v{vT}, v{vO+8}\ns_branch L_attn_ok")
    a("L_codeend:")
    return a, o

HDR = open("gated_mix__linear_kernel_hedgehog__sliding_block__prompt.s.ref").read().split("; Override launch")[0]
def full(a, o):
    names = "; stamps: " + ",".join(o.get("_names", [])) + "\n" if o["stamps"] else ""
    return (HDR + names + f"; @launch grid=(256,1,1) block=(512,1,1) lds={LDS_BYTES}\n"
            '.amdgcn_target "amdgcn-amd-amdhsa--gfx950"\n.text\n'
            f".globl {NAME}\n.p2align 8\n.type {NAME},@function\n{NAME}:\n" + a.text() +
            '.section .rodata,"a"\n.p2align 6\n'
            f".amdhsa_kernel {NAME}\n  .amdhsa_next_free_vgpr 256\n  .amdhsa_next_free_sgpr 102\n"
            "  .amdhsa_accum_offset 256\n  .amdhsa_group_segment_fixed_size 0\n  .amdhsa_kernarg_size 88\n"
            "  .amdhsa_user_sgpr_count 2\n  .amdhsa_user_sgpr_kernarg_segment_ptr 1\n"
            "  .amdhsa_system_sgpr_workgroup_id_x 1\n.end_amdhsa_kernel\n")
if __name__ == "__main__":
    out = sys.argv[1]
    opts = {}
    for kv in sys.argv[2:]:
        if "=" in kv:
            k, v = kv.split("="); opts[k] = int(v) if v.lstrip("-").isdigit() else v
        else: opts[kv] = True
    open(out, "w").write(full(*gen(opts)))
```

```python
import sys, struct
NAME = "gated_mix__linear_kernel_hedgehog__sliding_block__prompt_kernel"

class Asm:
    def __init__(self):
        self.L = []; self.nlab = 0; self.q = []; self.ni = 0
    def __call__(self, s):
        for line in s.split("\n"):
            line = line.strip()
            if not line: continue
            if line.endswith(":"): self.L.append(line)
            else:
                self.L.append("    " + line)
                if not line.startswith(";"):
                    self.ni += (1 + int(line.split()[1])) if line.startswith("s_nop") else 1
    def c(self, s): self.L.append("    ; " + s)
    def label(self, b="L"):
        self.nlab += 1; return f"{b}_{self.nlab}"
    def vm(self, s, tag=None):
        x = getattr(self, "x", 0)
        skip = ((x & 1 and isinstance(tag, tuple) and tag[0] == "w" and tag[1] >= 24) or (x & 2 and tag == "wob") or (x & 4 and tag == "halo") or
                (x & 8 and isinstance(tag, tuple) and tag[0] == "ol" and tag[1] < 8) or (x & 16 and isinstance(tag, tuple) and tag[0] == "w" and 8 <= tag[1] < 24 and tag[2] == 1) or
                (x & 32 and tag in ("pk0", "pk1")) or (x & 64 and tag in ("poison", "poisonA")) or (x & 128 and tag in ("kvb0", "kvb")))
        if skip: self.q.append(("mark", tag)); self("s_nop 0"); return
        self(s); self.q.append(tag)
    def mark(self, tag): self.q.append(("mark", tag))
    def cnt_after(self, tag):
        idx = None
        for i, t in enumerate(self.q):
            if t == tag or t == ("mark", tag): idx = i
        assert idx is not None, tag
        return sum(1 for t in self.q[idx+1:] if not (isinstance(t, tuple) and t[0] == "mark"))
    def pad(self, n0, need):
        have = self.ni - n0
        if have < need: self(f"s_nop {need - have - 1}")
    def text(self):
        L = self.L
        if getattr(self, "nowait", 0):
            pats = [p for b, p in ((1, "Lpoll"), (2, "Lkv"), (4, "L_obre"), (8, "L_hre")) if self.nowait & b]
            L = ["    s_nop 0" if (l.strip().startswith("s_cbranch_vccnz") and any(p in l for p in pats)) else l for l in L]
        return "\n".join(L) + "\n"

def icost(line):
    m = line.split()[0]
    if m.startswith(("v_exp", "v_rcp", "v_permlane")): return 2
    if m in ("v_mul_f32", "v_add_f32", "v_fma_f32", "v_mov_b32", "v_and_b32", "v_xor_b32"): return 0.7
    return 1

class Side:
    def __init__(self, a): self.a = a; self.u = []; self.pos = {}; self.deferred = False
    def add(self, s):
        for line in s.split("\n"):
            line = line.strip()
            if line: self.u.append(("i", line))
    def block(self, fn, cost): self.u.append(("b", fn, cost))
    def sync(self): self.u.append(("sync",))
    def note(self, name): self.u.append(("note", name))
    def dist(self, name, n): self.u.append(("dist", name, n))
    def slot(self, budget):
        while self.u and budget > 0:
            u = self.u[0]
            if u[0] == "sync": return
            if u[0] == "dist":
                have = self.a.ni - self.pos[u[1]]
                if have < u[2]:
                    if budget < 1e8 and not self.deferred:
                        self.deferred = True; return
                    self.a(f"s_nop {u[2]-have-1}")
                self.deferred = False
            self.u.pop(0)
            if u[0] == "i": self.a(u[1]); budget -= icost(u[1])
            elif u[0] == "b": u[1](); budget -= u[2]
            elif u[0] == "note": self.pos[u[1]] = self.a.ni
    def barrier_passed(self):
        if self.u and self.u[0][0] == "sync": self.u.pop(0)

def vr(b, n=1): return f"v{b}" if n == 1 else f"v[{b}:{b+n-1}]"
def sr(b, n=1): return f"s{b}" if n == 1 else f"s[{b}:{b+n-1}]"
def f32(x): return "0x%08x" % struct.unpack("<I", struct.pack("<f", x))[0]
MF = "v_mfma_f32_32x32x16_bf16"
MF16 = "v_mfma_f32_16x16x32_bf16"

XB, OWN, RING, MISC = 2048, 67584, 83968, 149504
WPHI, GATEW, GP, ONES, H1S = 0, MISC, MISC + 1024, MISC + 2048, MISC + 6144
LDS_BYTES = 163840
SCR, SCRW = XB + 32768, 3328
def slot(n):
    R = lambda i: RING + i * 16384
    X = lambda i: XB + i * 16384
    if n < 8: return R(n % 4)
    return [X(0), X(1), R(0), R(1), R(2), R(3), X(0), X(1), R(0), R(1), R(2), R(3), X(2), X(3), X(0), X(1), R(0), R(1), R(2), R(3)][n - 8]
WS_F1, WS_F2, WS_F4, WS_KVF = 0x10000, 0x20000, 0x30000, 0x40000
WS_PART = 0x100000
PSTR, SSTR = 320, 320 * 32
WS_KVB, WS_O, WS_DBG, WS_SIZE = 0x500000, 0x900000, 0xD00000, 0x1000000
LOG2E = 1.4426950408889634
sX, sWA, sWB, sWS, sWOA, sWOB, sOUT = 4, 8, 12, 16, 20, 24, 28
sCH = 32
sW, sRW, sH, sHG, sRB, sROT, sNON, sW1K, sQB = 40, 41, 42, 43, 44, 45, 46, 47, 48
sT0, sT1, sT2 = 50, 51, 52
sSPIN, sRB3, sCB = 53, 54, 55
sOA, sOB = 56, 57
sP = 58
sPART, sKVB, sF1S, sF2S, sF4S, sKVFS = 60, 61, 62, 68, 49, 3
sF1P, sH1L, sF2P, sHAL, sKVS, sF4P, sOUTO = 83, 84, 85, 86, 87, 88, 89
sF2M = 90
sWOF = 64
sOL = 72
sXO = 76
sTS = 96
sW2K = 63
sU0, sU1, sU2, sV0, sV1 = 92, 93, 94, 95, 81
vG, vL, vL16, vXD, vWDX, vWDY, vWRD = 0, 1, 2, 3, 4, 5, 6
vXR, vWPHI, vM = 8, 12, 16
vAPW, vAVW, vAPR, vAVR, vAGP, vAK8, vPO, vVO = 24, 25, 26, 27, 28, 29, 30, 31
vAVW2, vPO2, vWOD, vHOW = 24, 25, 26, 27
vNON = vAGP
vACC0, vACC1, vWF, vE, vX = 32, 48, 64, 96, 128
vAK, vAV, vAVI, vAV0, vKVO, vWA0, vWA1, vL128 = range(vACC1, vACC1 + 8)
vFP, vF4P, vHP, vF4O = vACC1 + 8, vACC1 + 9, vACC1 + 10, vACC1 + 11
vWRD2 = 124
vWO2 = 30
SPIN_MAX = 200000

def gen(opts=None):
    o = dict(stamps=False, force_fallback=False, bud0=10, bud1=13, f1_it=16, h1_poll=20, h1_load=23, h1_wr=126, kvb_it=16, c1late=0, obk=8, bark=6, hpos=54, hstep=2, hloop=0, wrd0=56, wrds=1, prio=1, prio_blk=2, f4s_blk=8, pkv_it=8, pkv_it2=10, rsleep=0, nwob=0, bw=0, f2=1, f2_it=23, f2pos=26, poi_it=8, poi_it2=10, x1late=0,
             map24=True, kvl_blk=9, kv_blk=7, oal_blk=2, woa0=18, woa1=19, woa2=20, woa3=21, xpair=0, wopf=-2, wpf2=-2, wpf3=-2, sched=4,
             npro=110, c2pos=90)
    o.update(opts or {})
    a = Asm(); side = Side(a); a.x = o.get("x", 0); a.nowait = o.get("nowait", 0)
    global SPIN_MAX
    SPIN_MAX = 100 if a.x else 200000
    nst = [0]; pend = []
    def stamp(name=""):
        if o.get("probe") == name: a("s_memrealtime s[100:101]\ns_waitcnt lgkmcnt(0)"); a.ni -= 2
        if not o["stamps"]: return
        if o.get("allit") and name != "first": return
        if o.get("light") and name != "end": return
        i = nst[0]; nst[0] += 1; assert i < 24
        a(f"s_memtime s[{sTS}:{sTS+1}]\ns_waitcnt lgkmcnt(0)\nv_writelane_b32 v7, s{sTS}, {i}"); a.ni -= 3
        o.setdefault("_names", []).append(name)
    def stamp_a(name):
        if o.get("probe") == name: a("s_memrealtime s[100:101]"); a.ni -= 1
        if not o["stamps"] or o.get("light"): return
        i = nst[0]; nst[0] += 1; assert i < 24
        a(f"s_memtime s[{sTS}:{sTS+1}]"); a.ni -= 1; pend.append(i); o.setdefault("_names", []).append(name)
    def stamp_b():
        if pend: a(f"v_writelane_b32 v7, s{sTS}, {pend.pop()}"); a.ni -= 1
    def spinrec(i):
        if o["stamps"]: a(f"v_writelane_b32 v7, s{sSPIN}, {i}"); a.ni -= 1
    def srd(d, src, nbytes):
        a(f"s_mov_b32 s{d}, s{src}\ns_and_b32 s{d+1}, s{src+1}, 0xffff\ns_mov_b32 s{d+2}, {nbytes}\ns_mov_b32 s{d+3}, 0x20000")
    def only(cond):
        lab = a.label("Lskip"); a(cond); a(f"s_cbranch_scc0 {lab}"); return lab
    def setexec(lo, hi):
        if hi == 0 and lo <= 64: a(f"s_mov_b64 exec, {lo}")
        else: a(f"s_mov_b32 exec_lo, 0x{lo:x}\ns_mov_b32 exec_hi, 0x{hi:x}")
    WS = sr(sWS, 4)
    t0, t1, t2, t3, t4, t5, t6, t7, t8, t9 = range(vACC1, vACC1 + 10)

    a("s_cmp_ge_u32 s2, 256\ns_cbranch_scc1 L_exit")
    a("s_load_dwordx4 s[64:67], s[0:1], 0\ns_load_dwordx4 s[68:71], s[0:1], 16\ns_load_dwordx4 s[76:79], s[0:1], 56")
    a("s_load_dwordx4 s[72:75], s[0:1], 40\ns_load_dwordx2 s[80:81], s[0:1], 80")
    if o["stamps"]: a("v_mov_b32 v7, 0\ns_memrealtime s[98:99]\ns_memtime s[100:101]")
    if o.get("probe"): a("s_memrealtime s[98:99]\ns_memrealtime s[100:101]")
    a(f"v_lshrrev_b32 v{t0}, 6, v0\nv_and_b32 v{vL}, 63, v0")
    a(f"s_lshr_b32 s{sT0}, s2, 3\nv_readfirstlane_b32 s{sW}, v{t0}")
    a(f"s_getpc_b64 s[{sP}:{sP+1}]\nL_pc:")
    a(f"s_sub_u32 s{sOUT}, s{sP}, L_pc-{NAME}\ns_subb_u32 s{sOUT+1}, s{sP+1}, 0\ns_and_b32 s{sOUT+1}, s{sOUT+1}, 0xffff\ns_mov_b32 s{sOUT+2}, L_codeend-{NAME}\ns_mov_b32 s{sOUT+3}, 0x20000")
    lab = only(f"s_cmp_eq_u32 s{sW}, 7")
    a(f"v_and_b32 v{t3}, 3, v{vL}\nv_lshlrev_b32 v{t3}, 7, v{t3}\ns_lshl_b32 s{sT1}, s{sT0}, 9")
    a(f"buffer_load_dword v{vE+31}, v{t3}, {sr(sOUT,4)}, s{sT1} offen")
    a(f"{lab}:")
    if not o["map24"]:
        a(f"s_and_b32 s{sHG}, s2, 7\ns_mov_b32 s{sRB}, s{sT0}\ns_add_u32 s{sROT}, s{sRB}, s{sHG}")
    else:
        a(f"s_and_b32 s{sRB}, s2, 1\ns_lshl_b32 s{sRB}, s{sRB}, 4\ns_and_b32 s{sT1}, s{sT0}, 15\ns_add_u32 s{sRB}, s{sRB}, s{sT1}")
        a(f"s_and_b32 s{sHG}, s2, 6\ns_lshr_b32 s{sT1}, s{sT0}, 4\ns_add_u32 s{sHG}, s{sHG}, s{sT1}")
        a(f"s_lshl_b32 s{sROT}, s{sHG}, 2\ns_lshr_b32 s{sT1}, s{sHG}, 1\ns_add_u32 s{sROT}, s{sROT}, s{sT1}\ns_add_u32 s{sROT}, s{sROT}, s{sRB}")
    a(f"s_and_b32 s{sROT}, s{sROT}, 7\ns_lshl_b32 s{sW1K}, s{sW}, 10\nv_lshlrev_b32 v{vL16}, 4, v{vL}\ns_lshl_b32 s{sW2K}, s{sW}, 11")
    a(f"v_lshrrev_b32 v{t0}, 3, v0\nv_and_b32 v{t1}, 7, v{vL}\nv_bfe_u32 v{t2}, v{vL}, 4, 1")
    a(f"v_bfe_u32 v{t3}, v{t0}, 1, 3\nv_xor_b32 v{t3}, v{t3}, v{t1}\nv_lshlrev_b32 v{t3}, 4, v{t3}")
    a(f"s_lshl_b32 s{sT1}, s{sRB}, 6\nv_add_u32 v{t4}, s{sT1}, v{t0}\nv_lshl_add_u32 v{vXD}, v{t4}, 10, v{t3}")
    a(f"v_lshlrev_b32 v{t3}, 1, v{t2}\nv_xor_b32 v{t3}, v{t3}, v{t1}\nv_lshlrev_b32 v{t3}, 4, v{t3}")
    a(f"v_mul_u32_u24 v{t4}, 3072, v{t0}\ns_lshl_b32 s{sT1}, s{sHG}, 7\nv_add3_u32 v{vWDX}, v{t4}, v{t3}, s{sT1}")
    a(f"v_xor_b32 v{vWDY}, 64, v{vWDX}\ns_mul_i32 s{sCH}, s{sROT}, {64*3072}")
    a(f"s_lshl_b32 s{sT2}, s{sROT}, 7\nv_add_u32 v{t5}, s{sT2}, v{vL16}\nv_and_b32 v{t5}, 1023, v{t5}")
    a("s_waitcnt lgkmcnt(0)")
    if o.get("probe") == "karg": stamp("karg")
    srd(sX, 64, 2097152); srd(sWA, 66, 1572864)
    passes = [((sWA, 1024), (sWA, 2048)), ((sWB, 2048), (sWB, 3072)), ((sWA, 0), (sWB, 1024))]
    def dma_x_m0(n): a(f"s_add_u32 m0, s{sW1K}, {XB + n*8192}")
    def dma_x_ld(n):
        if n == 0: so = sT2
        elif n < 3: a(f"s_add_u32 s{sT0}, s{sROT}, {n}\ns_and_b32 s{sT0}, s{sT0}, 7\ns_lshl_b32 s{sT0}, s{sT0}, 7"); so = sT0
        else: so = sXO + n - 3
        a.vm(f"buffer_load_dwordx4 v{vXD}, {sr(sX,4)}, s{so} offen lds", ("x", n))
    cur_m0 = [None]
    def dma_m0(n, b):
        if b == "x":
            if cur_m0[0] != ("x", n): cur_m0[0] = ("x", n); dma_x_m0(n)
            return
        if cur_m0[0] == n: return
        cur_m0[0] = n
        off = passes[n // 8][0][1] if n < 24 else 0
        a(f"s_add_u32 m0, s{sW2K}, {slot(n) - off}")
    def dma_ld(n, b):
        if a.L[-1].strip().startswith("s_add_u32 m0"): a("s_nop 0")
        if b == "x": return dma_x_ld(n)
        if n < 24:
            p, i = divmod(n, 8); d, off = passes[p][b]
            a.vm(f"buffer_load_dwordx4 v{vWDX if b == 0 else vWDY}, {sr(d,4)}, s{sCH+i} offen offset:{off} lds", ("w", n, b))
        else:
            a.vm(f"buffer_load_dwordx4 v{vWOD if b == 0 else vWO2}, {sr(sWOA,4)}, s{sWOF+(n-24)} offen offset:{1024*b} lds", ("w", n, b))
    def dma(n, b): dma_m0(n, b); dma_ld(n, b)
    nrow = 32 if o["map24"] else 16
    def pf2():
        per = nrow // 4; p3 = vE + 30
        a(f"s_and_b32 s{sT0}, s{sRB}, {512//nrow-1}\ns_lshl_b32 s{sT0}, s{sT0}, 2\ns_lshr_b32 s{sT1}, s{sW}, 1\ns_add_u32 s{sT0}, s{sT0}, s{sT1}\ns_mul_i32 s{sT0}, s{sT0}, {per*3072}")
        a(f"s_lshl_b32 s{sT1}, s{sHG}, 7\ns_add_u32 s{sT0}, s{sT0}, s{sT1}\ns_and_b32 s{sT1}, s{sW1K}, 1024\ns_add_u32 s{sT0}, s{sT0}, s{sT1}\nv_mul_u32_u24 v{p3}, 3072, v{vL}")
        setexec((1 << per) - 1, 0)
        a.vm(f"buffer_load_dword v{vE+31}, v{p3}, {sr(sWB,4)}, s{sT0} offen offset:2048"); a("s_mov_b64 exec, -1")
    def pf3():
        per = nrow // 2; p3 = vE + 30
        l1, l2, l3, l4 = (a.label("Lpf") for _ in range(4))
        a(f"s_cmp_ge_u32 s{sW}, 4\ns_cbranch_scc1 {l1}")
        a(f"s_and_b32 s{sT0}, s{sRB}, {512//nrow-1}\ns_lshl_b32 s{sT0}, s{sT0}, 1\ns_and_b32 s{sT1}, s{sW}, 1\ns_add_u32 s{sT0}, s{sT0}, s{sT1}\ns_mul_i32 s{sT0}, s{sT0}, {per*3072}")
        a(f"s_lshl_b32 s{sT1}, s{sHG}, 7\ns_add_u32 s{sT0}, s{sT0}, s{sT1}\nv_mul_u32_u24 v{p3}, 3072, v{vL}")
        setexec((1 << per) - 1, 0)
        a(f"s_cmp_ge_u32 s{sW}, 2\ns_cbranch_scc1 {l2}\nbuffer_load_dword v{vE+31}, v{p3}, {sr(sWA,4)}, s{sT0} offen\ns_branch {l4}")
        a(f"{l2}:\nbuffer_load_dword v{vE+31}, v{p3}, {sr(sWB,4)}, s{sT0} offen offset:1024\ns_branch {l4}")
        a(f"{l1}:\ns_lshl_b32 s{sT0}, s2, 11\ns_and_b32 s{sT1}, s{sW1K}, 1024\ns_add_u32 s{sT0}, s{sT0}, s{sT1}\nv_lshlrev_b32 v{p3}, 7, v{vL}")
        setexec(0xff, 0)
        a(f"s_cmp_ge_u32 s{sW}, 6\ns_cbranch_scc1 {l3}\nbuffer_load_dword v{vE+31}, v{p3}, {sr(sWOA,4)}, s{sT0} offen\ns_branch {l4}")
        a(f"{l3}:\nbuffer_load_dword v{vE+31}, v{p3}, {sr(sWOB,4)}, s{sT0} offen")
        a(f"{l4}:\ns_mov_b64 exec, -1"); a.q.append("pf3"); a.ni -= 20
    def pf(pos):
        if o["wpf2"] == pos: pf2()
        if o["wpf3"] == pos: pf3()
    dma(0, "x"); dma(0, 0); dma(0, 1)
    a("s_load_dword s82, s[80:81], 0")
    srd(sWOA, 68, 16384); srd(sWOB, 76, 1024)
    lab = only(f"s_cmp_lt_u32 s{sW}, 2")
    a(f"s_lshl_b32 s{sT0}, s{sHG}, 11\ns_add_u32 m0, s{sW1K}, {WPHI}\ns_add_u32 s{sT0}, s{sT0}, s{sW1K}")
    a(f"buffer_load_dwordx4 v{vL16}, {sr(sWOA,4)}, s{sT0} offen lds")
    a(f"{lab}:")
    lab = only(f"s_cmp_eq_u32 s{sW}, 2")
    a(f"s_mov_b32 m0, {GATEW}\ns_nop 0\nbuffer_load_dwordx4 v{t5}, {sr(sWOB,4)}, 0 offen lds")
    a(f"{lab}:")
    a.mark("misc")
    if not o["x1late"] and not o["c1late"]: dma(1, "x")
    a("s_sub_u32 s72, s72, 1024\ns_subb_u32 s73, s73, 0")
    srd(sWB, 72, 1572864 + 1024); srd(sWOA, 70, 524288); srd(sWOB, 74, 524288)
    pf(-3)
    srd(sWS, 80, WS_SIZE); srd(sOUT, 78, 2097152)
    a(f"s_and_b32 s{sRW}, s{sW}, 1\ns_lshr_b32 s{sH}, s{sW}, 1")
    for i in range(1, 8):
        a(f"s_add_u32 s{sCH+i}, s{sROT}, {i}\ns_and_b32 s{sCH+i}, s{sCH+i}, 7")
        if i >= 3: a(f"s_lshl_b32 s{sXO+i-3}, s{sCH+i}, 7")
        a(f"s_mul_i32 s{sCH+i}, s{sCH+i}, {64*3072}")
    a(f"s_lshr_b32 s{sT0}, s2, 3\ns_and_b32 s{sRB3}, s2, 7\ns_lshl_b32 s{sRB3}, s{sRB3}, 2\ns_lshr_b32 s{sT1}, s{sT0}, 3\ns_add_u32 s{sRB3}, s{sRB3}, s{sT1}\ns_and_b32 s{sCB}, s{sT0}, 7")
    Q4 = 240; O8 = 244
    a(f"v_lshlrev_b32 v{t3}, 4, v{t1}\nv_lshl_add_u32 v{t3}, v{t0}, 11, v{t3}")
    a(f"s_lshl_b32 s{sT0}, s{sCB}, 7\nv_add_u32 v{Q4+2}, s{sT0}, v{t3}")
    l32, half, row, g, r, c = t6, t7, t0, t2, t8, t9
    a(f"v_and_b32 v{l32}, 31, v{vL}\nv_lshrrev_b32 v{half}, 5, v{vL}\nv_bfe_u32 v{r}, v{vL}, 2, 2\nv_and_b32 v{c}, 3, v{vL}")
    a(f"s_lshl_b32 s{sT0}, s{sRW}, 5\nv_add_u32 v{row}, s{sT0}, v{l32}")
    a(f"v_bfe_u32 v{t1}, v{row}, 1, 3\nv_xor_b32 v{t1}, v{t1}, v{half}\nv_lshlrev_b32 v{t1}, 4, v{t1}\nv_lshl_add_u32 v{vXR}, v{row}, 7, v{t1}")
    for s in range(1, 4): a(f"v_xor_b32 v{vXR+s}, {s*32}, v{vXR}")
    vGACC, vGXF, vGF, vGX, vGA, vWPA, vSG = vE, vE+16, vE+20, vE+24, vE+25, vE+26, vE+27
    a(f"s_lshl_b32 s{sT0}, s{sH}, 5\nv_xor_b32 v{vGX}, s{sT0}, v{vXR}\ns_add_u32 s{sT0}, s{sT0}, {GATEW}\nv_lshl_add_u32 v{vGA}, v{half}, 4, s{sT0}")
    a(f"v_bfe_u32 v{t1}, v{vL}, 3, 1\nv_lshl_add_u32 v{t1}, v{t1}, 2, v{c}\nv_lshl_add_u32 v{vGA}, v{t1}, 7, v{vGA}")
    a(f"v_lshrrev_b32 v{t3}, 1, v{r}\nv_lshl_add_u32 v{t3}, v{g}, 1, v{t3}\nv_xor_b32 v{t3}, s{sH}, v{t3}\nv_lshlrev_b32 v{t3}, 5, v{t3}")
    a(f"v_lshl_add_u32 v{t5}, v{half}, 4, v{r}\nv_lshlrev_b32 v{t5}, 7, v{t5}\nv_lshl_add_u32 v{t5}, v{c}, 3, v{t5}\nv_add_u32 v{t3}, v{t3}, v{t5}")
    a(f"v_lshl_add_u32 v{vWRD2}, v{g}, 10, v{t3}\nv_add_u32 v{vWRD}, {RING}, v{vWRD2}")
    a(f"v_lshrrev_b32 v{t4}, 1, v{c}\nv_lshl_add_u32 v{t1}, v{half}, 2, v{r}\nv_lshlrev_b32 v{vWPA}, 5, v{t1}")
    a(f"v_lshl_add_u32 v{vWPA}, v{g}, 4, v{vWPA}\nv_lshl_add_u32 v{vWPA}, v{t4}, 3, v{vWPA}")
    a(f"s_lshl_b32 s{sT0}, s{sH}, 9\ns_add_u32 s{sT0}, s{sT0}, {WPHI}\nv_add_u32 v{vWPA}, s{sT0}, v{vWPA}")
    a(f"v_bfe_u32 v{vSG}, v{vL}, 2, 1\nv_mul_u32_u24 v{vSG}, 0x8000, v{vSG}\nv_lshl_or_b32 v{vSG}, v{vSG}, 16, v{vSG}")
    if o["x1late"] and not o["c1late"]: dma(1, "x")
    if not o["c1late"]: dma(1, 0); dma(1, 1)
    VL, SL = [], []
    V = lambda t_: VL.extend(t_.split('\n'))
    S = lambda t_: SL.extend(t_.split('\n'))
    lab = only(f"s_cmp_eq_u32 s{sW}, 3")
    for i in range(4): a(f"v_mov_b32 v{vE+i}, 0x3f803f80")
    a(f"v_add_u32 v{vE+4}, {ONES}, v{vL16}\nds_write_b128 v{vE+4}, {vr(vE,4)}")
    a(f"{lab}:")
    V(f"v_and_b32 v{t1}, 1, v{r}\nv_mul_u32_u24 v{t3}, 1088, v{t1}\nv_lshrrev_b32 v{t1}, 1, v{r}\nv_lshl_add_u32 v{t1}, v{half}, 2, v{t1}\nv_lshl_add_u32 v{t3}, v{t1}, 7, v{t3}")
    V(f"v_lshl_add_u32 v{t3}, v{g}, 5, v{t3}\nv_lshl_add_u32 v{t3}, v{c}, 3, v{t3}")
    V(f"s_sub_u32 s{sV0}, s{sH}, s{sRB3}\ns_and_b32 s{sV0}, s{sV0}, 3\ns_lshl_b32 s{sV0}, s{sV0}, 14\ns_add_u32 s{sV0}, s{sV0}, {RING}\nv_add_u32 v{O8+5}, s{sV0}, v{t3}\nv_xor_b32 v{O8+6}, 64, v{O8+5}")
    V(f"s_lshl_b32 s{sV0}, s{sH}, 8\ns_add_u32 s{sV0}, s{sV0}, {GP}\nv_lshl_add_u32 v{vAGP}, v{row}, 2, s{sV0}")
    V(f"s_mul_i32 s{sV0}, s{sW}, {SCRW}\ns_add_u32 s{sV0}, s{sV0}, {SCR}\nv_add_u32 v{vAPW}, s{sV0}, v{vL16}\nv_lshl_add_u32 v{vAVW}, v{half}, 6, v{vAPW}")
    V(f"v_lshrrev_b32 v{t1}, 4, v{vL}\nv_lshl_add_u32 v{t5}, v{t1}, 3, v{r}\nv_and_b32 v{c}, 1, v{c}\nv_lshlrev_b32 v{c}, 3, v{c}")
    V(f"v_lshl_add_u32 v{t3}, v{t5}, 4, v{c}\ns_mul_i32 s{sV0}, s{sH}, {2*SCRW}\ns_add_u32 s{sV0}, s{sV0}, {SCR}\nv_add_u32 v{t3}, s{sV0}, v{t3}")
    V(f"v_mul_u32_u24 v{t5}, 576, v{t4}\nv_add_u32 v{vAVR}, v{t5}, v{t3}\nv_mul_u32_u24 v{t5}, 1088, v{t4}\ns_lshl_b32 s{sV0}, s{sRW}, 9\nv_add3_u32 v{vAPR}, v{t5}, v{t3}, s{sV0}")
    V(f"v_mul_u32_u24 v{t1}, {SSTR}, v{t1}\nv_and_b32 v{t3}, 15, v{vL}\nv_lshl_add_u32 v{vPO}, v{t3}, 4, v{t1}")
    V(f"v_lshlrev_b32 v{t1}, 6, v{half}\nv_xor_b32 v{vVO}, v{t1}, v{vL16}")
    V(f"s_lshl_b32 s{sV0}, s{sRW}, 13\ns_lshl_b32 s{sV1}, s{sH}, 11\ns_add_u32 s{sV0}, s{sV0}, s{sV1}\ns_add_u32 s{sV1}, s{sV0}, {XB}\nv_add_u32 v{O8}, s{sV1}, v{vL16}\nv_add_u32 v{vAK8}, 65536, v{O8}\nv_xor_b32 v{Q4}, v{t1}, v{vAK8}")
    V(f"s_lshl_b32 s{sHAL}, s{sHG}, 19\ns_lshl_b32 s{sV1}, s{sRB}, 14\ns_add_u32 s{sHAL}, s{sHAL}, s{sV1}\ns_add_u32 s{sHAL}, s{sHAL}, {WS_KVB}\ns_add_u32 s{sKVB}, s{sHAL}, s{sV0}\ns_lshl_b32 s{sHAL}, s{sW}, 13\ns_add_u32 s{sHAL}, s{sHAL}, s{sV1}\ns_sub_u32 s{sHAL}, s{sHAL}, 65536\ns_and_b32 s{sHAL}, s{sHAL}, 0xffffff")
    V(f"v_xor_b32 v{t1}, v{half}, v{t4}\nv_lshl_add_u32 v{t1}, v{t1}, 2, v{r}\nv_lshl_add_u32 v{t1}, v{t1}, 4, v{c}\nv_lshl_add_u32 v{t1}, v{t4}, 9, v{t1}")
    V(f"s_add_u32 s{sV0}, s{sV0}, {XB+1024}\nv_add_u32 v{t1}, s{sV0}, v{t1}\nv_cmp_eq_u32 {sr(sP,2)}, 1, v{g}\nv_mov_b32 v{t3}, {ONES+128}\nv_mov_b32 v{t5}, 8192")
    V(f"v_lshlrev_b32 v{O8+7}, 7, v{vL}\nv_cndmask_b32 v{O8+3}, v{t1}, v{t3}, {sr(sP,2)}\nv_cndmask_b32 v{O8+2}, v{t5}, 0, {sr(sP,2)}\nv_lshl_add_u32 v{O8+1}, v{O8+2}, 3, v{O8+3}")
    V(f"v_min_u32 v{t1}, 16, v{l32}\nv_lshlrev_b32 v{t3}, 3, v{t1}\nv_lshl_add_u32 v{O8+4}, v{half}, 10, v{t3}\nv_mul_u32_u24 v{t3}, {PSTR}, v{half}\nv_lshl_add_u32 v{Q4+1}, v{t1}, 4, v{t3}")
    V(f"s_add_u32 s{sV0}, s{sW1K}, {H1S}\nv_add_u32 v{Q4+3}, s{sV0}, v{vL16}\nv_mov_b32 v{vE+29}, v{Q4+3}")
    V(f"ds_write_b128 v{Q4+3}, {vr(Q4,4)}\nds_write_b128 v{vAK8}, {vr(O8,4)}\nds_write_b128 v{vAK8}, {vr(O8+4,4)} offset:1024\ns_waitcnt lgkmcnt(5)")
    vPK4 = vE + 29
    V(f"v_lshlrev_b32 v{t1}, 2, v{half}\nv_sub_u32 v{t1}, v{l32}, v{t1}\nv_mov_b32 v{t3}, 0xffff")
    for i in range(8):
        k0 = 8*(i//2) + 2*(i % 2)
        V(f"v_cmp_le_i32 {sr(sP,2)}, {k0}, v{t1}\nv_cmp_lt_i32 vcc, {k0}, v{t1}\ns_nop 0\nv_cndmask_b32 v{vM+i}, 0, v{t3}, {sr(sP,2)}\nv_cndmask_b32_e64 v{vM+i}, v{vM+i}, -1, vcc")
    S(f"s_lshl_b32 s{sQB}, s{sRB}, 1\ns_add_u32 s{sQB}, s{sQB}, s{sRW}")
    S(f"s_lshl_b32 s{sU2}, s{sHG}, 5\ns_lshl_b32 s{sU1}, s{sW}, 2\ns_add_u32 s{sU1}, s{sU1}, s{sU2}")
    S(f"s_lshl_b32 s{sF1P}, s{sU1}, 7\ns_add_u32 s{sF1P}, s{sF1P}, {WS_F1}")
    S(f"s_mul_i32 s{sPART}, s{sU1}, {SSTR}\ns_mul_i32 s{sU1}, s{sRB}, {PSTR}\ns_add_u32 s{sPART}, s{sPART}, s{sU1}\ns_add_u32 s{sPART}, s{sPART}, {WS_PART}")
    S(f"s_add_u32 s{sU1}, s{sU2}, s{sRB}")
    S(f"s_mul_i32 s{sH1L}, s{sU1}, {SSTR}\ns_mul_i32 s{sU0}, s{sW}, {4*PSTR}\ns_add_u32 s{sH1L}, s{sH1L}, s{sU0}\ns_add_u32 s{sH1L}, s{sH1L}, {WS_PART}")
    S(f"s_lshl_b32 s{sKVFS}, s{sU1}, 8\ns_add_u32 s{sKVFS}, s{sKVFS}, {WS_KVF}\ns_lshl_b32 s{sU1}, s{sU1}, 7\ns_add_u32 s{sF1S}, s{sU1}, {WS_F1}\ns_add_u32 s{sF2S}, s{sU1}, {WS_F2}\ns_sub_u32 s{sF2P}, s{sF2S if o['f2'] else sF1S}, 512")
    S(f"s_min_u32 s{sU0}, s{sRB}, 4\ns_sub_u32 s{sU0}, 4, s{sU0}\ns_lshl_b32 s{sF2M}, 31, s{sU0}\ns_and_b32 s{sF2M}, s{sF2M}, 31\ns_mov_b32 s{sF2M+1}, 0")
    S(f"s_lshl_b32 s{sU0}, s{sH}, 3\ns_add_u32 s{sU0}, s{sU0}, s{sU2}\ns_lshl_b32 s{sKVS}, s{sU0}, 8\ns_add_u32 s{sKVS}, s{sKVS}, {WS_KVF}")
    S(f"s_lshl_b32 s{sF4S}, s{sRB}, 3\ns_add_u32 s{sF4S}, s{sF4S}, s{sHG}\ns_lshl_b32 s{sF4S}, s{sF4S}, 7\ns_add_u32 s{sF4S}, s{sF4S}, {WS_F4}")
    S(f"s_lshl_b32 s{sF4P}, s{sRB3}, 10\ns_lshl_b32 s{sU0}, s{sH}, 8\ns_add_u32 s{sF4P}, s{sF4P}, s{sU0}\ns_add_u32 s{sF4P}, s{sF4P}, {WS_F4}")
    S(f"s_lshl_b32 s{sU2}, s{sRW}, 15\ns_add_u32 s{sU2}, s{sU2}, {WS_O}")
    S(f"s_lshl_b32 s{sOA}, s{sRB}, 17\ns_add_u32 s{sOA}, s{sOA}, s{sU2}\ns_lshl_b32 s{sU1}, s{sHG}, 2\ns_add_u32 s{sU1}, s{sU1}, s{sH}\ns_lshl_b32 s{sU1}, s{sU1}, 10\ns_add_u32 s{sOA}, s{sOA}, s{sU1}\ns_add_u32 s{sOB}, s{sOA}, 65536")
    S(f"s_lshl_b32 s{sOL}, s{sRB3}, 17\ns_add_u32 s{sOL}, s{sOL}, s{sU2}\ns_lshl_b32 s{sU1}, s{sH}, 13\ns_add_u32 s{sOL}, s{sOL}, s{sU1}")
    S(f"s_add_u32 s{sOL+1}, s{sOL}, 4096\ns_add_u32 s{sOL+2}, s{sOL}, 65536\ns_add_u32 s{sOL+3}, s{sOL}, {65536+4096}")
    S(f"s_lshl_b32 s{sOUTO}, s{sRB3}, 16\ns_lshl_b32 s{sU1}, s{sCB}, 7\ns_add_u32 s{sOUTO}, s{sOUTO}, s{sU1}")
    for i in range(4):
        S(f"s_add_u32 s{sWOF+i}, s{sRB3}, {i}\ns_and_b32 s{sWOF+i}, s{sWOF+i}, 3\ns_lshl_b32 s{sWOF+i}, s{sWOF+i}, 17")
    def prewrite():
        a(f"s_add_u32 s{sU0}, s{sKVFS}, 128\ns_cmp_eq_u32 s{sW}, 3\ns_cselect_b32 s{sU0}, s{sKVFS}, s{sU0}\ns_cmp_eq_u32 s{sW}, 2\ns_cselect_b32 s{sU0}, s{sF4S}, s{sU0}")
        a(f"s_cmp_eq_u32 s{sW}, 1\ns_cselect_b32 s{sU0}, s{sF2S}, s{sU0}\ns_cmp_eq_u32 s{sW}, 0\ns_cselect_b32 s{sU0}, s{sF1S}, s{sU0}")
        for i in range(4): a(f"v_mov_b32 v{252+i}, -1")
        setexec(0xff, 0)
        a.vm(f"buffer_store_dwordx4 {vr(252,4)}, v{vL16}, {WS}, s{sU0} offen sc1", "rec"); a("s_mov_b64 exec, -1")
    Z = []
    while VL or SL:
        if VL: Z.append(VL.pop(0))
        if SL and not (Z and Z[-1].startswith("s_") and VL): Z.append(SL.pop(0))
    npro = o["npro"]
    for k_, ln in enumerate(Z[:npro]):
        a(ln)
        if k_ == o["c2pos"]: dma(2, "x"); dma(2, 0); dma(2, 1)
    Z = Z[npro:]
    pre_done = not Z
    if pre_done: prewrite()

    def rd_w(n, s, t):
        ad_, of_ = (vWRD, slot(n) - RING) if slot(n) >= RING else (vWRD2, slot(n))
        return f"ds_read_b64_tr_b16 {vr(vWF + (n%2)*16 + s*4 + t*2, 2)}, v{ad_} offset:{of_ + s*4096 + t*512}"
    def rd_x(n, s): return f"ds_read_b128 {vr(vX + n*16 + s*4, 4)}, v{vXR+s} offset:{XB + n*8192}"
    def rd_g(n): return f"ds_read_b128 {vr(vGXF,4)}, v{vGX} offset:{XB + n*8192}" + (f"\nds_read_b128 {vr(vGF,4)}, v{vGA}" if n == 0 else "")
    def flag(*soffs):
        n0 = a.ni
        lab = only(f"s_cmp_eq_u32 s{sW}, 1")
        a("s_mov_b64 exec, 1")
        for soff in soffs: a(f"buffer_store_dword v{vNON}, v{vL16}, {WS}, s{soff} offen sc1")
        a(f"s_mov_b64 exec, -1\n{lab}:")
        a.ni = n0 + 2
    def poll_issue(dst, soff, mask, tag, vL128=vL128):
        a(f"s_mov_b64 exec, {mask}"); a.vm(f"buffer_load_dword v{dst}, v{vL128}, {WS}, s{soff} offen sc1", tag); a("s_mov_b64 exec, -1")
    stubs = []
    def poll_check(dst, soff, mask, tag, rec=None, vL128=vL128):
        lp, ld = a.label("Lpoll"), a.label("Lpd")
        if o["stamps"]: a(f"s_mov_b32 s{sSPIN}, 0"); a.ni -= 1
        a(f"s_mov_b64 exec, {mask}\ns_waitcnt vmcnt({a.cnt_after(tag)})\nv_cmp_ne_u32 vcc, v{vNON}, v{dst}\ns_cbranch_vccnz {lp}\n{ld}:\ns_mov_b64 exec, -1")
        stubs.append(f"{lp}:\ns_mov_b32 s{sSPIN}, 0\n{lp}b:\nbuffer_load_dword v{dst}, v{vL128}, {WS}, s{soff} offen sc1\ns_add_u32 s{sSPIN}, s{sSPIN}, 1\n"
                     f"s_cmp_gt_u32 s{sSPIN}, {SPIN_MAX}\ns_waitcnt vmcnt(0)\ns_cbranch_scc1 {ld}\nv_cmp_ne_u32 vcc, v{vNON}, v{dst}\ns_cbranch_vccnz {lp}b\ns_branch {ld}")
        if rec is not None: spinrec(rec)
    def softmax16(S, P, t, pk=True):
        L = [f"v_max3_f32 v{t+1+k}, v{S+3*k}, v{S+3*k+1}, v{S+3*k+2}" for k in range(5)]
        L += [f"v_mov_b32 v{t}, {f32(LOG2E)}", f"v_max3_f32 v{t+1}, v{t+1}, v{t+2}, v{S+15}", f"v_max3_f32 v{t+3}, v{t+3}, v{t+4}, v{t+5}",
              f"v_max_f32 v{t+1}, v{t+1}, v{t+3}", f"v_mul_f32 v{t+1}, v{t}, v{t+1}"]
        if pk:
            L += [f"v_pk_fma_f32 {vr(S+r_,2)}, {vr(S+r_,2)}, {vr(t,2)}, {vr(t,2)} op_sel:[0,0,1] op_sel_hi:[1,0,1] neg_lo:[0,0,1] neg_hi:[0,0,1]" for r_ in range(0, 16, 2)]
            for r_ in range(16):
                L.append(f"v_exp_f32 v{S+r_}, v{S+r_}")
                if r_ == 4: L.append(f"v_pk_add_f32 {vr(t,2)}, {vr(S,2)}, {vr(S+2,2)}")
                if r_ > 4 and r_ % 2 == 0: L.append(f"v_pk_add_f32 {vr(t,2)}, {vr(t,2)}, {vr(S+r_-2,2)}")
            L += ["s_nop 0", f"v_pk_add_f32 {vr(t,2)}, {vr(t,2)}, {vr(S+14,2)}", f"v_add_f32 v{t}, v{t}, v{t+1}", f"v_rcp_f32 v{t}, v{t}", "s_nop 0"]
            L += [f"v_pk_mul_f32 {vr(S+r_,2)}, {vr(S+r_,2)}, {vr(t,2)} op_sel_hi:[1,0]" for r_ in range(0, 16, 2)]
        else:
            L += [f"v_fma_f32 v{S+r_}, v{S+r_}, v{t}, -v{t+1}" for r_ in range(16)]
            for r_ in range(16):
                L.append(f"v_exp_f32 v{S+r_}, v{S+r_}")
                if r_ == 2: L.append(f"v_add_f32 v{t}, v{S}, v{S+1}")
                if r_ > 2: L.append(f"v_add_f32 v{t}, v{t}, v{S+r_-1}")
            L += [f"v_add_f32 v{t}, v{t}, v{S+15}", f"v_rcp_f32 v{t}, v{t}", "s_nop 0"]
            L += [f"v_mul_f32 v{S+r_}, v{S+r_}, v{t}" for r_ in range(16)]
        L += [f"v_cvt_pk_bf16_f32 v{P+i}, v{S+2*i}, v{S+2*i+1}" for i in range(8)]
        return L

    def q_epi1():
        acc = vACC0; S = vE
        side.add(f"v_add_f32 v{vGA}, v{vGA}, v{vGACC+7}\nds_write_b32 v{vAGP}, v{vGA}\nv_and_b32 v{vAGP}, 0xfffffcff, v{vAGP}")
        side.dist("p0end", 12)
        for i in range(6): side.add(f"v_cvt_pk_bf16_f32 v{acc+i}, v{acc+2*i}, v{acc+2*i+1}")
        side.add(f"{MF} {vr(S,16)}, {vr(vWPHI,4)}, {vr(acc,4)}, 0"); side.note("pk")
        for i in range(6, 8): side.add(f"v_cvt_pk_bf16_f32 v{acc+i}, v{acc+2*i}, v{acc+2*i+1}")
        side.add(f"ds_write_b128 v{vAVW}, {vr(acc+4,4)} offset:2176")
        for i in range(4): side.add(f"v_mov_b32 v{acc+12+i}, 0x3f803f80")
        side.dist("pk", 12)
        sl = softmax16(S, S, vE+16, False)
        sl = sl[:-4] + [f"ds_write_b128 v{vAPW}, {vr(S,4)}"] + sl[-4:] + [f"ds_write_b128 v{vAPW}, {vr(S+4,4)} offset:1088"]
        for ln in sl: side.add(ln)
        side.sync()
        for m_ in range(2):
            for t in range(2):
                side.add(f"ds_read_b64_tr_b16 {vr(vE+8*m_+t*2,2)}, v{vAPR} offset:{m_*SCRW + 64*t}")
                side.add(f"ds_read_b64_tr_b16 {vr(vE+8*m_+4+t*2,2)}, v{vAVR} offset:{m_*SCRW + 2176 + 64*t}")
            if m_ == 0: side.block(lambda: None, 100); side.block(lambda: a("s_waitcnt lgkmcnt(8)"), 0)
        side.add(f"ds_read2_b32 {vr(vXR,2)}, v{vAGP} offset0:0 offset1:64\nds_read2_b32 {vr(vXR+2,2)}, v{vAGP} offset0:128 offset1:192")
        side.add(f"ds_read_b128 {vr(vAVW2,4)}, v{vPK4}\nv_mov_b32 v{vNON}, s{sNON}")
        side.sync()
        side.add(f"{MF16} {vr(acc,4)}, {vr(vE,4)}, {vr(vE+4,4)}, 0\n{MF16} {vr(acc+4,4)}, {vr(vE,4)}, {vr(acc+12,4)}, 0")
        side.add(f"{MF16} {vr(acc,4)}, {vr(vE+8,4)}, {vr(vE+12,4)}, {vr(acc,4)}\n{MF16} {vr(acc+4,4)}, {vr(vE+8,4)}, {vr(acc+12,4)}, {vr(acc+4,4)}")
        side.dist("kvm", 8)
        def b_store():
            a.vm(f"buffer_store_dwordx4 {vr(acc,4)}, v{vPO}, {WS}, s{sPART} offen sc1", "part0")
            setexec(0x000f000f, 0x000f000f)
            a.vm(f"buffer_store_dwordx4 {vr(acc+4,4)}, v{vPO}, {WS}, s{sPART} offen offset:256 sc1", "part")
            a("s_mov_b64 exec, -1")
        side.block(b_store, 100)
        side.sync()
        side.add(f"v_xor_b32 v{vWO2}, 64, v{vWOD}")
        side.add(f"v_add_f32 v{vXR}, v{vXR}, v{vXR+1}\nv_add_f32 v{vXR+2}, v{vXR+2}, v{vXR+3}\nv_add_f32 v{vXR}, v{vXR}, v{vXR+2}")
        side.add(f"v_mul_f32 v{vXR}, {f32(-LOG2E)}, v{vXR}\nv_exp_f32 v{vXR}, v{vXR}\ns_nop 0\nv_add_f32 v{vXR}, 1.0, v{vXR}\nv_rcp_f32 v{vG}, v{vXR}")
        if 14 < o["poi_it2"] < 24:
            for i in range(4): side.add(f"v_mov_b32 v{vXR+3-i}, -1")
    def q_epi2():
        acc = vACC1; kf = vE + 4
        side.dist("p1end", 12)
        for i in range(4): side.add(f"v_cvt_pk_bf16_f32 v{kf+i}, v{acc+2*i}, v{acc+2*i+1}")
        if o["kvb_it"] == 16: side.block(lambda: a.vm(f"buffer_store_dwordx4 {vr(kf,4)}, v{vL16}, {WS}, s{sKVB} offen sc1", "kvb0"), 0)
        side.add(f"ds_read_b128 {vr(acc,4)}, v{vAK8}\nds_read_b128 {vr(acc+4,4)}, v{vAK8} offset:1024")
        for i in range(4, 8): side.add(f"v_cvt_pk_bf16_f32 v{kf+i}, v{acc+2*i}, v{acc+2*i+1}")
        if o["kvb_it"] == 16: side.block(lambda: a.vm(f"buffer_store_dwordx4 {vr(kf+4,4)}, v{vVO}, {WS}, s{sKVB} offen offset:1024 sc1", "kvb"), 0)
        if o["poi_it"] == 16: side.block(lambda: a.vm(f"buffer_store_dwordx4 {vr(vXR,4)}, v{vL16}, {WS}, s{sOA} offen sc1", "poisonA"), 0)
        if o["poi_it2"] == 16: side.block(lambda: a.vm(f"buffer_store_dwordx4 {vr(vXR,4)}, v{vL16}, {WS}, s{sOB} offen sc1", "poison"), 0)
        side.sync()
        side.add(f"ds_write_b128 v{vAK8}, {vr(kf,4)}\nds_write_b128 v{vAVW2}, {vr(kf+4,4)} offset:1024")
    vHD = 208 if o['h1_load'] >= 22 else vE + 16
    def h1load():
        if not o["f2"]: poll_check(vFP, sF2P, sr(sF2M,2), "f2p")
        poll_check(vHP, sF1P, 15, "h1p", rec=26)
        for i in range(2): a.vm(f"buffer_load_dwordx4 {vr(vHD+4*i,4)}, v{vPO2}, {WS}, s{sH1L} offen offset:{i*2*PSTR} sc1", "h1l")
    def h1write(nhalo=0):
        if nhalo:
            a(f"s_waitcnt vmcnt({a.cnt_after('h1l') + nhalo})"); lab = only(f"s_cmp_lt_u32 s{sRB}, 4"); a(f"s_waitcnt vmcnt({a.cnt_after('h1l')})\n{lab}:")
        else: a(f"s_waitcnt vmcnt({a.cnt_after('h1l')})")
        for j in range(4): a(f"v_add_f32 v{vHD+j}, v{vHD+j}, v{vHD+4+j}")
        a(f"ds_write_b128 v{vHOW}, {vr(vHD,4)}")
    def h1fin():
        vX = 208
        n0 = a.ni
        lab = only(f"s_cmp_eq_u32 s{sW}, 0")
        for i in range(8): a(f"ds_read_b128 {vr(vX+4*i,4)}, v{vHOW} offset:{i*1024}")
        a(f"v_lshlrev_b32 v{vE+28}, 3, v{vL}\ns_waitcnt lgkmcnt(0)")
        for st in (16, 8, 4):
            for j in range(0, st, 2): a(f"v_pk_add_f32 {vr(vX+j,2)}, {vr(vX+j,2)}, {vr(vX+st+j,2)}")
        for j in range(4): a(f"v_mov_b32 v{vX+4+j}, v{vX+j}")
        a("s_nop 0")
        for j in range(4): a(f"v_permlane32_swap_b32 v{vX+j}, v{vX+4+j}")
        a("s_nop 0")
        a(f"v_pk_add_f32 {vr(vX,2)}, {vr(vX,2)}, {vr(vX+4,2)}\nv_pk_add_f32 {vr(vX+2,2)}, {vr(vX+2,2)}, {vr(vX+6,2)}")
        a(f"v_cvt_pk_bf16_f32 v{vX+10}, v{vX}, v{vX+1}\nv_cvt_pk_bf16_f32 v{vX+11}, v{vX+2}, v{vX+3}")
        setexec(0xffffff, 0)
        a(f"buffer_store_dwordx2 {vr(vX+10,2)}, v{vE+28}, {WS}, s{sKVFS} offen sc1\ns_mov_b64 exec, -1")
        a(f"{lab}:"); a.ni = n0 + 2

    vHV, vCA, vC0 = 3, 4, 5
    sHM0 = sU1
    def halo_ln(s_):
        pre = f"s_add_u32 m0, s{sHM0}, 4096\nv_add_u32 v{vHV}, 4096, v{vHV}\n" if s_ == 4 else (f"s_mov_b32 m0, s{sHM0}\nv_add_u32 v{vHV}, s{sHAL}, v{vL16}\n" if s_ == 0 else "")
        return pre + f"buffer_load_dwordx4 v{vHV}, {sr(sX,4)}, 0 offen offset:{(s_%4)*1024} sc1 lds"
    hl = list(range(8))
    def halo():
        if hl:
            t_ = halo_ln(hl.pop(0)).rsplit("\n", 1)
            if len(t_) == 2: a(t_[0])
            a.vm(t_[-1], "halo")
    def q_halo_setup():
        side.block(lambda: a(f"s_lshl_b32 s{sT0}, s{sHG}, 19\ns_add_u32 s{sT0}, s{sT0}, {WS_KVB}\ns_add_u32 s{sX}, s{sWS}, s{sT0}\ns_addc_u32 s{sX+1}, s{sWS+1}, 0\ns_mov_b32 s{sX+2}, 524288\ns_mov_b32 s{sX+3}, 0x20000"), 4)
        side.add(f"s_lshl_b32 s{sHM0}, s{sW}, 13\ns_add_u32 s{sHM0}, s{sHM0}, {XB}")
        if not o["f2"]: side.add(f"v_bfe_u32 v{vC0}, v{vL}, 1, 4\nv_lshl_add_u32 v{vC0}, v{vC0}, 2, s{sHM0}\nv_lshl_add_u32 v{vCA}, v{vL}, 6, v{vC0}")

    pf(-2)
    if o["c1late"]: dma(1, "x"); dma(1, 0); dma(1, 1)
    stamp("pre")
    a(f"s_waitcnt vmcnt({a.cnt_after('misc')}) lgkmcnt(0)\ns_barrier")
    stamp("first")
    for s in range(4): a(rd_w(0, s, 0)); a(rd_w(0, s, 1))
    c2late = ("w", 2, 1) not in a.q
    if c2late: dma(2, "x")
    for s in range(4): a(rd_x(0, s))
    a(rd_g(0))
    if c2late: dma(2, 0); dma(2, 1)
    if o.get("sched") == 4:
        order = {5: [8, 9], 6: [10, 11], 7: [12, 13], 8: [14], 9: [15], 10: [16], 11: [17], 12: [18], 13: [19, 20], 14: [21, 22], 15: [23]}
    if o.get("sched") == 5:
        order = {5: [8], 6: [9, 10], 7: [11], 8: [12, 13], 9: [14, 15], 10: [16], 11: [17], 12: [18], 13: [19, 20], 14: [21, 22], 15: [23]}
    if o.get("sched") == 6:
        order = {5: [8, 9], 6: [10], 7: [11], 8: [12], 9: [13, 14], 10: [15], 11: [16, 17], 12: [18], 13: [19], 14: [20], 15: [21], 16: [22], 17: [23]}
    if o.get("sched") == 7:
        order = {5: [8, 9], 6: [10], 7: [11], 8: [12], 9: [13], 10: [14], 11: [15, 16], 12: [17], 13: [18], 14: [19], 15: [20], 16: [21], 17: [22], 18: [23]}
    if o.get("sched") == 3: dma(3, "x"); dma(3, 0); dma(3, 1)
    a(f"s_mul_i32 s{sNON}, s82, 0x9E3779B1\ns_add_u32 s{sNON}, s{sNON}, 0x7F4A7C15\ns_cmp_eq_u32 s{sNON}, -1\ns_cselect_b32 s{sNON}, 0x2545F491, s{sNON}")
    a("s_waitcnt lgkmcnt(8)")
    a(f"ds_read_b64_tr_b16 {vr(vWPHI,2)}, v{vWPA}\nds_read_b64_tr_b16 {vr(vWPHI+2,2)}, v{vWPA} offset:256")
    side.sync()
    for ln in Z: side.add(ln)
    if not pre_done: side.block(prewrite, 8)
    for i in range(4): side.add(f"v_xor_b32 v{vWPHI+i}, v{vWPHI+i}, v{vSG}")
    W2 = lambda c_: [(c_, 0), (c_, 1)]
    sched = {n: [(n+3, "x")] + W2(n+3) for n in range(5)}
    if o["xpair"]:
        sched = {0: [(3, "x"), (4, "x")] + W2(3), 1: W2(4), 2: [(5, "x"), (6, "x"), (7, "x")] + W2(5), 3: W2(6), 4: W2(7)}
    order = {5: [8], 6: [9], 7: [10], 8: [11, 12], 9: [13, 14], 10: [15, 16], 11: [17], 12: [18], 13: [19, 20], 14: [21], 15: [22], 16: [], 17: [23]}
    if o.get("sched") == 1: order = {5: [8, 9], 6: [10], 7: [11], 8: [12, 13], 9: [14, 15], 10: [16], 11: [17], 12: [18], 13: [19], 14: [20], 15: [21], 17: [22], 18: [23]}
    if o.get("sched") == 2: order = {5: [8], 6: [9], 7: [10], 8: [11, 12], 9: [13, 14], 10: [15, 16], 11: [17], 12: [18], 13: [19, 20], 14: [21, 22], 15: [23]}
    if o.get("sched") == 4:
        order = {5: [8, 9], 6: [10, 11], 7: [12, 13], 8: [14], 9: [15], 10: [16], 11: [17], 12: [18], 13: [19, 20], 14: [21, 22], 15: [23]}
    if o.get("sched") == 5:
        order = {5: [8], 6: [9, 10], 7: [11], 8: [12, 13], 9: [14, 15], 10: [16], 11: [17], 12: [18], 13: [19, 20], 14: [21, 22], 15: [23]}
    if o.get("sched") == 6:
        order = {5: [8, 9], 6: [10], 7: [11], 8: [12], 9: [13, 14], 10: [15], 11: [16, 17], 12: [18], 13: [19], 14: [20], 15: [21], 16: [22], 17: [23]}
    if o.get("sched") == 7:
        order = {5: [8, 9], 6: [10], 7: [11], 8: [12], 9: [13], 10: [14], 11: [15, 16], 12: [17], 13: [18], 14: [19], 15: [20], 16: [21], 17: [22], 18: [23]}
    if o.get("sched") == 3:
        sched = {n: [(n+4, "x")] + W2(n+4) for n in range(4)}
        order = {4: [8, 9], 5: [10, 11], 6: [12], 7: [13], 8: [14], 9: [15], 10: [16], 11: [17], 12: [18], 13: [19, 20], 14: [21, 22], 15: [23]}
    for n_, cs in order.items():
        sched[n_] = [d_ for c_ in cs for d_ in W2(c_)]
        for c_ in cs:
            prev = [m_ for m_ in range(c_) if slot(m_) == slot(c_)]
            assert not prev or prev[-1] <= n_, (c_, n_)
            assert n_ < c_ - 1
    woa_its = [o["woa0"], o["woa1"], o["woa2"], o["woa3"]]
    for k_, it_ in enumerate(woa_its):
        assert it_ >= 16 + k_
        if it_ < 24: sched.setdefault(it_, []).extend(W2(24 + k_))
    for n in range(24):
        p, i = divmod(n, 8)
        a.c(f"---- iteration {n}")
        w = a.cnt_after(("w", n+1, 1)) if n < 23 else 63
        if n < 7: w = min(w, a.cnt_after(("x", n+1)))
        if n == o["f1_it"]: w = min(w, a.cnt_after("part"))
        if n == o["f2_it"] and o["f2"]: w = min(w, a.cnt_after("kvb"))
        if n == 23 and not o["bw"]: w = min(w, a.cnt_after(("w", 27, 1)))
        a(f"s_waitcnt vmcnt({w}) lgkmcnt(0)" if w < 63 else "s_waitcnt lgkmcnt(0)")
        a("s_barrier")
        stamp_b()
        side.barrier_passed()
        if n == 6: assert "rec" in a.q
        if n == 14: assert "part" in a.q
        if n == 8: assert not side.u; q_epi1()
        if n == 16: assert not side.u, side.u; q_epi2()
        if n == 19: q_halo_setup()
        acc = vACC0 if p != 1 else vACC1
        def M(s):
            cc = "0" if (i == 0 and s == 0) else vr(acc, 16)
            a(f"{MF} {vr(acc,16)}, {vr(vWF+(n%2)*16+s*4,4)}, {vr(vX+i*16+s*4,4)}, {cc}")
        nx = n + 1
        dl = list(sched.get(n, []))
        def D(pos, npos):
            tot = len(sched.get(n, []))
            k0, k1 = -(-tot * pos // npos), -(-tot * (pos + 1) // npos)
            for _ in range(k1 - k0):
                d_ = dl.pop(0)
                if cur_m0[0] not in (d_[0], ("x", d_[0])) or (d_[1] == "x") != isinstance(cur_m0[0], tuple): dma_m0(*d_)
                dma_ld(*d_)
            if dl and k1 > k0: dma_m0(*dl[0])
        if dl: dma_m0(*dl[0])
        if p == 0:
            if i == 1: a(f"v_mov_b32 v{vGA}, v{vGACC}")
            if i > 1: a(f"v_add_f32 v{vGA}, v{vGA}, v{vGACC+i-1}")
            a(f"{MF} {vr(vGACC,16)}, {vr(vGF,4)}, {vr(vGXF,4)}, 0")
            if nx < 8:
                for s in range(3): a(rd_x(nx, s))
            D(0, 3)
            M(0)
            if nx < 8: a(rd_x(nx, 3)); a(rd_g(nx))
            if n == 7:
                for i_ in range(4): a(f"v_mov_b32 v{vXR+i_}, -1")
                if o["pkv_it"] == 7: a.vm(f"buffer_store_dwordx4 {vr(vXR,4)}, v{vL16}, {WS}, s{sKVB} offen sc1", "pk0")
            pf(n)
            side.slot(o["bud0"])
            M(1)
            for s in range(2): a(rd_w(nx, s, 0)); a(rd_w(nx, s, 1))
            D(1, 3)
            M(2)
            for s in range(2, 4): a(rd_w(nx, s, 0)); a(rd_w(nx, s, 1))
            side.slot(o["bud0"])
            D(2, 3)
            M(3)
            if n == 7: side.pos["p0end"] = a.ni
        else:
            B = o["bud1"] if p == 1 else (12 if n < 18 else 3)
            M(0)
            if n == o["f1_it"]: flag(*((sF1S, sF4S) if o["poi_it2"] < 12 else (sF1S,)))
            if n == o["f2_it"] and o["f2"]: flag(sF2S)
            if n == o["h1_poll"]:
                if not o["f2"]: poll_issue(vFP, sF2P, sr(sF2M,2), "f2p")
                poll_issue(vHP, sF1P, 15, "h1p")
            if nx < 24:
                for s in range(2): a(rd_w(nx, s, 0)); a(rd_w(nx, s, 1))
            if n == o["h1_load"]: h1load()
            if n == o["kvb_it"] and n > 16:
                a.vm(f"buffer_store_dwordx4 {vr(vE+4,4)}, v{vL16}, {WS}, s{sKVB} offen sc1", "kvb0")
                a.vm(f"buffer_store_dwordx4 {vr(vE+8,4)}, v{vVO}, {WS}, s{sKVB} offen offset:1024 sc1", "kvb")
            if n == o["poi_it"] and n != 16 and n < 24: a.vm(f"buffer_store_dwordx4 {vr(vXR,4)}, v{vL16}, {WS}, s{sOA} offen sc1", "poisonA")
            if n == o["poi_it2"] and n != 16: a.vm(f"buffer_store_dwordx4 {vr(vXR,4)}, v{vL16}, {WS}, s{sOB} offen sc1", "poison")
            if n == o["pkv_it"] and not o["f2"]: a.vm(f"buffer_store_dwordx4 {vr(vXR,4)}, v{vL16}, {WS}, s{sKVB} offen sc1", "pk0")
            if n == o["pkv_it2"] and not o["f2"]: a.vm(f"buffer_store_dwordx4 {vr(vXR,4)}, v{vL16}, {WS}, s{sKVB} offen offset:1024 sc1", "pk1")
            D(0, 4)
            side.slot(B)
            M(1)
            if nx < 24:
                for s in range(2, 4): a(rd_w(nx, s, 0)); a(rd_w(nx, s, 1))
            D(1, 4)
            side.slot(B)
            if n == 23:
                for _ in range(o["hloop"] // 2): halo()
            M(2)
            if n == 23:
                for _ in range(o["hloop"] - o["hloop"] // 2): halo()
            D(2, 4)
            pf(n)
            if n == o["h1_wr"]: h1write()
            side.slot(B)
            D(3, 4)
            M(3)
            if n == 15: side.pos["p1end"] = a.ni
        assert not dl
        if o.get("allit"):
            if n < 23: stamp_a(f"it{n}")
        elif n in (3, 7, 11, 15, 19): stamp_a(f"it{n}")
    assert not side.u, side.u
    nend = a.ni
    stamp("T3")
    vQ, vPHI, vKV = 8, 64, 72
    vSA, vSB, vO = 192, 208, 224
    vP, vKA, vKB = 240, 248, 252
    vVA, vVB = 80, 88
    vWO = 128
    vT = 24
    acc = vACC0; vPOI = acc + 4
    def rdK(dst, j): a(f"ds_read_b128 {vr(dst,4)}, v{vAK8}" if j == 8 else f"ds_read_b128 {vr(dst,4)}, v{vAK} offset:{j*8192}")
    def rdV(dst, ad_):
        for mf in range(2):
            for t in range(2): a(f"ds_read_b64_tr_b16 {vr(dst+4*mf+2*t,2)}, v{ad_} offset:{256*mf+128*t}")
    def qk(S, K, C="0"): a(f"{MF} {vr(S,16)}, {vr(K,4)}, {vr(vQ,4)}, {C}")
    def pv(V, P, first=False): a(f"{MF} {vr(vO,16)}, {vr(V,4)}, {vr(P,4)}, {'0' if first else vr(vO,16)}")
    def rdwo_list(dst, ads):
        return [f"ds_read_b64_tr_b16 {vr(dst + hd*8 + ct*4 + t*2, 2)}, v{ads[ct]} offset:{hd*2048 + t*256}"
                for hd in range(8) for ct in range(2) for t in range(2)]
    def kv_loads(tag="kvl"):
        for fq in range(4):
            ln = f"buffer_load_dwordx2 {vr(vKV+2*fq,2)}, v{vKVO}, {WS}, s{sKVS} offen offset:{fq*256} sc1"
            if tag: a.vm(ln, tag)
            else: yield ln
    if o["h1_wr"] <= 22: h1fin(); a.mark("kvf")
    rdK(vKA, 8); rdV(vVA, vAV)
    a(f"v_sub_u32 v{vAV}, v{vAV}, v{vAVI}\nv_mov_b32 v{vE+16}, {f32(0.25*LOG2E)}")
    for k_, it_ in enumerate(woa_its):
        if it_ >= 24: dma(24 + k_, 0); dma(24 + k_, 1)
    a.pad(nend, 12)
    for i in range(4): a(f"v_cvt_pk_bf16_f32 v{acc+i}, v{acc+2*i}, v{acc+2*i+1}")
    for r_ in range(8, 16, 2): a(f"v_pk_mul_f32 {vr(acc+r_,2)}, {vr(acc+r_,2)}, {vr(vE+16,2)} op_sel_hi:[1,0]")
    a(f"{MF} {vr(vE,16)}, {vr(vWPHI,4)}, {vr(acc,4)}, 0"); n0 = a.ni
    for i in range(4): a(f"v_cvt_pk_bf16_f32 v{vQ+i}, v{acc+8+2*i}, v{acc+8+2*i+1}")
    a("s_nop 0\ns_waitcnt lgkmcnt(0)"); qk(vSA, vKA)
    a.pad(n0, 12)
    fill = softmax16(vE, vPHI, vE+16)
    for r_ in range(16): fill.append(f"v_exp_f32 v{vSA+r_}, v{vSA+r_}")
    for i in range(8): fill.append(f"v_cvt_pk_bf16_f32 v{vP+i}, v{vSA+2*i}, v{vSA+2*i+1}")
    for i in range(8): fill.append(f"v_and_b32 v{vP+i}, v{vP+i}, v{vM+i}")
    for i in range(8): fill.append(f"v_not_b32 v{vM+i}, v{vM+i}")
    fill.append(f"{MF} {vr(vO,16)}, {vr(vVA,4)}, {vr(vP,4)}, 0"); fill.append(f"{MF} {vr(vO,16)}, {vr(vVA+4,4)}, {vr(vP+4,4)}, {vr(vO,16)}")
    hb, h0, hstep = o["h1_wr"] - 100, o["hpos"], o["hstep"]
    wl = rdwo_list(vWO, (vWA0, vWA1)); nrd = 0
    vPOI = acc + 4
    pois = [("poisonA", sOA), ("poison", sOB)] if o["poi_it"] >= 24 else []
    if pois:
        for i in range(4): a(f"v_mov_b32 v{vPOI+i}, -1")
    for k_, ln in enumerate(fill):
        if k_ == hb:
            h1write()
            a("s_waitcnt lgkmcnt(0)\ns_barrier"); stamp("Bm"); h1fin(); a.mark("kvf")
        if o["f2"] and k_ == o["f2pos"]: poll_issue(vFP, sF2P, sr(sF2M,2), "f2p")
        if o["f2"] and k_ == h0: poll_check(vFP, sF2P, sr(sF2M,2), "f2p", 27)
        a(ln)
        if k_ >= h0 and (k_ - h0) % hstep == 0:
            if hl: halo()
            elif pois and o["poi_it"] == 24:
                t_, so_ = pois.pop(0); a.vm(f"buffer_store_dwordx4 {vr(vPOI,4)}, v{vL16}, {WS}, s{so_} offen sc1", t_)
        if k_ == o["wrd0"] and o["bw"]: a(f"s_waitcnt vmcnt({a.cnt_after(('w', 27, 1))})\ns_barrier"); stamp("Bw")
        if k_ == o["kvl_blk"] - 100: list(kv_loads())
        if k_ >= o["wrd0"] and wl and (k_ % o["wrds"] == 0):
            a(wl.pop(0)); nrd += 1
            if nrd % 8 == 0: a("s_waitcnt lgkmcnt(6)")
    while hl: halo()
    while wl:
        a(wl.pop(0)); nrd += 1
        if nrd % 8 == 0: a("s_waitcnt lgkmcnt(6)")
    stamp("fill")
    if o["kvl_blk"] == 9: list(kv_loads())
    chk = (f"ds_read_b32 v{vC0}, v{vCA}\nds_read_b32 v{vC0+1}, v{vCA} offset:4096\ns_waitcnt lgkmcnt(0)\n"
           f"v_max_u32 v{vC0}, v{vC0}, v{vC0+1}\nv_cmp_eq_u32 vcc, -1, v{vC0}")
    if o["stamps"]: a(f"s_mov_b32 s{sSPIN}, 0")
    if a.cnt_after("kvf") <= a.cnt_after("halo"):
        a(f"s_waitcnt vmcnt({a.cnt_after('halo')+1})"); lab = only(f"s_cmp_lg_u32 s{sW}, 0"); a(f"s_waitcnt vmcnt({a.cnt_after('halo')})\n{lab}:")
    else: a(f"s_waitcnt vmcnt({a.cnt_after('halo')})")
    if o["f2"]: a("s_waitcnt lgkmcnt(0)")
    else: a(f"{chk}\ns_cbranch_vccnz L_hre\nL_hok:")
    if not o["f2"]: stubs.append(f"L_hre:\ns_mov_b32 s{sSPIN}, 0\nL_hreb:\n" + "\n".join(halo_ln(s_) for s_ in range(8)) +
                 f"\ns_add_u32 s{sSPIN}, s{sSPIN}, 1\ns_cmp_gt_u32 s{sSPIN}, {SPIN_MAX}\ns_waitcnt vmcnt(0)\ns_cbranch_scc1 L_hok\n{chk}\ns_cbranch_vccnz L_hreb\ns_branch L_hok")
    if not o["f2"]: spinrec(27)
    a("s_barrier")
    if 12 <= o["poi_it2"] < 24: flag(sF4S)
    stamp("B1")
    rdK(vKA, 7); rdK(vKB, 6); rdV(vVB, vAV)
    if o["prio"]:
        lab = only(f"s_cmp_ge_u32 s{sW}, 4"); a(f"s_setprio 1\n{lab}:")
    while pois:
        t_, so_ = pois.pop(0); a.vm(f"buffer_store_dwordx4 {vr(vPOI,4)}, v{vL16}, {WS}, s{so_} offen sc1", t_)
    a("s_waitcnt lgkmcnt(5)")
    qk(vSB, vKA); n0 = a.ni
    a(f"s_add_u32 m0, s{sW2K}, {RING}")
    if o["kvl_blk"] == 8: list(kv_loads())
    def flag4():
        a(f"s_waitcnt vmcnt({a.cnt_after('poison')})\ns_mov_b64 exec, 1"); a.vm(f"buffer_store_dword v{vNON}, v{vL16}, {WS}, s{sF4S} offen sc1", "f4s"); a("s_mov_b64 exec, -1")
    assert o["poi_it2"] < 24
    def kv_check():
        lp, ld = a.label("Lkv"), a.label("Lkvd")
        k0 = vE + 24
        chk = f"v_max3_u32 v{k0}, v{vKV}, v{vKV+2}, v{vKV+4}\nv_max_u32 v{k0}, v{k0}, v{vKV+6}\nv_cmp_eq_u32 vcc, -1, v{k0}"
        if o["stamps"]: a(f"s_mov_b32 s{sSPIN}, 0")
        a(f"s_waitcnt vmcnt({a.cnt_after('kvl')})\n{chk}\ns_cbranch_vccnz {lp}\n{ld}:")
        stubs.append(f"{lp}:\ns_mov_b32 s{sSPIN}, 0\n{lp}b:\n" + "\n".join(kv_loads(None)) + f"\ns_add_u32 s{sSPIN}, s{sSPIN}, 1\ns_cmp_gt_u32 s{sSPIN}, {SPIN_MAX}\ns_waitcnt vmcnt(0)\ns_cbranch_scc1 {ld}\n{chk}\ns_cbranch_vccnz {lp}b\ns_branch {ld}")
        spinrec(28)
        a(f"{MF} {vr(vE,16)}, {vr(vKV,4)}, {vr(vPHI,4)}, 0\n{MF} {vr(vE,16)}, {vr(vKV+4,4)}, {vr(vPHI+4,4)}, {vr(vE,16)}")
    def oa_1(): a(f"v_add_f32 v{vE+24}, {f32(1e-6)}, v{vE+8}\nv_rcp_f32 v{vE+24}, v{vE+24}")
    def oa_2():
        a(f"v_mul_f32 v{vE+24}, v{vE+24}, v{vG}")
        for r2 in range(8): a(f"v_mul_f32 v{vE+r2}, v{vE+r2}, v{vE+24}")
        for i in range(4): a(f"v_cvt_pk_bf16_f32 v{vE+16+i}, v{vE+2*i}, v{vE+2*i+1}")
    def oa_3():
        a.vm(f"buffer_store_dwordx4 {vr(vE+16,4)}, v{vL16}, {WS}, s{sOA} offen sc1", "oa")
    dm = [(k_, b) for k_ in range(4) for b in range(2)]
    def dma_wob():
        if dm:
            k_, b = dm.pop(0)
            a.vm(f"buffer_load_dwordx4 v{vWOD if b == 0 else vWO2}, {sr(sWOB,4)}, s{sWOF+k_} offen offset:{1024*b} lds", "wob")
            if b == 1 and k_ < 3: a(f"s_add_u32 m0, s{sW2K}, {RING + (k_+1)*16384}\n;pad")
    vOFA, vOFB = 96, 64
    def ofr(k_): return (vOFA + 4*k_) if k_ < 8 else (vOFB + 4*(k_-8))
    def oload_ln(k_): return f"buffer_load_dwordx4 {vr(ofr(k_),4)}, v{vL16}, {WS}, s{sOL + k_//4} offen offset:{(k_%4)*1024} sc1"
    cur, nxt, vc, vn, kc, kn = vSB, vSA, vVB, vVA, vKB, vKA
    oal = list(range(8))
    wob0 = o.get("wob_blk", 7)
    exits = []
    class Rec:
        def __enter__(self): self.i = len(a.L); return self
        def __exit__(self, *e): exits[-1][1].extend(a.L[self.i:])
    for j in range(7, -1, -1):
        a.c(f"block {j}")
        E = lambda r_: a(f"v_exp_f32 v{cur+r_}, v{cur+r_}")
        def C(i_):
            a(f"v_cvt_pk_bf16_f32 v{vP+i_}, v{cur+2*i_}, v{cur+2*i_+1}")
        def A(i_):
            if j == 0: a(f"v_and_b32 v{vP+i_}, v{vP+i_}, v{vM+i_}")
        def mem(k):
            with Rec():
                if dm:
                    if j <= wob0 and k % 2 == 0: dma_wob()
                elif j <= o["oal_blk"] and oal:
                    k_ = oal.pop(0); a.vm(oload_ln(k_), ("ol", k_))
        if j == 7: a.pad(n0, 10)
        else: E(0); E(1); pv(vn+4, vP+4)
        exits.append((j, []))
        a(f"s_cmp_lt_u32 s{sQB}, {8-j}\ns_cbranch_scc1 L_ex{j}")
        if j == 7: E(0); E(1)
        if j == o["prio_blk"] and o["prio"]: a("s_setprio 0")
        if j in (3,): stamp(f"blk{j}")
        with Rec():
            if j == o["kvl_blk"]: list(kv_loads())
            if j == o["oal_blk"] + 1 or (j == 0 and o["oal_blk"] < 0): poll_issue(vF4P, sF4P, 3, "f4p")
            if j == o["oal_blk"]: poll_check(vF4P, sF4P, 3, "f4p", 25)
        E(2); E(3); mem(0); E(4); E(5)
        if j == o["kv_blk"]:
            with Rec(): kv_check()
            exits[-1][1].append("    s_nop 11")
        a("s_waitcnt lgkmcnt(0)")
        E(6); E(7)
        if j > 0:
            qk(nxt, kc)
            if j > 1: rdK(kn, j-2)
            a(f"v_sub_u32 v{vAV}, v{vAV}, v{vAVI}")
        C(0); C(1); mem(1); E(8); E(9); C(2); C(3); A(0); A(1); E(10); A(2); A(3); E(11)
        if j > 0: rdV(vn, vAV)
        E(12)
        if j == o["kv_blk"]:
            with Rec(): oa_1()
            exits[-1][1].append("    s_nop 0")
        pv(vc, vP); mem(2); E(13); E(14); E(15)
        if j == o["kv_blk"]:
            with Rec():
                oa_2()
                oa_3()
        C(4); C(5); mem(3); C(6); C(7); A(4); A(5); A(6); A(7)
        cur, nxt = nxt, cur; vc, vn = vn, vc; kc, kn = kn, kc
    a("s_nop 1"); pv(vn+4, vP+4)
    a("L_attn_end:")
    import re as _re
    ex = []
    for j, body in exits:
        ex.append(f"L_ex{j}:"); ex += body
    ex = "\n".join(ex)
    labs = set(_re.findall(r"^(L(?:poll|pd|kv|kvd)_\d+):", ex, _re.M)) | set(_re.findall(r"(L(?:poll|kv)_\d+)", ex))
    st2 = [t_ for t_ in stubs if any(t_.startswith(l_ + ":") for l_ in labs)]
    ren = lambda t_: _re.sub(r"(L(?:poll|pd|kv|kvd)_\d+)", r"\1x", t_)
    ex = ex.replace(";pad", "s_nop 0")
    stubs.append(ren(ex) + "\ns_waitcnt lgkmcnt(0)\ns_setprio 0\ns_branch L_attn_end")
    stubs.extend(ren(t_) for t_ in st2)
    assert not dm
    a(f"v_sub_f32 v{vT+1}, 1.0, v{vG}\nv_mov_b32 v12, v{vWA0}\nv_mov_b32 v13, v{vWA1}\ns_nop 8")
    a(f"v_cmp_lt_f32 vcc, {f32(2.0**-64)}, v{vO+8}\nv_rcp_f32 v{vT}, v{vO+8}\ns_mov_b64 {sr(sP,2)}, vcc\nv_cmp_gt_f32 vcc, {f32(2.0**64)}, v{vO+8}\ns_nop 1")
    a(f"s_and_b64 {sr(sP,2)}, {sr(sP,2)}, vcc\ns_cmp_eq_u64 {sr(sP,2)}, -1")
    a("s_branch L_maxpath" if o["force_fallback"] else "s_cbranch_scc0 L_maxpath")
    a("L_attn_ok:")
    a(f"v_mul_f32 v{vT}, v{vT}, v{vT+1}")
    for r_ in range(0, 8, 2): a(f"v_pk_mul_f32 {vr(vO+r_,2)}, {vr(vO+r_,2)}, {vr(vT,2)} op_sel_hi:[1,0]")
    for i in range(4): a(f"v_cvt_pk_bf16_f32 v{vQ+i}, v{vO+2*i}, v{vO+2*i+1}")
    a.vm(f"buffer_store_dwordx4 {vr(vQ,4)}, v{vL16}, {WS}, s{sOB} offen sc1", "ob")
    stamp("attn")
    if o["oal_blk"] < 0: poll_check(vF4P, sF4P, 3, "f4p", 25)
    for k_ in oal: a.vm(oload_ln(k_), ("ol", k_))
    pass
    wl = rdwo_list(vWO + 64, (12, 13))
    row, bw, br0, br1, vout = 24, 25, 26, 27, 28
    ad = []
    ad += f"v_and_b32 v{row}, 31, v{vL}\ns_lshl_b32 s{sT0}, s{sRW}, 5\nv_add_u32 v{row}, s{sT0}, v{row}\nv_lshrrev_b32 v{bw}, 5, v{vL}".split("\n")
    ad += f"v_and_b32 v{br0}, 15, v{row}\nv_xor_b32 v{bw}, v{bw}, v{br0}\nv_lshlrev_b32 v{bw}, 4, v{bw}\nv_lshl_add_u32 v{bw}, v{row}, 8, v{bw}".split("\n")
    ad += f"s_lshl_b32 s{sT0}, s{sH}, 14\nv_add_u32 v{bw}, s{sT0}, v{bw}".split("\n")
    ad += [f"v_xor_b32 v{vM+k_}, {2*k_*16}, v{bw}" for k_ in range(8)]
    ad += f"v_lshrrev_b32 v{row}, 3, v{vL}\ns_lshl_b32 s{sT0}, s{sW}, 3\nv_add_u32 v{row}, s{sT0}, v{row}".split("\n")
    ad += f"v_and_b32 v{br0}, 7, v{vL}\nv_lshlrev_b32 v{br0}, 1, v{br0}\nv_and_b32 v{br1}, 15, v{row}\nv_xor_b32 v{br0}, v{br0}, v{br1}".split("\n")
    ad += f"v_lshlrev_b32 v{br0}, 4, v{br0}\nv_lshl_add_u32 v{br0}, v{row}, 8, v{br0}\nv_xor_b32 v{br1}, 16, v{br0}".split("\n")
    ad += f"v_and_b32 v{vout}, 7, v{vL}\nv_lshlrev_b32 v{vout}, 4, v{vout}\nv_lshl_add_u32 v{vout}, v{row}, 10, v{vout}".split("\n")
    a(f"s_mov_b32 s{sSPIN}, 0")
    obk = o["obk"]; bk = o["bark"]; nissued = 0
    for k_ in range(16):
        if k_ == bk:
            a(f"s_waitcnt vmcnt({a.cnt_after('wob')})\ns_barrier")
            stamp("B5")
            for q_ in range(o["nwob"]):
                a(wl.pop(0)); nissued += 1
                if q_ % 8 == 3 and q_ > 4: a("s_waitcnt lgkmcnt(4)")
        if k_ == obk:
            a(f"s_waitcnt vmcnt({a.cnt_after('ob')})")
            stamp("obAck")
            for k2 in range(8, 16): a.vm(oload_ln(k2), ("ol", k2))
            if k_ >= bk:
                a("s_waitcnt lgkmcnt(4)")
                while wl:
                    a(wl.pop(0)); nissued += 1
                    if len(wl) % 8 == 0 and wl: a("s_waitcnt lgkmcnt(4)")
        if k_ >= 8: a(f"s_waitcnt vmcnt({a.cnt_after(('ol', k_))}) lgkmcnt({min(8, max(0, nissued - 4*(k_-7)))})")
        else: a(f"s_waitcnt vmcnt({a.cnt_after(('ol', k_))})")
        a(f"L_ob{k_}:\nv_cmp_eq_u32 vcc, -1, v{ofr(k_)}\ns_cbranch_vccnz L_obre{k_}\nL_obok{k_}:")
        for ct in range(2):
            ac = vACC0 + 16*ct
            a(f"{MF} {vr(ac,16)}, {vr(vWO+k_*8+ct*4,4)}, {vr(ofr(k_),4)}, {'0' if k_ == 0 else vr(ac,16)}")
            for _ in range(2):
                if ad: a(ad.pop(0))
        if k_ >= bk and wl:
            if k_ < 8: a("s_waitcnt lgkmcnt(8)")
            for _ in range(4): a(wl.pop(0)); nissued += 1
        if k_ == 7: stamp("Ahalf")
    assert not ad and not wl
    spinrec(24)
    stamp("Bhalf")
    a("s_nop 10")
    for k_ in range(8): a(f"ds_write_b128 v{vM+k_}, {vr(vACC0+4*k_,4)}")
    a("s_waitcnt lgkmcnt(0)\ns_barrier")
    stamp("redw")
    R = 128
    for kq in range(4):
        a(f"ds_read_b128 {vr(R+kq*8,4)}, v{br0} offset:{kq*16384}\nds_read_b128 {vr(R+kq*8+4,4)}, v{br1} offset:{kq*16384}")
    for kq in range(1, 4):
        a(f"s_waitcnt lgkmcnt({6-2*kq})")
        for j in range(0, 8, 2): a(f"v_pk_add_f32 {vr(R+j,2)}, {vr(R+j,2)}, {vr(R+8*kq+j,2)}")
    for i in range(4): a(f"v_cvt_pk_bf16_f32 v{R+32+i}, v{R+2*i}, v{R+2*i+1}")
    a(f"buffer_store_dwordx4 {vr(R+32,4)}, v{vout}, {sr(sOUT,4)}, s{sOUTO} offen {o.get('oflag', '').replace('_', ' ')}")
    a(f"s_or_b32 s{sT1}, s2, s{sW}")
    lab = only(f"s_cmp_eq_u32 s{sT1}, 0")
    a(f"v_mov_b32 v{row}, s{sNON}\nv_lshlrev_b32 v{bw}, 2, v{vL}")
    setexec(0xffff, 0)
    a(f"buffer_store_dword v{row}, v{bw}, {WS}, 0 offen sc1\ns_mov_b64 exec, -1")
    a(f"{lab}:")
    if o["stamps"]:
        stamp("issued")
        a("s_waitcnt vmcnt(0)")
        stamp("end")
        a(f"s_memrealtime s[{sTS}:{sTS+1}]\ns_waitcnt lgkmcnt(0)\nv_writelane_b32 v7, s100, 29\nv_writelane_b32 v7, s98, 30\nv_writelane_b32 v7, s{sTS}, 31")
        a(f"s_lshl_b32 s{sT0}, s2, 3\ns_add_u32 s{sT0}, s{sT0}, s{sW}\ns_lshl_b32 s{sT0}, s{sT0}, 7\ns_add_u32 s{sT0}, s{sT0}, {WS_DBG}")
        a(f"v_lshlrev_b32 v{row}, 2, v{vL}\ns_mov_b32 exec_hi, 0\nbuffer_store_dword v7, v{row}, {WS}, s{sT0} offen")
    if o.get("probe"):
        if o["probe"] == "fin": a("s_waitcnt vmcnt(0)"); stamp("fin")
        if "padx" in o: a(f"s_and_b32 s96, s2, 7\ns_cmp_lg_u32 s96, {o['padx']}\ns_cbranch_scc1 L_exit")
        a("s_sub_u32 s100, s100, s98\ns_lshl_b32 s100, s100, 1\ns_add_u32 s100, s100, 3000")
        if "padwg" in o:
            a("s_getreg_b32 s96, hwreg(HW_REG_XCC_ID)\ns_sub_u32 s96, s2, s96\ns_and_b32 s96, s96, 7\ns_mul_i32 s96, s96, 200\ns_add_u32 s100, s100, s96")
            if o["padwg"] >= 0: a(f"s_cmp_lg_u32 s2, {o['padwg']}\ns_cbranch_scc1 L_exit")
        if "padxcc" in o: a(f"s_getreg_b32 s96, hwreg(HW_REG_XCC_ID)\ns_and_b32 s96, s96, 7\ns_cmp_lg_u32 s96, {o['padxcc']}\ns_cbranch_scc1 L_exit")
        a("L_pad:\ns_memrealtime s[96:97]\ns_waitcnt lgkmcnt(0)\ns_sub_u32 s96, s96, s98\ns_cmp_lt_u32 s96, s100\ns_cbranch_scc1 L_pad")
    a("L_exit:\ns_endpgm")
    for hf_ in range(2):
        for k_ in range(8*hf_, 8*hf_ + 8): a(f"L_obre{k_}:\ns_mov_b32 s{sT2}, {k_}\ns_branch L_scan{hf_}")
        a(f"L_scan{hf_}:\ns_waitcnt vmcnt(0)")
        if o["rsleep"]: a(f"s_sleep {o['rsleep']}")
        for k_ in range(8*hf_, 8*hf_ + 8):
            a(f"v_cmp_eq_u32 vcc, -1, v{ofr(k_)}\ns_cbranch_vccz L_sc{k_}\n{oload_ln(k_)}\nL_sc{k_}:")
        a(f"s_add_u32 s{sSPIN}, s{sSPIN}, 1\ns_cmp_gt_u32 s{sSPIN}, {SPIN_MAX}\ns_waitcnt vmcnt(0)\ns_cbranch_scc1 L_give{hf_}")
        for k_ in range(8*hf_, 8*hf_ + 7): a(f"s_cmp_eq_u32 s{sT2}, {k_}\ns_cbranch_scc1 L_ob{k_}")
        a(f"s_branch L_ob{8*hf_+7}\nL_give{hf_}:")
        for k_ in range(8*hf_, 8*hf_ + 7): a(f"s_cmp_eq_u32 s{sT2}, {k_}\ns_cbranch_scc1 L_obok{k_}")
        a(f"s_branch L_obok{8*hf_+7}")
    for s_ in stubs: a(s_)
    a("L_maxpath:")
    m, ninf, ak, d = vT, 4, 5, 6
    vNEG = vACC0
    a(f"v_mov_b32 v{ninf}, 0xff800000\nv_lshrrev_b32 v{d}, 5, v{vL}\nv_lshlrev_b32 v{d}, 2, v{d}\nv_and_b32 v{ak}, 31, v{vL}\nv_sub_u32 v{d}, v{ak}, v{d}")
    for ph in range(2):
        C = "0" if ph == 0 else vr(vNEG, 16)
        if ph == 0: a(f"v_mov_b32 v{m}, v{ninf}")
        else:
            for r_ in range(16): a(f"v_mov_b32 v{vO+r_}, 0")
        a(f"s_mov_b32 s{sT0}, 8\ns_min_u32 s{sT1}, s{sQB}, 8\ns_sub_u32 s{sT1}, 8, s{sT1}\nv_mov_b32 v{ak}, v{vAK8}\nv_lshl_add_u32 v{vAV}, v{vAVI}, 3, v{vAV0}")
        a(f"L_mx{ph}:\nds_read_b128 {vr(vKA,4)}, v{ak}")
        if ph: rdV(vVA, vAV)
        a("s_waitcnt lgkmcnt(0)")
        qk(vSA, vKA, C); a("s_nop 15")
        for (blk, op) in ((8, "gt"), (0, "le")):
            lab = only(f"s_cmp_eq_u32 s{sT0}, {blk}")
            for r_ in range(16):
                a(f"v_cmp_{op}_i32 vcc, {8*(r_//4) + r_ % 4}, v{d}\ns_nop 1\nv_cndmask_b32_e64 v{vSA+r_}, v{vSA+r_}, v{ninf}, vcc")
            a(f"{lab}:")
        if ph == 0:
            for r_ in range(0, 16, 2): a(f"v_max3_f32 v{m}, v{m}, v{vSA+r_}, v{vSA+r_+1}")
        else:
            for r_ in range(16): a(f"v_exp_f32 v{vSA+r_}, v{vSA+r_}")
            for i in range(8): a(f"v_cvt_pk_bf16_f32 v{vP+i}, v{vSA+2*i}, v{vSA+2*i+1}")
            a("s_nop 1"); pv(vVA, vP); pv(vVA+4, vP+4)
        a(f"v_subrev_u32 v{ak}, 8192, v{ak}\nv_sub_u32 v{vAV}, v{vAV}, v{vAVI}\ns_sub_u32 s{sT0}, s{sT0}, 1\ns_cmp_ge_i32 s{sT0}, s{sT1}\ns_cbranch_scc1 L_mx{ph}")
        if ph == 0:
            a(f"v_mov_b32 v{ak}, v{m}\ns_nop 1\nv_permlane32_swap_b32 v{m}, v{ak}\ns_nop 1\nv_max_f32 v{m}, v{m}, v{ak}")
            for r_ in range(16): a(f"v_sub_f32 v{vNEG+r_}, 0, v{m}")
    a(f"s_nop 15\nv_rcp_f32 v{vT}, v{vO+8}\ns_branch L_attn_ok")
    a("L_codeend:")
    return a, o

HDR = open("gated_mix__linear_kernel_hedgehog__sliding_block__prompt.s.ref").read().split("; Override launch")[0]
def full(a, o):
    names = "; stamps: " + ",".join(o.get("_names", [])) + "\n" if o["stamps"] else ""
    return (HDR + names + f"; @launch grid=(256,1,1) block=(512,1,1) lds={LDS_BYTES}\n"
            '.amdgcn_target "amdgcn-amd-amdhsa--gfx950"\n.text\n'
            f".globl {NAME}\n.p2align 8\n.type {NAME},@function\n{NAME}:\n" + a.text() +
            '.section .rodata,"a"\n.p2align 6\n'
            f".amdhsa_kernel {NAME}\n  .amdhsa_next_free_vgpr 256\n  .amdhsa_next_free_sgpr 102\n"
            "  .amdhsa_accum_offset 256\n  .amdhsa_group_segment_fixed_size 0\n  .amdhsa_kernarg_size 88\n"
            "  .amdhsa_user_sgpr_count 2\n  .amdhsa_user_sgpr_kernarg_segment_ptr 1\n"
            "  .amdhsa_system_sgpr_workgroup_id_x 1\n.end_amdhsa_kernel\n")
if __name__ == "__main__":
    out = sys.argv[1]
    opts = {}
    for kv in sys.argv[2:]:
        if "=" in kv:
            k, v = kv.split("="); opts[k] = int(v) if v.lstrip("-").isdigit() else v
        else: opts[kv] = True
    open(out, "w").write(full(*gen(opts)))
```

```python
import sys, struct
NAME = "gated_mix__linear_kernel_hedgehog__sliding_block__prompt_kernel"

class Asm:
    def __init__(self):
        self.L = []; self.nlab = 0; self.q = []; self.ni = 0
    def __call__(self, s):
        for line in s.split("\n"):
            line = line.strip()
            if not line: continue
            if line.endswith(":"): self.L.append(line)
            else:
                self.L.append("    " + line)
                if not line.startswith(";"):
                    self.ni += (1 + int(line.split()[1])) if line.startswith("s_nop") else 1
    def c(self, s): self.L.append("    ; " + s)
    def label(self, b="L"):
        self.nlab += 1; return f"{b}_{self.nlab}"
    def vm(self, s, tag=None):
        x = getattr(self, "x", 0)
        skip = ((x & 1 and isinstance(tag, tuple) and tag[0] == "w" and tag[1] >= 24) or (x & 2 and tag == "wob") or (x & 4 and tag == "halo") or
                (x & 8 and isinstance(tag, tuple) and tag[0] == "ol" and tag[1] < 8) or (x & 16 and isinstance(tag, tuple) and tag[0] == "w" and 8 <= tag[1] < 24 and tag[2] == 1) or
                (x & 32 and tag in ("pk0", "pk1")) or (x & 64 and tag in ("poison", "poisonA")) or (x & 128 and tag in ("kvb0", "kvb")))
        if skip: self.q.append(("mark", tag)); self("s_nop 0"); return
        self(s); self.q.append(tag)
    def mark(self, tag): self.q.append(("mark", tag))
    def cnt_after(self, tag):
        idx = None
        for i, t in enumerate(self.q):
            if t == tag or t == ("mark", tag): idx = i
        assert idx is not None, tag
        return sum(1 for t in self.q[idx+1:] if not (isinstance(t, tuple) and t[0] == "mark"))
    def pad(self, n0, need):
        have = self.ni - n0
        if have < need: self(f"s_nop {need - have - 1}")
    def text(self):
        L = self.L
        if getattr(self, "nowait", 0):
            pats = [p for b, p in ((1, "Lpoll"), (2, "Lkv"), (4, "L_obre"), (8, "L_hre")) if self.nowait & b]
            L = ["    s_nop 0" if (l.strip().startswith("s_cbranch_vccnz") and any(p in l for p in pats)) else l for l in L]
        return "\n".join(L) + "\n"

def icost(line):
    m = line.split()[0]
    if m.startswith(("v_exp", "v_rcp", "v_permlane")): return 2
    if m in ("v_mul_f32", "v_add_f32", "v_fma_f32", "v_mov_b32", "v_and_b32", "v_xor_b32"): return 0.7
    return 1

class Side:
    def __init__(self, a): self.a = a; self.u = []; self.pos = {}; self.deferred = False
    def add(self, s):
        for line in s.split("\n"):
            line = line.strip()
            if line: self.u.append(("i", line))
    def block(self, fn, cost): self.u.append(("b", fn, cost))
    def sync(self): self.u.append(("sync",))
    def note(self, name): self.u.append(("note", name))
    def dist(self, name, n): self.u.append(("dist", name, n))
    def slot(self, budget):
        while self.u and budget > 0:
            u = self.u[0]
            if u[0] == "sync": return
            if u[0] == "dist":
                have = self.a.ni - self.pos[u[1]]
                if have < u[2]:
                    if budget < 1e8 and not self.deferred:
                        self.deferred = True; return
                    self.a(f"s_nop {u[2]-have-1}")
                self.deferred = False
            self.u.pop(0)
            if u[0] == "i": self.a(u[1]); budget -= icost(u[1])
            elif u[0] == "b": u[1](); budget -= u[2]
            elif u[0] == "note": self.pos[u[1]] = self.a.ni
    def barrier_passed(self):
        if self.u and self.u[0][0] == "sync": self.u.pop(0)

def vr(b, n=1): return f"v{b}" if n == 1 else f"v[{b}:{b+n-1}]"
def sr(b, n=1): return f"s{b}" if n == 1 else f"s[{b}:{b+n-1}]"
def f32(x): return "0x%08x" % struct.unpack("<I", struct.pack("<f", x))[0]
MF = "v_mfma_f32_32x32x16_bf16"
MF16 = "v_mfma_f32_16x16x32_bf16"

XB, OWN, RING, MISC = 2048, 67584, 83968, 149504
WPHI, GATEW, GP, ONES, H1S = 0, MISC, MISC + 1024, MISC + 2048, MISC + 6144
LDS_BYTES = 163840
SCR, SCRW = XB + 32768, 3328
def slot(n):
    R = lambda i: RING + i * 16384
    X = lambda i: XB + i * 16384
    if n < 8: return R(n % 4)
    return [X(0), X(1), R(0), R(1), R(2), R(3), X(0), X(1), R(0), R(1), R(2), R(3), X(2), X(3), X(0), X(1), R(0), R(1), R(2), R(3)][n - 8]
WS_F1, WS_F2, WS_F4, WS_KVF = 0x10000, 0x20000, 0x30000, 0x40000
WS_PART = 0x100000
PSTR, SSTR = 320, 320 * 32
WS_KVB, WS_O, WS_DBG, WS_SIZE = 0x500000, 0x900000, 0xD00000, 0x1000000
LOG2E = 1.4426950408889634
sX, sWA, sWB, sWS, sWOA, sWOB, sOUT = 4, 8, 12, 16, 20, 24, 28
sCH = 32
sW, sRW, sH, sHG, sRB, sROT, sNON, sW1K, sQB = 40, 41, 42, 43, 44, 45, 46, 47, 48
sT0, sT1, sT2 = 50, 51, 52
sSPIN, sRB3, sCB = 53, 54, 55
sOA, sOB = 56, 57
sP = 58
sPART, sKVB, sF1S, sF2S, sF4S, sKVFS = 60, 61, 62, 68, 49, 3
sF1P, sH1L, sF2P, sHAL, sKVS, sF4P, sOUTO = 83, 84, 85, 86, 87, 88, 89
sF2M = 90
sWOF = 64
sOL = 72
sXO = 76
sTS = 96
sW2K = 63
sHAL2 = 69
sU0, sU1, sU2, sV0, sV1 = 92, 93, 94, 95, 81
vG, vL, vL16, vXD, vWDX, vWDY, vWRD = 0, 1, 2, 3, 4, 5, 6
vXR, vWPHI, vM = 8, 12, 16
vAPW, vAVW, vAPR, vAVR, vAGP, vAK8, vPO, vVO = 24, 25, 26, 27, 28, 29, 30, 31
vAVW2, vPO2, vWOD, vHOW = 24, 25, 26, 27
vNON = vAGP
vACC0, vACC1, vWF, vE, vX = 32, 48, 64, 96, 128
vAK, vAV, vAVI, vAV0, vKVO, vWA0, vWA1, vL128 = range(vACC1, vACC1 + 8)
vFP, vF4P, vHP, vF4O = vACC1 + 8, vACC1 + 9, vACC1 + 10, vACC1 + 11
vWRD2 = 124
vWO2 = 30
SPIN_MAX = 200000

def gen(opts=None):
    o = dict(stamps=False, force_fallback=False, bud0=10, bud1=13, f1_it=16, h1_poll=21, h1_load=23, h1_wr=122, kvb_it=16, c1late=1, obk=8, bark=6, hpos=40, hstep=1, hloop=0, wrd0=0, wrds=2, prio=7543, b1b=5, hkeep=0, hfar=60, hstep2=10, kvfirst=1, kv0=4, kvpos=999, wobs=2, f4s_blk=8, pkv_it=8, pkv_it2=10, rsleep=0, nwob=0, bw=0, f2=1, f2_it=23, f2pos=22, poi_it=8, poi_it2=10, x1late=0,
             map24=True, kvl_blk=7, kv_blk=6, oal_blk=2, woa0=18, woa1=19, woa2=20, woa3=21, xpair=0, wopf=-2, wpf2=3, wpf3=3, sched=4,
             npro=999, c2pos=999)
    o.update(opts or {})
    a = Asm(); side = Side(a); a.x = o.get("x", 0); a.nowait = o.get("nowait", 0)
    global SPIN_MAX
    SPIN_MAX = 100 if a.x else 200000
    nst = [0]; pend = []
    def stamp(name=""):
        if o.get("probe") == name: a("s_memrealtime s[100:101]\ns_waitcnt lgkmcnt(0)"); a.ni -= 2
        if not o["stamps"]: return
        if o.get("allit") and name != "first": return
        if o.get("light") and name != "end": return
        i = nst[0]; nst[0] += 1; assert i < 24
        a(f"s_memtime s[{sTS}:{sTS+1}]\ns_waitcnt lgkmcnt(0)\nv_writelane_b32 v7, s{sTS}, {i}"); a.ni -= 3
        o.setdefault("_names", []).append(name)
    def stamp_a(name):
        if o.get("probe") == name: a("s_memrealtime s[100:101]"); a.ni -= 1
        if not o["stamps"] or o.get("light"): return
        i = nst[0]; nst[0] += 1; assert i < 24
        a(f"s_memtime s[{sTS}:{sTS+1}]"); a.ni -= 1; pend.append(i); o.setdefault("_names", []).append(name)
    def stamp_b():
        if pend: a(f"v_writelane_b32 v7, s{sTS}, {pend.pop()}"); a.ni -= 1
    def spinrec(i):
        if o["stamps"]: a(f"v_writelane_b32 v7, s{sSPIN}, {i}"); a.ni -= 1
    def srd(d, src, nbytes):
        a(f"s_mov_b32 s{d}, s{src}\ns_and_b32 s{d+1}, s{src+1}, 0xffff\ns_mov_b32 s{d+2}, {nbytes}\ns_mov_b32 s{d+3}, 0x20000")
    def only(cond):
        lab = a.label("Lskip"); a(cond); a(f"s_cbranch_scc0 {lab}"); return lab
    def setexec(lo, hi):
        if hi == 0 and lo <= 64: a(f"s_mov_b64 exec, {lo}")
        else: a(f"s_mov_b32 exec_lo, 0x{lo:x}\ns_mov_b32 exec_hi, 0x{hi:x}")
    WS = sr(sWS, 4)
    t0, t1, t2, t3, t4, t5, t6, t7, t8, t9 = range(vACC1, vACC1 + 10)

    a("s_cmp_ge_u32 s2, 256\ns_cbranch_scc1 L_exit")
    a("s_load_dwordx4 s[64:67], s[0:1], 0\ns_load_dwordx4 s[68:71], s[0:1], 16\ns_load_dwordx4 s[76:79], s[0:1], 56")
    a("s_load_dwordx4 s[72:75], s[0:1], 40\ns_load_dwordx2 s[80:81], s[0:1], 80")
    if o["stamps"]: a("v_mov_b32 v7, 0\ns_memrealtime s[98:99]\ns_memtime s[100:101]")
    if o.get("probe"): a("s_memrealtime s[98:99]\ns_memrealtime s[100:101]")
    a(f"v_lshrrev_b32 v{t0}, 6, v0\nv_and_b32 v{vL}, 63, v0")
    a(f"s_lshr_b32 s{sT0}, s2, 3\nv_readfirstlane_b32 s{sW}, v{t0}")
    a(f"s_getpc_b64 s[{sP}:{sP+1}]\nL_pc:")
    a(f"s_sub_u32 s{sOUT}, s{sP}, L_pc-{NAME}\ns_subb_u32 s{sOUT+1}, s{sP+1}, 0\ns_and_b32 s{sOUT+1}, s{sOUT+1}, 0xffff\ns_mov_b32 s{sOUT+2}, L_codeend-{NAME}\ns_mov_b32 s{sOUT+3}, 0x20000")
    lab = only(f"s_cmp_eq_u32 s{sW}, 7")
    a(f"v_and_b32 v{t3}, 3, v{vL}\nv_lshlrev_b32 v{t3}, 7, v{t3}\ns_lshl_b32 s{sT1}, s{sT0}, 9")
    a(f"buffer_load_dword v{vE+31}, v{t3}, {sr(sOUT,4)}, s{sT1} offen")
    a(f"{lab}:")
    if not o["map24"]:
        a(f"s_and_b32 s{sHG}, s2, 7\ns_mov_b32 s{sRB}, s{sT0}\ns_add_u32 s{sROT}, s{sRB}, s{sHG}")
    elif o["map24"] == 2:
        a(f"s_and_b32 s{sRB}, s2, 3\ns_lshl_b32 s{sRB}, s{sRB}, 3\ns_and_b32 s{sT1}, s{sT0}, 7\ns_add_u32 s{sRB}, s{sRB}, s{sT1}")
        a(f"s_and_b32 s{sHG}, s2, 4\ns_lshr_b32 s{sT1}, s{sT0}, 3\ns_add_u32 s{sHG}, s{sHG}, s{sT1}")
        a(f"s_lshl_b32 s{sROT}, s{sHG}, 1\ns_lshr_b32 s{sT1}, s{sHG}, 2\ns_add_u32 s{sROT}, s{sROT}, s{sT1}\ns_add_u32 s{sROT}, s{sROT}, s{sRB}")
    else:
        a(f"s_and_b32 s{sRB}, s2, 1\ns_lshl_b32 s{sRB}, s{sRB}, 4\ns_and_b32 s{sT1}, s{sT0}, 15\ns_add_u32 s{sRB}, s{sRB}, s{sT1}")
        a(f"s_and_b32 s{sHG}, s2, 6\ns_lshr_b32 s{sT1}, s{sT0}, 4\ns_add_u32 s{sHG}, s{sHG}, s{sT1}")
        a(f"s_lshl_b32 s{sROT}, s{sHG}, 2\ns_lshr_b32 s{sT1}, s{sHG}, 1\ns_add_u32 s{sROT}, s{sROT}, s{sT1}\ns_add_u32 s{sROT}, s{sROT}, s{sRB}")
    a(f"s_and_b32 s{sROT}, s{sROT}, 7\ns_lshl_b32 s{sW1K}, s{sW}, 10\nv_lshlrev_b32 v{vL16}, 4, v{vL}\ns_lshl_b32 s{sW2K}, s{sW}, 11")
    a(f"v_lshrrev_b32 v{t0}, 3, v0\nv_and_b32 v{t1}, 7, v{vL}\nv_bfe_u32 v{t2}, v{vL}, 4, 1")
    a(f"v_bfe_u32 v{t3}, v{t0}, 1, 3\nv_xor_b32 v{t3}, v{t3}, v{t1}\nv_lshlrev_b32 v{t3}, 4, v{t3}")
    a(f"s_lshl_b32 s{sT1}, s{sRB}, 6\nv_add_u32 v{t4}, s{sT1}, v{t0}\nv_lshl_add_u32 v{vXD}, v{t4}, 10, v{t3}")
    a(f"v_lshlrev_b32 v{t3}, 1, v{t2}\nv_xor_b32 v{t3}, v{t3}, v{t1}\nv_lshlrev_b32 v{t3}, 4, v{t3}")
    a(f"v_mul_u32_u24 v{t4}, 3072, v{t0}\ns_lshl_b32 s{sT1}, s{sHG}, 7\nv_add3_u32 v{vWDX}, v{t4}, v{t3}, s{sT1}")
    a(f"v_xor_b32 v{vWDY}, 64, v{vWDX}\ns_mul_i32 s{sCH}, s{sROT}, {64*3072}")
    a(f"s_lshl_b32 s{sT2}, s{sROT}, 7\nv_add_u32 v{t5}, s{sT2}, v{vL16}\nv_and_b32 v{t5}, 1023, v{t5}")
    a("s_waitcnt lgkmcnt(0)")
    if o.get("probe") == "karg": stamp("karg")
    srd(sX, 64, 2097152); srd(sWA, 66, 1572864)
    passes = [((sWA, 1024), (sWA, 2048)), ((sWB, 2048), (sWB, 3072)), ((sWA, 0), (sWB, 1024))]
    def dma_x_m0(n): a(f"s_add_u32 m0, s{sW1K}, {XB + n*8192}")
    def dma_x_ld(n):
        if n == 0: so = sT2
        elif n < 3: a(f"s_add_u32 s{sT0}, s{sROT}, {n}\ns_and_b32 s{sT0}, s{sT0}, 7\ns_lshl_b32 s{sT0}, s{sT0}, 7"); so = sT0
        else: so = sXO + n - 3
        a.vm(f"buffer_load_dwordx4 v{vXD}, {sr(sX,4)}, s{so} offen lds", ("x", n))
    cur_m0 = [None]
    def dma_m0(n, b):
        if b == "x":
            if cur_m0[0] != ("x", n): cur_m0[0] = ("x", n); dma_x_m0(n)
            return
        if cur_m0[0] == n: return
        cur_m0[0] = n
        off = passes[n // 8][0][1] if n < 24 else 0
        a(f"s_add_u32 m0, s{sW2K}, {slot(n) - off}")
    def dma_ld(n, b):
        if a.L[-1].strip().startswith("s_add_u32 m0"): a("s_nop 0")
        if b == "x": return dma_x_ld(n)
        if n < 24:
            p, i = divmod(n, 8); d, off = passes[p][b]
            a.vm(f"buffer_load_dwordx4 v{vWDX if b == 0 else vWDY}, {sr(d,4)}, s{sCH+i} offen offset:{off} lds", ("w", n, b))
        else:
            a.vm(f"buffer_load_dwordx4 v{vWOD if b == 0 else vWO2}, {sr(sWOA,4)}, s{sWOF+(n-24)} offen offset:{1024*b} lds", ("w", n, b))
    def dma(n, b): dma_m0(n, b); dma_ld(n, b)
    nrow = o.get("nrow") or {0: 16, 1: 32, 2: 64}[int(o["map24"])]
    def pf2():
        per = nrow // 4; p3 = vE + 30
        a(f"s_and_b32 s{sT0}, s{sRB}, {512//nrow-1}\ns_lshl_b32 s{sT0}, s{sT0}, 2\ns_lshr_b32 s{sT1}, s{sW}, 1\ns_add_u32 s{sT0}, s{sT0}, s{sT1}\ns_mul_i32 s{sT0}, s{sT0}, {per*3072}")
        a(f"s_lshl_b32 s{sT1}, s{sHG}, 7\ns_add_u32 s{sT0}, s{sT0}, s{sT1}\ns_and_b32 s{sT1}, s{sW1K}, 1024\ns_add_u32 s{sT0}, s{sT0}, s{sT1}\nv_mul_u32_u24 v{p3}, 3072, v{vL}")
        setexec((1 << per) - 1, 0)
        a.vm(f"buffer_load_dword v{vE+31}, v{p3}, {sr(sWB,4)}, s{sT0} offen offset:2048"); a("s_mov_b64 exec, -1")
    def pf3():
        per = nrow // 2; p3 = vE + 30
        l1, l2, l3, l4 = (a.label("Lpf") for _ in range(4))
        a(f"s_cmp_ge_u32 s{sW}, 4\ns_cbranch_scc1 {l1}")
        a(f"s_and_b32 s{sT0}, s{sRB}, {512//nrow-1}\ns_lshl_b32 s{sT0}, s{sT0}, 1\ns_and_b32 s{sT1}, s{sW}, 1\ns_add_u32 s{sT0}, s{sT0}, s{sT1}\ns_mul_i32 s{sT0}, s{sT0}, {per*3072}")
        a(f"s_lshl_b32 s{sT1}, s{sHG}, 7\ns_add_u32 s{sT0}, s{sT0}, s{sT1}\nv_mul_u32_u24 v{p3}, 3072, v{vL}")
        setexec((1 << per) - 1, 0)
        a(f"s_cmp_ge_u32 s{sW}, 2\ns_cbranch_scc1 {l2}\nbuffer_load_dword v{vE+31}, v{p3}, {sr(sWA,4)}, s{sT0} offen\ns_branch {l4}")
        a(f"{l2}:\nbuffer_load_dword v{vE+31}, v{p3}, {sr(sWB,4)}, s{sT0} offen offset:1024\ns_branch {l4}")
        a(f"{l1}:\ns_lshl_b32 s{sT0}, s2, 11\ns_and_b32 s{sT1}, s{sW1K}, 1024\ns_add_u32 s{sT0}, s{sT0}, s{sT1}\nv_lshlrev_b32 v{p3}, 7, v{vL}")
        setexec(0xff, 0)
        a(f"s_cmp_ge_u32 s{sW}, 6\ns_cbranch_scc1 {l3}\nbuffer_load_dword v{vE+31}, v{p3}, {sr(sWOA,4)}, s{sT0} offen\ns_branch {l4}")
        a(f"{l3}:\nbuffer_load_dword v{vE+31}, v{p3}, {sr(sWOB,4)}, s{sT0} offen")
        a(f"{l4}:\ns_mov_b64 exec, -1"); a.q.append("pf3"); a.ni -= 20
    def pf(pos):
        if o["wpf2"] == pos: pf2()
        if o["wpf3"] == pos: pf3()
    dma(0, "x"); dma(0, 0); dma(0, 1)
    a("s_load_dword s82, s[80:81], 0")
    srd(sWOA, 68, 16384); srd(sWOB, 76, 1024)
    lab = only(f"s_cmp_lt_u32 s{sW}, 2")
    a(f"s_lshl_b32 s{sT0}, s{sHG}, 11\ns_add_u32 m0, s{sW1K}, {WPHI}\ns_add_u32 s{sT0}, s{sT0}, s{sW1K}")
    a(f"buffer_load_dwordx4 v{vL16}, {sr(sWOA,4)}, s{sT0} offen lds")
    a(f"{lab}:")
    lab = only(f"s_cmp_eq_u32 s{sW}, 2")
    a(f"s_mov_b32 m0, {GATEW}\ns_nop 0\nbuffer_load_dwordx4 v{t5}, {sr(sWOB,4)}, 0 offen lds")
    a(f"{lab}:")
    a.mark("misc")
    if not o["x1late"] and not o["c1late"]: dma(1, "x")
    a("s_sub_u32 s72, s72, 1024\ns_subb_u32 s73, s73, 0")
    srd(sWB, 72, 1572864 + 1024); srd(sWOA, 70, 524288); srd(sWOB, 74, 524288)
    pf(-3)
    srd(sWS, 80, WS_SIZE); srd(sOUT, 78, 2097152)
    a(f"s_and_b32 s{sRW}, s{sW}, 1\ns_lshr_b32 s{sH}, s{sW}, 1")
    for i in range(1, 8):
        a(f"s_add_u32 s{sCH+i}, s{sROT}, {i}\ns_and_b32 s{sCH+i}, s{sCH+i}, 7")
        if i >= 3: a(f"s_lshl_b32 s{sXO+i-3}, s{sCH+i}, 7")
        a(f"s_mul_i32 s{sCH+i}, s{sCH+i}, {64*3072}")
    a(f"s_lshr_b32 s{sT0}, s2, 3\ns_and_b32 s{sRB3}, s2, 7\ns_lshl_b32 s{sRB3}, s{sRB3}, 2\ns_lshr_b32 s{sT1}, s{sT0}, 3\ns_add_u32 s{sRB3}, s{sRB3}, s{sT1}\ns_and_b32 s{sCB}, s{sT0}, 7")
    Q4 = 240; O8 = 244
    a(f"v_lshlrev_b32 v{t3}, 4, v{t1}\nv_lshl_add_u32 v{t3}, v{t0}, 11, v{t3}")
    a(f"s_lshl_b32 s{sT0}, s{sCB}, 7\nv_add_u32 v{Q4+2}, s{sT0}, v{t3}")
    l32, half, row, g, r, c = t6, t7, t0, t2, t8, t9
    a(f"v_and_b32 v{l32}, 31, v{vL}\nv_lshrrev_b32 v{half}, 5, v{vL}\nv_bfe_u32 v{r}, v{vL}, 2, 2\nv_and_b32 v{c}, 3, v{vL}")
    a(f"s_lshl_b32 s{sT0}, s{sRW}, 5\nv_add_u32 v{row}, s{sT0}, v{l32}")
    a(f"v_bfe_u32 v{t1}, v{row}, 1, 3\nv_xor_b32 v{t1}, v{t1}, v{half}\nv_lshlrev_b32 v{t1}, 4, v{t1}\nv_lshl_add_u32 v{vXR}, v{row}, 7, v{t1}")
    for s in range(1, 4): a(f"v_xor_b32 v{vXR+s}, {s*32}, v{vXR}")
    vGACC, vGXF, vGF, vGX, vGA, vWPA, vSG = vE, vE+16, vE+20, vE+24, vE+25, vE+26, vE+27
    a(f"s_lshl_b32 s{sT0}, s{sH}, 5\nv_xor_b32 v{vGX}, s{sT0}, v{vXR}\ns_add_u32 s{sT0}, s{sT0}, {GATEW}\nv_lshl_add_u32 v{vGA}, v{half}, 4, s{sT0}")
    a(f"v_bfe_u32 v{t1}, v{vL}, 3, 1\nv_lshl_add_u32 v{t1}, v{t1}, 2, v{c}\nv_lshl_add_u32 v{vGA}, v{t1}, 7, v{vGA}")
    a(f"v_lshrrev_b32 v{t3}, 1, v{r}\nv_lshl_add_u32 v{t3}, v{g}, 1, v{t3}\nv_xor_b32 v{t3}, s{sH}, v{t3}\nv_lshlrev_b32 v{t3}, 5, v{t3}")
    a(f"v_lshl_add_u32 v{t5}, v{half}, 4, v{r}\nv_lshlrev_b32 v{t5}, 7, v{t5}\nv_lshl_add_u32 v{t5}, v{c}, 3, v{t5}\nv_add_u32 v{t3}, v{t3}, v{t5}")
    a(f"v_lshl_add_u32 v{vWRD2}, v{g}, 10, v{t3}\nv_add_u32 v{vWRD}, {RING}, v{vWRD2}")
    a(f"v_lshrrev_b32 v{t4}, 1, v{c}\nv_lshl_add_u32 v{t1}, v{half}, 2, v{r}\nv_lshlrev_b32 v{vWPA}, 5, v{t1}")
    a(f"v_lshl_add_u32 v{vWPA}, v{g}, 4, v{vWPA}\nv_lshl_add_u32 v{vWPA}, v{t4}, 3, v{vWPA}")
    a(f"s_lshl_b32 s{sT0}, s{sH}, 9\ns_add_u32 s{sT0}, s{sT0}, {WPHI}\nv_add_u32 v{vWPA}, s{sT0}, v{vWPA}")
    a(f"v_bfe_u32 v{vSG}, v{vL}, 2, 1\nv_mul_u32_u24 v{vSG}, 0x8000, v{vSG}\nv_lshl_or_b32 v{vSG}, v{vSG}, 16, v{vSG}")
    if o["x1late"] and not o["c1late"]: dma(1, "x")
    if not o["c1late"]: dma(1, 0); dma(1, 1)
    VL, SL = [], []
    V = lambda t_: VL.extend(t_.split('\n'))
    S = lambda t_: SL.extend(t_.split('\n'))
    lab = only(f"s_cmp_eq_u32 s{sW}, 3")
    for i in range(4): a(f"v_mov_b32 v{vE+i}, 0x3f803f80")
    a(f"v_add_u32 v{vE+4}, {ONES}, v{vL16}\nds_write_b128 v{vE+4}, {vr(vE,4)}")
    a(f"{lab}:")
    V(f"v_and_b32 v{t1}, 1, v{r}\nv_mul_u32_u24 v{t3}, 1088, v{t1}\nv_lshrrev_b32 v{t1}, 1, v{r}\nv_lshl_add_u32 v{t1}, v{half}, 2, v{t1}\nv_lshl_add_u32 v{t3}, v{t1}, 7, v{t3}")
    V(f"v_lshl_add_u32 v{t3}, v{g}, 5, v{t3}\nv_lshl_add_u32 v{t3}, v{c}, 3, v{t3}")
    V(f"s_sub_u32 s{sV0}, s{sH}, s{sRB3}\ns_and_b32 s{sV0}, s{sV0}, 3\ns_lshl_b32 s{sV0}, s{sV0}, 14\ns_add_u32 s{sV0}, s{sV0}, {RING}\nv_add_u32 v{O8+5}, s{sV0}, v{t3}\nv_xor_b32 v{O8+6}, 64, v{O8+5}")
    V(f"s_lshl_b32 s{sV0}, s{sH}, 8\ns_add_u32 s{sV0}, s{sV0}, {GP}\nv_lshl_add_u32 v{vAGP}, v{row}, 2, s{sV0}")
    V(f"s_mul_i32 s{sV0}, s{sW}, {SCRW}\ns_add_u32 s{sV0}, s{sV0}, {SCR}\nv_add_u32 v{vAPW}, s{sV0}, v{vL16}\nv_lshl_add_u32 v{vAVW}, v{half}, 6, v{vAPW}")
    V(f"v_lshrrev_b32 v{t1}, 4, v{vL}\nv_lshl_add_u32 v{t5}, v{t1}, 3, v{r}\nv_and_b32 v{c}, 1, v{c}\nv_lshlrev_b32 v{c}, 3, v{c}")
    V(f"v_lshl_add_u32 v{t3}, v{t5}, 4, v{c}\ns_mul_i32 s{sV0}, s{sH}, {2*SCRW}\ns_add_u32 s{sV0}, s{sV0}, {SCR}\nv_add_u32 v{t3}, s{sV0}, v{t3}")
    V(f"v_mul_u32_u24 v{t5}, 576, v{t4}\nv_add_u32 v{vAVR}, v{t5}, v{t3}\nv_mul_u32_u24 v{t5}, 1088, v{t4}\ns_lshl_b32 s{sV0}, s{sRW}, 9\nv_add3_u32 v{vAPR}, v{t5}, v{t3}, s{sV0}")
    V(f"v_mul_u32_u24 v{t1}, {SSTR}, v{t1}\nv_and_b32 v{t3}, 15, v{vL}\nv_lshl_add_u32 v{vPO}, v{t3}, 4, v{t1}")
    V(f"v_lshlrev_b32 v{t1}, 6, v{half}\nv_xor_b32 v{vVO}, v{t1}, v{vL16}")
    V(f"s_lshl_b32 s{sV0}, s{sRW}, 13\ns_lshl_b32 s{sV1}, s{sH}, 11\ns_add_u32 s{sV0}, s{sV0}, s{sV1}\ns_add_u32 s{sV1}, s{sV0}, {XB}\nv_add_u32 v{O8}, s{sV1}, v{vL16}\nv_add_u32 v{vAK8}, 65536, v{O8}\nv_xor_b32 v{Q4}, v{t1}, v{vAK8}")
    V(f"s_lshl_b32 s{sHAL}, s{sHG}, 19\ns_lshl_b32 s{sV1}, s{sRB}, 14\ns_add_u32 s{sHAL}, s{sHAL}, s{sV1}\ns_add_u32 s{sHAL}, s{sHAL}, {WS_KVB}\ns_add_u32 s{sKVB}, s{sHAL}, s{sV0}\ns_lshl_b32 s{sHAL}, s{sW}, 12\ns_add_u32 s{sHAL}, s{sHAL}, s{sV1}\ns_sub_u32 s{sHAL2}, s{sHAL}, 65536\ns_and_b32 s{sHAL2}, s{sHAL2}, 0xffffff\ns_sub_u32 s{sHAL}, s{sHAL}, 32768\ns_and_b32 s{sHAL}, s{sHAL}, 0xffffff")
    V(f"v_xor_b32 v{t1}, v{half}, v{t4}\nv_lshl_add_u32 v{t1}, v{t1}, 2, v{r}\nv_lshl_add_u32 v{t1}, v{t1}, 4, v{c}\nv_lshl_add_u32 v{t1}, v{t4}, 9, v{t1}")
    V(f"s_add_u32 s{sV0}, s{sV0}, {XB+1024}\nv_add_u32 v{t1}, s{sV0}, v{t1}\nv_cmp_eq_u32 {sr(sP,2)}, 1, v{g}\nv_mov_b32 v{t3}, {ONES+128}\nv_mov_b32 v{t5}, 8192")
    V(f"v_lshlrev_b32 v{O8+7}, 7, v{vL}\nv_cndmask_b32 v{O8+3}, v{t1}, v{t3}, {sr(sP,2)}\nv_cndmask_b32 v{O8+2}, v{t5}, 0, {sr(sP,2)}\nv_lshl_add_u32 v{O8+1}, v{O8+2}, 3, v{O8+3}")
    V(f"v_min_u32 v{t1}, 16, v{l32}\nv_lshlrev_b32 v{t3}, 3, v{t1}\nv_lshl_add_u32 v{O8+4}, v{half}, 10, v{t3}\nv_mul_u32_u24 v{t3}, {PSTR}, v{half}\nv_lshl_add_u32 v{Q4+1}, v{t1}, 4, v{t3}")
    V(f"s_add_u32 s{sV0}, s{sW1K}, {H1S}\nv_add_u32 v{Q4+3}, s{sV0}, v{vL16}\nv_mov_b32 v{vE+29}, v{Q4+3}")
    V(f"ds_write_b128 v{Q4+3}, {vr(Q4,4)}\nds_write_b128 v{vAK8}, {vr(O8,4)}\nds_write_b128 v{vAK8}, {vr(O8+4,4)} offset:1024\ns_waitcnt lgkmcnt(5)")
    vPK4 = vE + 29
    V(f"v_lshlrev_b32 v{t1}, 2, v{half}\nv_sub_u32 v{t1}, v{l32}, v{t1}\nv_mov_b32 v{t3}, 0xffff")
    for i in range(8):
        k0 = 8*(i//2) + 2*(i % 2)
        V(f"v_cmp_le_i32 {sr(sP,2)}, {k0}, v{t1}\nv_cmp_lt_i32 vcc, {k0}, v{t1}\ns_nop 0\nv_cndmask_b32 v{vM+i}, 0, v{t3}, {sr(sP,2)}\nv_cndmask_b32_e64 v{vM+i}, v{vM+i}, -1, vcc")
    S(f"s_lshl_b32 s{sQB}, s{sRB}, 1\ns_add_u32 s{sQB}, s{sQB}, s{sRW}")
    S(f"s_lshl_b32 s{sU2}, s{sHG}, 5\ns_lshl_b32 s{sU1}, s{sW}, 2\ns_add_u32 s{sU1}, s{sU1}, s{sU2}")
    S(f"s_lshl_b32 s{sF1P}, s{sU1}, 7\ns_add_u32 s{sF1P}, s{sF1P}, {WS_F1}")
    S(f"s_mul_i32 s{sPART}, s{sU1}, {SSTR}\ns_mul_i32 s{sU1}, s{sRB}, {PSTR}\ns_add_u32 s{sPART}, s{sPART}, s{sU1}\ns_add_u32 s{sPART}, s{sPART}, {WS_PART}")
    S(f"s_add_u32 s{sU1}, s{sU2}, s{sRB}")
    S(f"s_mul_i32 s{sH1L}, s{sU1}, {SSTR}\ns_mul_i32 s{sU0}, s{sW}, {4*PSTR}\ns_add_u32 s{sH1L}, s{sH1L}, s{sU0}\ns_add_u32 s{sH1L}, s{sH1L}, {WS_PART}")
    S(f"s_lshl_b32 s{sKVFS}, s{sU1}, 8\ns_add_u32 s{sKVFS}, s{sKVFS}, {WS_KVF}\ns_lshl_b32 s{sU1}, s{sU1}, 7\ns_add_u32 s{sF1S}, s{sU1}, {WS_F1}\ns_add_u32 s{sF2S}, s{sU1}, {WS_F2}\ns_sub_u32 s{sF2P}, s{sF2S if o['f2'] else sF1S}, 512")
    S(f"s_min_u32 s{sU0}, s{sRB}, 4\ns_sub_u32 s{sU0}, 4, s{sU0}\ns_lshl_b32 s{sF2M}, 31, s{sU0}\ns_and_b32 s{sF2M}, s{sF2M}, 31\ns_mov_b32 s{sF2M+1}, 0")
    S(f"s_lshl_b32 s{sU0}, s{sH}, 3\ns_add_u32 s{sU0}, s{sU0}, s{sU2}\ns_lshl_b32 s{sKVS}, s{sU0}, 8\ns_add_u32 s{sKVS}, s{sKVS}, {WS_KVF}")
    S(f"s_lshl_b32 s{sF4S}, s{sRB}, 3\ns_add_u32 s{sF4S}, s{sF4S}, s{sHG}\ns_lshl_b32 s{sF4S}, s{sF4S}, 7\ns_add_u32 s{sF4S}, s{sF4S}, {WS_F4}")
    S(f"s_lshl_b32 s{sF4P}, s{sRB3}, 10\ns_lshl_b32 s{sU0}, s{sH}, 8\ns_add_u32 s{sF4P}, s{sF4P}, s{sU0}\ns_add_u32 s{sF4P}, s{sF4P}, {WS_F4}")
    S(f"s_lshl_b32 s{sU2}, s{sRW}, 15\ns_add_u32 s{sU2}, s{sU2}, {WS_O}")
    S(f"s_lshl_b32 s{sOA}, s{sRB}, 17\ns_add_u32 s{sOA}, s{sOA}, s{sU2}\ns_lshl_b32 s{sU1}, s{sHG}, 2\ns_add_u32 s{sU1}, s{sU1}, s{sH}\ns_lshl_b32 s{sU1}, s{sU1}, 10\ns_add_u32 s{sOA}, s{sOA}, s{sU1}\ns_add_u32 s{sOB}, s{sOA}, 65536")
    S(f"s_lshl_b32 s{sOL}, s{sRB3}, 17\ns_add_u32 s{sOL}, s{sOL}, s{sU2}\ns_lshl_b32 s{sU1}, s{sH}, 13\ns_add_u32 s{sOL}, s{sOL}, s{sU1}")
    S(f"s_add_u32 s{sOL+1}, s{sOL}, 4096\ns_add_u32 s{sOL+2}, s{sOL}, 65536\ns_add_u32 s{sOL+3}, s{sOL}, {65536+4096}")
    S(f"s_lshl_b32 s{sOUTO}, s{sRB3}, 16\ns_lshl_b32 s{sU1}, s{sCB}, 7\ns_add_u32 s{sOUTO}, s{sOUTO}, s{sU1}")
    for i in range(4):
        S(f"s_add_u32 s{sWOF+i}, s{sRB3}, {i}\ns_and_b32 s{sWOF+i}, s{sWOF+i}, 3\ns_lshl_b32 s{sWOF+i}, s{sWOF+i}, 17")
    def prewrite():
        a(f"s_add_u32 s{sU0}, s{sKVFS}, 128\ns_cmp_eq_u32 s{sW}, 3\ns_cselect_b32 s{sU0}, s{sKVFS}, s{sU0}\ns_cmp_eq_u32 s{sW}, 2\ns_cselect_b32 s{sU0}, s{sF4S}, s{sU0}")
        a(f"s_cmp_eq_u32 s{sW}, 1\ns_cselect_b32 s{sU0}, s{sF2S}, s{sU0}\ns_cmp_eq_u32 s{sW}, 0\ns_cselect_b32 s{sU0}, s{sF1S}, s{sU0}")
        for i in range(4): a(f"v_mov_b32 v{252+i}, -1")
        setexec(0xff, 0)
        a.vm(f"buffer_store_dwordx4 {vr(252,4)}, v{vL16}, {WS}, s{sU0} offen sc1", "rec"); a("s_mov_b64 exec, -1")
    Z = []
    while VL or SL:
        if VL: Z.append(VL.pop(0))
        if SL and not (Z and Z[-1].startswith("s_") and VL): Z.append(SL.pop(0))
    npro = o["npro"]
    for k_, ln in enumerate(Z[:npro]):
        a(ln)
        if k_ == o["c2pos"]: dma(2, "x"); dma(2, 0); dma(2, 1)
    Z = Z[npro:]
    pre_done = not Z
    if pre_done: prewrite()

    def rd_w(n, s, t):
        ad_, of_ = (vWRD, slot(n) - RING) if slot(n) >= RING else (vWRD2, slot(n))
        return f"ds_read_b64_tr_b16 {vr(vWF + (n%2)*16 + s*4 + t*2, 2)}, v{ad_} offset:{of_ + s*4096 + t*512}"
    def rd_x(n, s): return f"ds_read_b128 {vr(vX + n*16 + s*4, 4)}, v{vXR+s} offset:{XB + n*8192}"
    def rd_g(n): return f"ds_read_b128 {vr(vGXF,4)}, v{vGX} offset:{XB + n*8192}" + (f"\nds_read_b128 {vr(vGF,4)}, v{vGA}" if n == 0 else "")
    def flag(*soffs):
        n0 = a.ni
        lab = only(f"s_cmp_eq_u32 s{sW}, 1")
        a("s_mov_b64 exec, 1")
        for soff in soffs: a(f"buffer_store_dword v{vNON}, v{vL16}, {WS}, s{soff} offen sc1")
        a(f"s_mov_b64 exec, -1\n{lab}:")
        a.ni = n0 + 2
    def poll_issue(dst, soff, mask, tag, vL128=vL128):
        a(f"s_mov_b64 exec, {mask}"); a.vm(f"buffer_load_dword v{dst}, v{vL128}, {WS}, s{soff} offen sc1", tag); a("s_mov_b64 exec, -1")
    stubs = []
    def poll_check(dst, soff, mask, tag, rec=None, vL128=vL128):
        lp, ld = a.label("Lpoll"), a.label("Lpd")
        if o["stamps"]: a(f"s_mov_b32 s{sSPIN}, 0"); a.ni -= 1
        a(f"s_mov_b64 exec, {mask}\ns_waitcnt vmcnt({a.cnt_after(tag)})\nv_cmp_ne_u32 vcc, v{vNON}, v{dst}\ns_cbranch_vccnz {lp}\n{ld}:\ns_mov_b64 exec, -1")
        stubs.append(f"{lp}:\ns_mov_b32 s{sSPIN}, 0\n{lp}b:\nbuffer_load_dword v{dst}, v{vL128}, {WS}, s{soff} offen sc1\ns_add_u32 s{sSPIN}, s{sSPIN}, 1\n"
                     f"s_cmp_gt_u32 s{sSPIN}, {SPIN_MAX}\ns_waitcnt vmcnt(0)\ns_cbranch_scc1 {ld}\nv_cmp_ne_u32 vcc, v{vNON}, v{dst}\ns_cbranch_vccnz {lp}b\ns_branch {ld}")
        if rec is not None: spinrec(rec)
    def softmax16(S, P, t, pk=True):
        L = [f"v_max3_f32 v{t+1+k}, v{S+3*k}, v{S+3*k+1}, v{S+3*k+2}" for k in range(5)]
        L += [f"v_mov_b32 v{t}, {f32(LOG2E)}", f"v_max3_f32 v{t+1}, v{t+1}, v{t+2}, v{S+15}", f"v_max3_f32 v{t+3}, v{t+3}, v{t+4}, v{t+5}",
              f"v_max_f32 v{t+1}, v{t+1}, v{t+3}", f"v_mul_f32 v{t+1}, v{t}, v{t+1}"]
        if pk:
            L += [f"v_pk_fma_f32 {vr(S+r_,2)}, {vr(S+r_,2)}, {vr(t,2)}, {vr(t,2)} op_sel:[0,0,1] op_sel_hi:[1,0,1] neg_lo:[0,0,1] neg_hi:[0,0,1]" for r_ in range(0, 16, 2)]
            for r_ in range(16):
                L.append(f"v_exp_f32 v{S+r_}, v{S+r_}")
                if r_ == 4: L.append(f"v_pk_add_f32 {vr(t,2)}, {vr(S,2)}, {vr(S+2,2)}")
                if r_ > 4 and r_ % 2 == 0: L.append(f"v_pk_add_f32 {vr(t,2)}, {vr(t,2)}, {vr(S+r_-2,2)}")
            L += ["s_nop 0", f"v_pk_add_f32 {vr(t,2)}, {vr(t,2)}, {vr(S+14,2)}", f"v_add_f32 v{t}, v{t}, v{t+1}", f"v_rcp_f32 v{t}, v{t}", "s_nop 0"]
            L += [f"v_pk_mul_f32 {vr(S+r_,2)}, {vr(S+r_,2)}, {vr(t,2)} op_sel_hi:[1,0]" for r_ in range(0, 16, 2)]
        else:
            L += [f"v_fma_f32 v{S+r_}, v{S+r_}, v{t}, -v{t+1}" for r_ in range(16)]
            for r_ in range(16):
                L.append(f"v_exp_f32 v{S+r_}, v{S+r_}")
                if r_ == 2: L.append(f"v_add_f32 v{t}, v{S}, v{S+1}")
                if r_ > 2: L.append(f"v_add_f32 v{t}, v{t}, v{S+r_-1}")
            L += [f"v_add_f32 v{t}, v{t}, v{S+15}", f"v_rcp_f32 v{t}, v{t}", "s_nop 0"]
            L += [f"v_mul_f32 v{S+r_}, v{S+r_}, v{t}" for r_ in range(16)]
        L += [f"v_cvt_pk_bf16_f32 v{P+i}, v{S+2*i}, v{S+2*i+1}" for i in range(8)]
        return L

    def q_epi1():
        acc = vACC0; S = vE
        side.add(f"v_add_f32 v{vGA}, v{vGA}, v{vGACC+7}\nds_write_b32 v{vAGP}, v{vGA}\nv_and_b32 v{vAGP}, 0xfffffcff, v{vAGP}")
        side.dist("p0end", 12)
        for i in range(6): side.add(f"v_cvt_pk_bf16_f32 v{acc+i}, v{acc+2*i}, v{acc+2*i+1}")
        side.add(f"{MF} {vr(S,16)}, {vr(vWPHI,4)}, {vr(acc,4)}, 0"); side.note("pk")
        for i in range(6, 8): side.add(f"v_cvt_pk_bf16_f32 v{acc+i}, v{acc+2*i}, v{acc+2*i+1}")
        side.add(f"ds_write_b128 v{vAVW}, {vr(acc+4,4)} offset:2176")
        for i in range(4): side.add(f"v_mov_b32 v{acc+12+i}, 0x3f803f80")
        side.dist("pk", 12)
        sl = softmax16(S, S, vE+16, False)
        sl = sl[:-4] + [f"ds_write_b128 v{vAPW}, {vr(S,4)}"] + sl[-4:] + [f"ds_write_b128 v{vAPW}, {vr(S+4,4)} offset:1088"]
        for ln in sl: side.add(ln)
        side.sync()
        for m_ in range(2):
            for t in range(2):
                side.add(f"ds_read_b64_tr_b16 {vr(vE+8*m_+t*2,2)}, v{vAPR} offset:{m_*SCRW + 64*t}")
                side.add(f"ds_read_b64_tr_b16 {vr(vE+8*m_+4+t*2,2)}, v{vAVR} offset:{m_*SCRW + 2176 + 64*t}")
            if m_ == 0: side.block(lambda: None, 100); side.block(lambda: a("s_waitcnt lgkmcnt(8)"), 0)
        side.add(f"ds_read2_b32 {vr(vXR,2)}, v{vAGP} offset0:0 offset1:64\nds_read2_b32 {vr(vXR+2,2)}, v{vAGP} offset0:128 offset1:192")
        side.add(f"ds_read_b128 {vr(vAVW2,4)}, v{vPK4}\nv_mov_b32 v{vNON}, s{sNON}")
        side.sync()
        side.add(f"{MF16} {vr(acc,4)}, {vr(vE,4)}, {vr(vE+4,4)}, 0\n{MF16} {vr(acc+4,4)}, {vr(vE,4)}, {vr(acc+12,4)}, 0")
        side.add(f"{MF16} {vr(acc,4)}, {vr(vE+8,4)}, {vr(vE+12,4)}, {vr(acc,4)}\n{MF16} {vr(acc+4,4)}, {vr(vE+8,4)}, {vr(acc+12,4)}, {vr(acc+4,4)}")
        side.dist("kvm", 8)
        def b_store():
            a.vm(f"buffer_store_dwordx4 {vr(acc,4)}, v{vPO}, {WS}, s{sPART} offen sc1", "part0")
            setexec(0x000f000f, 0x000f000f)
            a.vm(f"buffer_store_dwordx4 {vr(acc+4,4)}, v{vPO}, {WS}, s{sPART} offen offset:256 sc1", "part")
            a("s_mov_b64 exec, -1")
        side.block(b_store, 100)
        side.sync()
        side.add(f"v_xor_b32 v{vWO2}, 64, v{vWOD}")
        side.add(f"v_add_f32 v{vXR}, v{vXR}, v{vXR+1}\nv_add_f32 v{vXR+2}, v{vXR+2}, v{vXR+3}\nv_add_f32 v{vXR}, v{vXR}, v{vXR+2}")
        side.add(f"v_mul_f32 v{vXR}, {f32(-LOG2E)}, v{vXR}\nv_exp_f32 v{vXR}, v{vXR}\ns_nop 0\nv_add_f32 v{vXR}, 1.0, v{vXR}\nv_rcp_f32 v{vG}, v{vXR}")
        if 14 < o["poi_it2"] < 24:
            for i in range(4): side.add(f"v_mov_b32 v{vXR+3-i}, -1")
    def q_epi2():
        acc = vACC1; kf = vE + 4
        side.dist("p1end", 12)
        for i in range(4): side.add(f"v_cvt_pk_bf16_f32 v{kf+i}, v{acc+2*i}, v{acc+2*i+1}")
        if o["kvb_it"] == 16: side.block(lambda: a.vm(f"buffer_store_dwordx4 {vr(kf,4)}, v{vL16}, {WS}, s{sKVB} offen sc1", "kvb0"), 0)
        side.add(f"ds_read_b128 {vr(acc,4)}, v{vAK8}\nds_read_b128 {vr(acc+4,4)}, v{vAK8} offset:1024")
        for i in range(4, 8): side.add(f"v_cvt_pk_bf16_f32 v{kf+i}, v{acc+2*i}, v{acc+2*i+1}")
        if o["kvb_it"] == 16: side.block(lambda: a.vm(f"buffer_store_dwordx4 {vr(kf+4,4)}, v{vVO}, {WS}, s{sKVB} offen offset:1024 sc1", "kvb"), 0)
        if o["poi_it"] == 16: side.block(lambda: a.vm(f"buffer_store_dwordx4 {vr(vXR,4)}, v{vL16}, {WS}, s{sOA} offen sc1", "poisonA"), 0)
        if o["poi_it2"] == 16: side.block(lambda: a.vm(f"buffer_store_dwordx4 {vr(vXR,4)}, v{vL16}, {WS}, s{sOB} offen sc1", "poison"), 0)
        side.sync()
        side.add(f"ds_write_b128 v{vAK8}, {vr(kf,4)}\nds_write_b128 v{vAVW2}, {vr(kf+4,4)} offset:1024")
    vHD = 208 if o['h1_load'] >= 22 else vE + 16
    def h1load():
        if not o["f2"]: poll_check(vFP, sF2P, sr(sF2M,2), "f2p")
        poll_check(vHP, sF1P, 15, "h1p", rec=26)
        for i in range(2): a.vm(f"buffer_load_dwordx4 {vr(vHD+4*i,4)}, v{vPO2}, {WS}, s{sH1L} offen offset:{i*2*PSTR} sc1", "h1l")
    def h1write(nhalo=0):
        if nhalo:
            a(f"s_waitcnt vmcnt({a.cnt_after('h1l') + nhalo})"); lab = only(f"s_cmp_lt_u32 s{sRB}, 4"); a(f"s_waitcnt vmcnt({a.cnt_after('h1l')})\n{lab}:")
        else: a(f"s_waitcnt vmcnt({a.cnt_after('h1l')})")
        for j in range(4): a(f"v_add_f32 v{vHD+j}, v{vHD+j}, v{vHD+4+j}")
        a(f"ds_write_b128 v{vHOW}, {vr(vHD,4)}")
    def h1fin():
        vX = 208
        n0 = a.ni
        lab = only(f"s_cmp_eq_u32 s{sW}, 0")
        for i in range(8): a(f"ds_read_b128 {vr(vX+4*i,4)}, v{vHOW} offset:{i*1024}")
        a(f"v_lshlrev_b32 v{vE+28}, 3, v{vL}\ns_waitcnt lgkmcnt(0)")
        for st in (16, 8, 4):
            for j in range(0, st, 2): a(f"v_pk_add_f32 {vr(vX+j,2)}, {vr(vX+j,2)}, {vr(vX+st+j,2)}")
        for j in range(4): a(f"v_mov_b32 v{vX+4+j}, v{vX+j}")
        a("s_nop 0")
        for j in range(4): a(f"v_permlane32_swap_b32 v{vX+j}, v{vX+4+j}")
        a("s_nop 0")
        a(f"v_pk_add_f32 {vr(vX,2)}, {vr(vX,2)}, {vr(vX+4,2)}\nv_pk_add_f32 {vr(vX+2,2)}, {vr(vX+2,2)}, {vr(vX+6,2)}")
        a(f"v_cvt_pk_bf16_f32 v{vX+10}, v{vX}, v{vX+1}\nv_cvt_pk_bf16_f32 v{vX+11}, v{vX+2}, v{vX+3}")
        setexec(0xffffff, 0)
        a(f"buffer_store_dwordx2 {vr(vX+10,2)}, v{vE+28}, {WS}, s{sKVFS} offen sc1\ns_mov_b64 exec, -1")
        a(f"{lab}:"); a.ni = n0 + 2

    vHV, vCA, vC0 = 3, 4, 5
    sHM0 = sU1
    def halo_ln(s_):
        pre = f"s_mov_b32 m0, s{sHM0}\nv_add_u32 v{vHV}, s{sHAL2}, v{vL16}\n" if s_ == 4 else (f"s_add_u32 m0, s{sHM0}, 32768\nv_add_u32 v{vHV}, s{sHAL}, v{vL16}\n" if s_ == 0 else "")
        return pre + f"buffer_load_dwordx4 v{vHV}, {sr(sX,4)}, 0 offen offset:{(s_%4)*1024} sc1 lds"
    hl = list(range(8))
    def halo():
        if hl:
            t_ = halo_ln(hl.pop(0)).rsplit("\n", 1)
            if len(t_) == 2: a(t_[0])
            a.vm(t_[-1], "halo" if len(hl) >= 4 else "halo2")
    def q_halo_setup():
        side.block(lambda: a(f"s_lshl_b32 s{sT0}, s{sHG}, 19\ns_add_u32 s{sT0}, s{sT0}, {WS_KVB}\ns_add_u32 s{sX}, s{sWS}, s{sT0}\ns_addc_u32 s{sX+1}, s{sWS+1}, 0\ns_mov_b32 s{sX+2}, 524288\ns_mov_b32 s{sX+3}, 0x20000"), 4)
        side.add(f"s_lshl_b32 s{sHM0}, s{sW}, 12\ns_add_u32 s{sHM0}, s{sHM0}, {XB}")
        if not o["f2"]: side.add(f"v_bfe_u32 v{vC0}, v{vL}, 1, 4\nv_lshl_add_u32 v{vC0}, v{vC0}, 2, s{sHM0}\nv_lshl_add_u32 v{vCA}, v{vL}, 6, v{vC0}")

    pf(-2)
    if o["c1late"]: dma(1, "x"); dma(1, 0); dma(1, 1)
    stamp("pre")
    a(f"s_waitcnt vmcnt({a.cnt_after('misc')}) lgkmcnt(0)\ns_barrier")
    stamp("first")
    for s in range(4): a(rd_w(0, s, 0)); a(rd_w(0, s, 1))
    c2late = ("w", 2, 1) not in a.q
    if c2late: dma(2, "x")
    for s in range(4): a(rd_x(0, s))
    a(rd_g(0))
    if c2late: dma(2, 0); dma(2, 1)
    if o.get("sched") == 4:
        order = {5: [8, 9], 6: [10, 11], 7: [12, 13], 8: [14], 9: [15], 10: [16], 11: [17], 12: [18], 13: [19, 20], 14: [21, 22], 15: [23]}
    if o.get("sched") == 5:
        order = {5: [8], 6: [9, 10], 7: [11], 8: [12, 13], 9: [14, 15], 10: [16], 11: [17], 12: [18], 13: [19, 20], 14: [21, 22], 15: [23]}
    if o.get("sched") == 6:
        order = {5: [8, 9], 6: [10], 7: [11], 8: [12], 9: [13, 14], 10: [15], 11: [16, 17], 12: [18], 13: [19], 14: [20], 15: [21], 16: [22], 17: [23]}
    if o.get("sched") == 7:
        order = {5: [8, 9], 6: [10], 7: [11], 8: [12], 9: [13], 10: [14], 11: [15, 16], 12: [17], 13: [18], 14: [19], 15: [20], 16: [21], 17: [22], 18: [23]}
    if o.get("sched") == 3: dma(3, "x"); dma(3, 0); dma(3, 1)
    a(f"s_mul_i32 s{sNON}, s82, 0x9E3779B1\ns_add_u32 s{sNON}, s{sNON}, 0x7F4A7C15\ns_cmp_eq_u32 s{sNON}, -1\ns_cselect_b32 s{sNON}, 0x2545F491, s{sNON}")
    a("s_waitcnt lgkmcnt(8)")
    a(f"ds_read_b64_tr_b16 {vr(vWPHI,2)}, v{vWPA}\nds_read_b64_tr_b16 {vr(vWPHI+2,2)}, v{vWPA} offset:256")
    side.sync()
    for ln in Z: side.add(ln)
    if not pre_done: side.block(prewrite, 8)
    for i in range(4): side.add(f"v_xor_b32 v{vWPHI+i}, v{vWPHI+i}, v{vSG}")
    W2 = lambda c_: [(c_, 0), (c_, 1)]
    sched = {n: [(n+3, "x")] + W2(n+3) for n in range(5)}
    if o["xpair"]:
        sched = {0: [(3, "x"), (4, "x")] + W2(3), 1: W2(4), 2: [(5, "x"), (6, "x"), (7, "x")] + W2(5), 3: W2(6), 4: W2(7)}
    order = {5: [8], 6: [9], 7: [10], 8: [11, 12], 9: [13, 14], 10: [15, 16], 11: [17], 12: [18], 13: [19, 20], 14: [21], 15: [22], 16: [], 17: [23]}
    if o.get("sched") == 1: order = {5: [8, 9], 6: [10], 7: [11], 8: [12, 13], 9: [14, 15], 10: [16], 11: [17], 12: [18], 13: [19], 14: [20], 15: [21], 17: [22], 18: [23]}
    if o.get("sched") == 2: order = {5: [8], 6: [9], 7: [10], 8: [11, 12], 9: [13, 14], 10: [15, 16], 11: [17], 12: [18], 13: [19, 20], 14: [21, 22], 15: [23]}
    if o.get("sched") == 4:
        order = {5: [8, 9], 6: [10, 11], 7: [12, 13], 8: [14], 9: [15], 10: [16], 11: [17], 12: [18], 13: [19, 20], 14: [21, 22], 15: [23]}
    if o.get("sched") == 5:
        order = {5: [8], 6: [9, 10], 7: [11], 8: [12, 13], 9: [14, 15], 10: [16], 11: [17], 12: [18], 13: [19, 20], 14: [21, 22], 15: [23]}
    if o.get("sched") == 6:
        order = {5: [8, 9], 6: [10], 7: [11], 8: [12], 9: [13, 14], 10: [15], 11: [16, 17], 12: [18], 13: [19], 14: [20], 15: [21], 16: [22], 17: [23]}
    if o.get("sched") == 7:
        order = {5: [8, 9], 6: [10], 7: [11], 8: [12], 9: [13], 10: [14], 11: [15, 16], 12: [17], 13: [18], 14: [19], 15: [20], 16: [21], 17: [22], 18: [23]}
    if o.get("sched") == 3:
        sched = {n: [(n+4, "x")] + W2(n+4) for n in range(4)}
        order = {4: [8, 9], 5: [10, 11], 6: [12], 7: [13], 8: [14], 9: [15], 10: [16], 11: [17], 12: [18], 13: [19, 20], 14: [21, 22], 15: [23]}
    for n_, cs in order.items():
        sched[n_] = [d_ for c_ in cs for d_ in W2(c_)]
        for c_ in cs:
            prev = [m_ for m_ in range(c_) if slot(m_) == slot(c_)]
            assert not prev or prev[-1] <= n_, (c_, n_)
            assert n_ < c_ - 1
    woa_its = [o["woa0"], o["woa1"], o["woa2"], o["woa3"]]
    for k_, it_ in enumerate(woa_its):
        assert it_ >= 16 + k_
        if it_ < 24: sched.setdefault(it_, []).extend(W2(24 + k_))
    for n in range(24):
        p, i = divmod(n, 8)
        a.c(f"---- iteration {n}")
        w = a.cnt_after(("w", n+1, 1)) if n < 23 else 63
        if n < 7: w = min(w, a.cnt_after(("x", n+1)))
        if n == o["f1_it"]: w = min(w, a.cnt_after("part"))
        if n == o["f2_it"] and o["f2"]: w = min(w, a.cnt_after("kvb"))
        if n == 23 and not o["bw"]: w = min(w, a.cnt_after(("w", 27, 1)))
        a(f"s_waitcnt vmcnt({w}) lgkmcnt(0)" if w < 63 else "s_waitcnt lgkmcnt(0)")
        a("s_barrier")
        stamp_b()
        side.barrier_passed()
        if n == 6: assert "rec" in a.q
        if n == 14: assert "part" in a.q
        if n == 8: assert not side.u; q_epi1()
        if n == 16: assert not side.u, side.u; q_epi2()
        if n == 19: q_halo_setup()
        acc = vACC0 if p != 1 else vACC1
        def M(s):
            cc = "0" if (i == 0 and s == 0) else vr(acc, 16)
            a(f"{MF} {vr(acc,16)}, {vr(vWF+(n%2)*16+s*4,4)}, {vr(vX+i*16+s*4,4)}, {cc}")
        nx = n + 1
        dl = list(sched.get(n, []))
        def D(pos, npos):
            tot = len(sched.get(n, []))
            k0, k1 = -(-tot * pos // npos), -(-tot * (pos + 1) // npos)
            for _ in range(k1 - k0):
                d_ = dl.pop(0)
                if cur_m0[0] not in (d_[0], ("x", d_[0])) or (d_[1] == "x") != isinstance(cur_m0[0], tuple): dma_m0(*d_)
                dma_ld(*d_)
            if dl and k1 > k0: dma_m0(*dl[0])
        if dl: dma_m0(*dl[0])
        if p == 0:
            if i == 1: a(f"v_mov_b32 v{vGA}, v{vGACC}")
            if i > 1: a(f"v_add_f32 v{vGA}, v{vGA}, v{vGACC+i-1}")
            a(f"{MF} {vr(vGACC,16)}, {vr(vGF,4)}, {vr(vGXF,4)}, 0")
            if nx < 8:
                for s in range(3): a(rd_x(nx, s))
            D(0, 3)
            M(0)
            if nx < 8: a(rd_x(nx, 3)); a(rd_g(nx))
            if n == 7:
                for i_ in range(4): a(f"v_mov_b32 v{vXR+i_}, -1")
                if o["pkv_it"] == 7: a.vm(f"buffer_store_dwordx4 {vr(vXR,4)}, v{vL16}, {WS}, s{sKVB} offen sc1", "pk0")
            pf(n)
            side.slot(o["bud0"])
            M(1)
            for s in range(2): a(rd_w(nx, s, 0)); a(rd_w(nx, s, 1))
            D(1, 3)
            M(2)
            for s in range(2, 4): a(rd_w(nx, s, 0)); a(rd_w(nx, s, 1))
            side.slot(o["bud0"])
            D(2, 3)
            M(3)
            if n == 7: side.pos["p0end"] = a.ni
        else:
            B = o["bud1"] if p == 1 else (12 if n < 18 else 3)
            M(0)
            if n == o["f1_it"]: flag(*((sF1S, sF4S) if o["poi_it2"] < 12 else (sF1S,)))
            if n == o["f2_it"] and o["f2"]: flag(sF2S)
            if n == o["h1_poll"]:
                if not o["f2"]: poll_issue(vFP, sF2P, sr(sF2M,2), "f2p")
                poll_issue(vHP, sF1P, 15, "h1p")
            if nx < 24:
                for s in range(2): a(rd_w(nx, s, 0)); a(rd_w(nx, s, 1))
            if n == o["h1_load"]: h1load()
            if n == o["kvb_it"] and n > 16:
                a.vm(f"buffer_store_dwordx4 {vr(vE+4,4)}, v{vL16}, {WS}, s{sKVB} offen sc1", "kvb0")
                a.vm(f"buffer_store_dwordx4 {vr(vE+8,4)}, v{vVO}, {WS}, s{sKVB} offen offset:1024 sc1", "kvb")
            if n == o["poi_it"] and n != 16 and n < 24: a.vm(f"buffer_store_dwordx4 {vr(vXR,4)}, v{vL16}, {WS}, s{sOA} offen sc1", "poisonA")
            if n == o["poi_it2"] and n != 16: a.vm(f"buffer_store_dwordx4 {vr(vXR,4)}, v{vL16}, {WS}, s{sOB} offen sc1", "poison")
            if n == o["pkv_it"] and not o["f2"]: a.vm(f"buffer_store_dwordx4 {vr(vXR,4)}, v{vL16}, {WS}, s{sKVB} offen sc1", "pk0")
            if n == o["pkv_it2"] and not o["f2"]: a.vm(f"buffer_store_dwordx4 {vr(vXR,4)}, v{vL16}, {WS}, s{sKVB} offen offset:1024 sc1", "pk1")
            D(0, 4)
            side.slot(B)
            M(1)
            if nx < 24:
                for s in range(2, 4): a(rd_w(nx, s, 0)); a(rd_w(nx, s, 1))
            D(1, 4)
            side.slot(B)
            if n == 23:
                for _ in range(o["hloop"] // 2): halo()
            M(2)
            if n == 23:
                for _ in range(o["hloop"] - o["hloop"] // 2): halo()
            D(2, 4)
            pf(n)
            if n == o["h1_wr"]: h1write()
            side.slot(B)
            D(3, 4)
            M(3)
            if n == 15: side.pos["p1end"] = a.ni
        assert not dl
        if o.get("allit"):
            if n < 23: stamp_a(f"it{n}")
        elif n in (3, 7, 11, 15, 19) and not o.get("blkst"): stamp_a(f"it{n}")
    assert not side.u, side.u
    nend = a.ni
    stamp("T3")
    vQ, vPHI, vKV = 8, 64, 72
    vSA, vSB, vO = 192, 208, 224
    vP, vKA, vKB = 240, 248, 252
    vVA, vVB = 80, 88
    vWO = 128
    vT = 24
    acc = vACC0; vPOI = acc + 4
    def rdK(dst, j): a(f"ds_read_b128 {vr(dst,4)}, v{vAK8}" if j == 8 else f"ds_read_b128 {vr(dst,4)}, v{vAK} offset:{j*8192}")
    def rdV(dst, ad_):
        for mf in range(2):
            for t in range(2): a(f"ds_read_b64_tr_b16 {vr(dst+4*mf+2*t,2)}, v{ad_} offset:{256*mf+128*t}")
    def qk(S, K, C="0"): a(f"{MF} {vr(S,16)}, {vr(K,4)}, {vr(vQ,4)}, {C}")
    def pv(V, P, first=False): a(f"{MF} {vr(vO,16)}, {vr(V,4)}, {vr(P,4)}, {'0' if first else vr(vO,16)}")
    def rdwo_list(dst, ads):
        return [f"ds_read_b64_tr_b16 {vr(dst + hd*8 + ct*4 + t*2, 2)}, v{ads[ct]} offset:{hd*2048 + t*256}"
                for hd in range(8) for ct in range(2) for t in range(2)]
    def kv_loads(tag="kvl"):
        for fq in range(4):
            ln = f"buffer_load_dwordx2 {vr(vKV+2*fq,2)}, v{vKVO}, {WS}, s{sKVS} offen offset:{fq*256} sc1"
            if tag: a.vm(ln, tag)
            else: yield ln
    if o["h1_wr"] <= 22: h1fin(); a.mark("kvf")
    rdK(vKA, 8); rdV(vVA, vAV)
    a(f"v_sub_u32 v{vAV}, v{vAV}, v{vAVI}\nv_mov_b32 v{vE+16}, {f32(0.25*LOG2E)}")
    for k_, it_ in enumerate(woa_its):
        if it_ >= 24: dma(24 + k_, 0); dma(24 + k_, 1)
    a.pad(nend, 12)
    for i in range(4): a(f"v_cvt_pk_bf16_f32 v{acc+i}, v{acc+2*i}, v{acc+2*i+1}")
    for r_ in range(8, 16, 2): a(f"v_pk_mul_f32 {vr(acc+r_,2)}, {vr(acc+r_,2)}, {vr(vE+16,2)} op_sel_hi:[1,0]")
    a(f"{MF} {vr(vE,16)}, {vr(vWPHI,4)}, {vr(acc,4)}, 0"); n0 = a.ni
    for i in range(4): a(f"v_cvt_pk_bf16_f32 v{vQ+i}, v{acc+8+2*i}, v{acc+8+2*i+1}")
    a("s_nop 0\ns_waitcnt lgkmcnt(0)"); qk(vSA, vKA)
    a.pad(n0, 12)
    fill = softmax16(vE, vPHI, vE+16)
    for r_ in range(16): fill.append(f"v_exp_f32 v{vSA+r_}, v{vSA+r_}")
    for i in range(8): fill.append(f"v_cvt_pk_bf16_f32 v{vP+i}, v{vSA+2*i}, v{vSA+2*i+1}")
    for i in range(8): fill.append(f"v_and_b32 v{vP+i}, v{vP+i}, v{vM+i}")
    for i in range(8): fill.append(f"v_not_b32 v{vM+i}, v{vM+i}")
    fill.append(f"{MF} {vr(vO,16)}, {vr(vVA,4)}, {vr(vP,4)}, 0"); fill.append(f"{MF} {vr(vO,16)}, {vr(vVA+4,4)}, {vr(vP+4,4)}, {vr(vO,16)}")
    def kv_check():
        lp, ld = a.label("Lkv"), a.label("Lkvd")
        k0 = vE + 24
        chk = f"v_max3_u32 v{k0}, v{vKV}, v{vKV+2}, v{vKV+4}\nv_max_u32 v{k0}, v{k0}, v{vKV+6}\nv_cmp_eq_u32 vcc, -1, v{k0}"
        if o["stamps"]: a(f"s_mov_b32 s{sSPIN}, 0")
        a(f"s_waitcnt vmcnt({a.cnt_after('kvl')})\n{chk}\ns_cbranch_vccnz {lp}\n{ld}:")
        stubs.append(f"{lp}:\ns_mov_b32 s{sSPIN}, 0\n{lp}b:\n" + "\n".join(kv_loads(None)) + f"\ns_add_u32 s{sSPIN}, s{sSPIN}, 1\ns_cmp_gt_u32 s{sSPIN}, {SPIN_MAX}\ns_waitcnt vmcnt(0)\ns_cbranch_scc1 {ld}\n{chk}\ns_cbranch_vccnz {lp}b\ns_branch {ld}")
        spinrec(28)
        a(f"{MF} {vr(vE,16)}, {vr(vKV,4)}, {vr(vPHI,4)}, 0\n{MF} {vr(vE,16)}, {vr(vKV+4,4)}, {vr(vPHI+4,4)}, {vr(vE,16)}")
    def oa_1(): a(f"v_add_f32 v{vE+24}, {f32(1e-6)}, v{vE+8}\nv_rcp_f32 v{vE+24}, v{vE+24}")
    def oa_2():
        a(f"v_mul_f32 v{vE+24}, v{vE+24}, v{vG}")
        for r2 in range(8): a(f"v_mul_f32 v{vE+r2}, v{vE+r2}, v{vE+24}")
        for i in range(4): a(f"v_cvt_pk_bf16_f32 v{vE+16+i}, v{vE+2*i}, v{vE+2*i+1}")
    def oa_3():
        a.vm(f"buffer_store_dwordx4 {vr(vE+16,4)}, v{vL16}, {WS}, s{sOA} offen sc1", "oa")
    kvq = [f"buffer_load_dwordx2 {vr(vKV+2*fq,2)}, v{vKVO}, {WS}, s{sKVS} offen offset:{fq*256} sc1" for fq in range(4)]
    hb, h0, hstep = o["h1_wr"] - 100, o["hpos"], o["hstep"]
    wl = rdwo_list(vWO, (vWA0, vWA1)); nrd = 0
    vPOI = acc + 4
    pois = [("poisonA", sOA), ("poison", sOB)] if o["poi_it"] >= 24 else []
    if pois:
        for i in range(4): a(f"v_mov_b32 v{vPOI+i}, -1")
    for k_, ln in enumerate(fill):
        if k_ == hb:
            h1write()
            a("s_waitcnt lgkmcnt(0)\ns_barrier"); stamp("Bm")
            poll_issue(vFP, sF2P, sr(sF2M,2), "f2p")
            h1fin(); a.mark("kvf")
        if k_ == 0: poll_issue(vF4P, sF4P, 3, "f4p")
        if k_ == len(fill) - 3: poll_check(vF4P, sF4P, 3, "f4p", 25)
        if k_ == h0:
            lab = only(f"s_cmp_lg_u32 s{sW}, 0"); a(f"s_waitcnt vmcnt({a.cnt_after('f2p')})\n{lab}:")
            a.q.append("dummy"); poll_check(vFP, sF2P, sr(sF2M,2), "f2p", 27); a.q.pop()
        a(ln)
        if k_ >= h0 and (len(hl) > 4 or (k_ >= o["hfar"] and (k_ - o["hfar"]) % o["hstep2"] == 0)):
            if len(hl) > o["hkeep"]: halo()
            elif pois and o["poi_it"] == 24:
                t_, so_ = pois.pop(0); a.vm(f"buffer_store_dwordx4 {vr(vPOI,4)}, v{vL16}, {WS}, s{so_} offen sc1", t_)
        if k_ >= o["kvpos"] and (k_ - o["kvpos"]) % 3 == 0 and kvq: a.vm(kvq.pop(0), "kvl")
        if k_ == o["wrd0"] and o["bw"]: a(f"s_waitcnt vmcnt({a.cnt_after(('w', 27, 1))})\ns_barrier"); stamp("Bw")
        if k_ >= o["wrd0"] and wl and (k_ % o["wrds"] == 0):
            a(wl.pop(0)); nrd += 1
            if nrd % 8 == 0: a("s_waitcnt lgkmcnt(6)")
    while wl:
        a(wl.pop(0)); nrd += 1
        if nrd % 8 == 0: a("s_waitcnt lgkmcnt(6)")
    stamp("fill")
    if o["kv_blk"] == 9:
        kv_check(); a("s_nop 11"); oa_1(); a("s_nop 0"); oa_2(); oa_3()
    chk = (f"ds_read_b32 v{vC0}, v{vCA}\nds_read_b32 v{vC0+1}, v{vCA} offset:4096\ns_waitcnt lgkmcnt(0)\n"
           f"v_max_u32 v{vC0}, v{vC0}, v{vC0+1}\nv_cmp_eq_u32 vcc, -1, v{vC0}")
    if o["stamps"]: a(f"s_mov_b32 s{sSPIN}, 0")
    if a.cnt_after("kvf") <= a.cnt_after("halo"):
        a(f"s_waitcnt vmcnt({a.cnt_after('halo')+1})"); lab = only(f"s_cmp_lg_u32 s{sW}, 0"); a(f"s_waitcnt vmcnt({a.cnt_after('halo')})\n{lab}:")
    else: a(f"s_waitcnt vmcnt({a.cnt_after('halo')})")
    if o["f2"]: a("s_waitcnt lgkmcnt(0)")
    else: a(f"{chk}\ns_cbranch_vccnz L_hre\nL_hok:")
    if not o["f2"]: stubs.append(f"L_hre:\ns_mov_b32 s{sSPIN}, 0\nL_hreb:\n" + "\n".join(halo_ln(s_) for s_ in range(8)) +
                 f"\ns_add_u32 s{sSPIN}, s{sSPIN}, 1\ns_cmp_gt_u32 s{sSPIN}, {SPIN_MAX}\ns_waitcnt vmcnt(0)\ns_cbranch_scc1 L_hok\n{chk}\ns_cbranch_vccnz L_hreb\ns_branch L_hok")
    if not o["f2"]: spinrec(27)
    a("s_barrier")
    if 12 <= o["poi_it2"] < 24: flag(sF4S)
    stamp("B1")
    rdK(vKA, 7); rdK(vKB, 6); rdV(vVB, vAV)
    pr = [int(c_) for c_ in str(o["prio"])] if o["prio"] else []
    def setprio(j):
        if j in pr and j + 1 not in pr:
            lab = only(f"s_cmp_ge_u32 s{sW}, 4"); a(f"s_setprio 1\n{lab}:")
        if j not in pr and j + 1 in pr: a("s_setprio 0")
    setprio(7)
    while pois:
        t_, so_ = pois.pop(0); a.vm(f"buffer_store_dwordx4 {vr(vPOI,4)}, v{vL16}, {WS}, s{so_} offen sc1", t_)
    a("s_waitcnt lgkmcnt(5)")
    qk(vSB, vKA); n0 = a.ni
    setm0 = [1]
    for _ in range(o["kv0"]):
        if kvq: a.vm(kvq.pop(0), "kvl")
    def flag4():
        a(f"s_waitcnt vmcnt({a.cnt_after('poison')})\ns_mov_b64 exec, 1"); a.vm(f"buffer_store_dword v{vNON}, v{vL16}, {WS}, s{sF4S} offen sc1", "f4s"); a("s_mov_b64 exec, -1")
    assert o["poi_it2"] < 24
    dm = [(k_, b) for k_ in range(4) for b in range(2)]
    def dma_wob():
        if dm:
            k_, b = dm.pop(0)
            a.vm(f"buffer_load_dwordx4 v{vWOD if b == 0 else vWO2}, {sr(sWOB,4)}, s{sWOF+k_} offen offset:{1024*b} lds", "wob")
            if b == 1 and k_ < 3: a(f"s_add_u32 m0, s{sW2K}, {RING + (k_+1)*16384}\n;pad")
    vOFA, vOFB = 96, 64
    def ofr(k_): return (vOFA + 4*k_) if k_ < 8 else (vOFB + 4*(k_-8))
    def oload_ln(k_): return f"buffer_load_dwordx4 {vr(ofr(k_),4)}, v{vL16}, {WS}, s{sOL + k_//4} offen offset:{(k_%4)*1024} sc1"
    cur, nxt, vc, vn, kc, kn = vSB, vSA, vVB, vVA, vKB, vKA
    oal = list(range(8))
    wob0 = o.get("wob_blk", 6)
    exits = []
    class Rec:
        def __enter__(self): self.i = len(a.L); return self
        def __exit__(self, *e): exits[-1][1].extend(a.L[self.i:])
    for j in range(7, -1, -1):
        a.c(f"block {j}")
        E = lambda r_: a(f"v_exp_f32 v{cur+r_}, v{cur+r_}")
        def C(i_):
            a(f"v_cvt_pk_bf16_f32 v{vP+i_}, v{cur+2*i_}, v{cur+2*i_+1}")
        def A(i_):
            if j == 0: a(f"v_and_b32 v{vP+i_}, v{vP+i_}, v{vM+i_}")
        def mem(k):
            with Rec():
                if kvq and j <= o["kvl_blk"] and (o["kvfirst"] or not hl): a.vm(kvq.pop(0), "kvl")
                elif hl: halo()
                elif dm:
                    if setm0: setm0.pop(); a(f"s_add_u32 m0, s{sW2K}, {RING}\ns_nop 0")
                    if j <= wob0 and k % o["wobs"] == 0: dma_wob()
                elif j <= o["oal_blk"] and oal:
                    k_ = oal.pop(0); a.vm(oload_ln(k_), ("ol", k_))
        if j == 7: a.pad(n0, 10)
        else: E(0); E(1); pv(vn+4, vP+4)
        exits.append((j, []))
        a(f"s_cmp_lt_u32 s{sQB}, {8-j}\ns_cbranch_scc1 L_ex{j}")
        if j == 7: E(0); E(1)
        if j < 7: setprio(j)
        if j in (3,) or o.get("blkst"): stamp(f"blk{j}")
        with Rec():
            if j == o["b1b"]: a(f"s_waitcnt vmcnt({a.cnt_after('halo2')})\ns_barrier")
        E(2); E(3); mem(0); E(4); E(5)
        if j == o["kv_blk"]:
            with Rec(): kv_check()
            exits[-1][1].append("    s_nop 11")
        a("s_waitcnt lgkmcnt(0)")
        E(6); E(7)
        if j > 0:
            qk(nxt, kc)
            if j > 1: rdK(kn, j-2)
            a(f"v_sub_u32 v{vAV}, v{vAV}, v{vAVI}")
        C(0); C(1); mem(1); E(8); E(9); C(2); C(3); A(0); A(1); E(10); A(2); A(3); E(11)
        if j > 0: rdV(vn, vAV)
        E(12)
        if j == o["kv_blk"]:
            with Rec(): oa_1()
            exits[-1][1].append("    s_nop 0")
        pv(vc, vP); mem(2); E(13); E(14); E(15)
        if j == o["kv_blk"]:
            with Rec():
                oa_2()
                oa_3()
        C(4); C(5); mem(3); C(6); C(7); A(4); A(5); A(6); A(7)
        cur, nxt = nxt, cur; vc, vn = vn, vc; kc, kn = kn, kc
    a("s_nop 1"); pv(vn+4, vP+4)
    a("L_attn_end:")
    import re as _re
    ex = []
    for j, body in exits:
        ex.append(f"L_ex{j}:"); ex += body
    ex = "\n".join(ex)
    labs = set(_re.findall(r"^(L(?:poll|pd|kv|kvd)_\d+):", ex, _re.M)) | set(_re.findall(r"(L(?:poll|kv)_\d+)", ex))
    st2 = [t_ for t_ in stubs if any(t_.startswith(l_ + ":") for l_ in labs)]
    ren = lambda t_: _re.sub(r"(L(?:poll|pd|kv|kvd)_\d+)", r"\1x", t_)
    ex = ex.replace(";pad", "s_nop 0")
    stubs.append(ren(ex) + "\ns_waitcnt lgkmcnt(0)\ns_setprio 0\ns_branch L_attn_end")
    stubs.extend(ren(t_) for t_ in st2)
    assert not dm
    a(f"v_sub_f32 v{vT+1}, 1.0, v{vG}\nv_mov_b32 v12, v{vWA0}\nv_mov_b32 v13, v{vWA1}\ns_nop 8")
    a(f"v_cmp_lt_f32 vcc, {f32(2.0**-64)}, v{vO+8}\nv_rcp_f32 v{vT}, v{vO+8}\ns_mov_b64 {sr(sP,2)}, vcc\nv_cmp_gt_f32 vcc, {f32(2.0**64)}, v{vO+8}\ns_nop 1")
    a(f"s_and_b64 {sr(sP,2)}, {sr(sP,2)}, vcc\ns_cmp_eq_u64 {sr(sP,2)}, -1")
    a("s_branch L_maxpath" if o["force_fallback"] else "s_cbranch_scc0 L_maxpath")
    a("L_attn_ok:")
    a(f"v_mul_f32 v{vT}, v{vT}, v{vT+1}")
    for r_ in range(0, 8, 2): a(f"v_pk_mul_f32 {vr(vO+r_,2)}, {vr(vO+r_,2)}, {vr(vT,2)} op_sel_hi:[1,0]")
    for i in range(4): a(f"v_cvt_pk_bf16_f32 v{vQ+i}, v{vO+2*i}, v{vO+2*i+1}")
    a.vm(f"buffer_store_dwordx4 {vr(vQ,4)}, v{vL16}, {WS}, s{sOB} offen sc1", "ob")
    stamp("attn")
    for k_ in oal: a.vm(oload_ln(k_), ("ol", k_))
    pass
    wl = rdwo_list(vWO + 64, (12, 13))
    row, bw, br0, br1, vout = 24, 25, 26, 27, 28
    ad = []
    ad += f"v_and_b32 v{row}, 31, v{vL}\ns_lshl_b32 s{sT0}, s{sRW}, 5\nv_add_u32 v{row}, s{sT0}, v{row}\nv_lshrrev_b32 v{bw}, 5, v{vL}".split("\n")
    ad += f"v_and_b32 v{br0}, 15, v{row}\nv_xor_b32 v{bw}, v{bw}, v{br0}\nv_lshlrev_b32 v{bw}, 4, v{bw}\nv_lshl_add_u32 v{bw}, v{row}, 8, v{bw}".split("\n")
    ad += f"s_lshl_b32 s{sT0}, s{sH}, 14\nv_add_u32 v{bw}, s{sT0}, v{bw}".split("\n")
    ad += [f"v_xor_b32 v{vM+k_}, {2*k_*16}, v{bw}" for k_ in range(8)]
    ad += f"v_lshrrev_b32 v{row}, 3, v{vL}\ns_lshl_b32 s{sT0}, s{sW}, 3\nv_add_u32 v{row}, s{sT0}, v{row}".split("\n")
    ad += f"v_and_b32 v{br0}, 7, v{vL}\nv_lshlrev_b32 v{br0}, 1, v{br0}\nv_and_b32 v{br1}, 15, v{row}\nv_xor_b32 v{br0}, v{br0}, v{br1}".split("\n")
    ad += f"v_lshlrev_b32 v{br0}, 4, v{br0}\nv_lshl_add_u32 v{br0}, v{row}, 8, v{br0}\nv_xor_b32 v{br1}, 16, v{br0}".split("\n")
    ad += f"v_and_b32 v{vout}, 7, v{vL}\nv_lshlrev_b32 v{vout}, 4, v{vout}\nv_lshl_add_u32 v{vout}, v{row}, 10, v{vout}".split("\n")
    a(f"s_mov_b32 s{sSPIN}, 0")
    obk = o["obk"]; bk = o["bark"]; nissued = 0
    for k_ in range(16):
        if k_ == bk:
            a(f"s_waitcnt vmcnt({a.cnt_after('wob')})\ns_barrier")
            stamp("B5")
            for q_ in range(o["nwob"]):
                a(wl.pop(0)); nissued += 1
                if q_ % 8 == 3 and q_ > 4: a("s_waitcnt lgkmcnt(4)")
        if k_ == obk:
            a(f"s_waitcnt vmcnt({a.cnt_after('ob')})")
            stamp("obAck")
            for k2 in range(8, 16): a.vm(oload_ln(k2), ("ol", k2))
            if k_ >= bk:
                a("s_waitcnt lgkmcnt(4)")
                while wl:
                    a(wl.pop(0)); nissued += 1
                    if len(wl) % 8 == 0 and wl: a("s_waitcnt lgkmcnt(4)")
        if k_ >= 8: a(f"s_waitcnt vmcnt({a.cnt_after(('ol', k_))}) lgkmcnt({min(8, max(0, nissued - 4*(k_-7)))})")
        else: a(f"s_waitcnt vmcnt({a.cnt_after(('ol', k_))})")
        a(f"L_ob{k_}:\nv_cmp_eq_u32 vcc, -1, v{ofr(k_)}\ns_cbranch_vccnz L_obre{k_}\nL_obok{k_}:")
        for ct in range(2):
            ac = vACC0 + 16*ct
            a(f"{MF} {vr(ac,16)}, {vr(vWO+k_*8+ct*4,4)}, {vr(ofr(k_),4)}, {'0' if k_ == 0 else vr(ac,16)}")
            for _ in range(2):
                if ad: a(ad.pop(0))
        if k_ >= bk and wl:
            if k_ < 8: a("s_waitcnt lgkmcnt(8)")
            for _ in range(4): a(wl.pop(0)); nissued += 1
        if k_ == 7: stamp("Ahalf")
    assert not ad and not wl
    spinrec(24)
    stamp("Bhalf")
    a("s_nop 10")
    for k_ in range(8): a(f"ds_write_b128 v{vM+k_}, {vr(vACC0+4*k_,4)}")
    a("s_waitcnt lgkmcnt(0)\ns_barrier")
    stamp("redw")
    R = 128
    for kq in range(4):
        a(f"ds_read_b128 {vr(R+kq*8,4)}, v{br0} offset:{kq*16384}\nds_read_b128 {vr(R+kq*8+4,4)}, v{br1} offset:{kq*16384}")
    for kq in range(1, 4):
        a(f"s_waitcnt lgkmcnt({6-2*kq})")
        for j in range(0, 8, 2): a(f"v_pk_add_f32 {vr(R+j,2)}, {vr(R+j,2)}, {vr(R+8*kq+j,2)}")
    for i in range(4): a(f"v_cvt_pk_bf16_f32 v{R+32+i}, v{R+2*i}, v{R+2*i+1}")
    a(f"buffer_store_dwordx4 {vr(R+32,4)}, v{vout}, {sr(sOUT,4)}, s{sOUTO} offen {o.get('oflag', '').replace('_', ' ')}")
    a(f"s_or_b32 s{sT1}, s2, s{sW}")
    lab = only(f"s_cmp_eq_u32 s{sT1}, 0")
    a(f"v_mov_b32 v{row}, s{sNON}\nv_lshlrev_b32 v{bw}, 2, v{vL}")
    setexec(0xffff, 0)
    a(f"buffer_store_dword v{row}, v{bw}, {WS}, 0 offen sc1\ns_mov_b64 exec, -1")
    a(f"{lab}:")
    if o["stamps"]:
        stamp("issued")
        a("s_waitcnt vmcnt(0)")
        stamp("end")
        a(f"s_memrealtime s[{sTS}:{sTS+1}]\ns_waitcnt lgkmcnt(0)\nv_writelane_b32 v7, s100, 29\nv_writelane_b32 v7, s98, 30\nv_writelane_b32 v7, s{sTS}, 31")
        a(f"s_lshl_b32 s{sT0}, s2, 3\ns_add_u32 s{sT0}, s{sT0}, s{sW}\ns_lshl_b32 s{sT0}, s{sT0}, 7\ns_add_u32 s{sT0}, s{sT0}, {WS_DBG}")
        a(f"v_lshlrev_b32 v{row}, 2, v{vL}\ns_mov_b32 exec_hi, 0\nbuffer_store_dword v7, v{row}, {WS}, s{sT0} offen")
    if o.get("probe"):
        if o["probe"] == "fin": a("s_waitcnt vmcnt(0)"); stamp("fin")
        if "padx" in o: a(f"s_and_b32 s96, s2, 7\ns_cmp_lg_u32 s96, {o['padx']}\ns_cbranch_scc1 L_exit")
        a("s_sub_u32 s100, s100, s98\ns_lshl_b32 s100, s100, 1\ns_add_u32 s100, s100, 3000")
        if "padwg" in o:
            a("s_getreg_b32 s96, hwreg(HW_REG_XCC_ID)\ns_sub_u32 s96, s2, s96\ns_and_b32 s96, s96, 7\ns_mul_i32 s96, s96, 200\ns_add_u32 s100, s100, s96")
            if o["padwg"] >= 0: a(f"s_cmp_lg_u32 s2, {o['padwg']}\ns_cbranch_scc1 L_exit")
        if "padxcc" in o: a(f"s_getreg_b32 s96, hwreg(HW_REG_XCC_ID)\ns_and_b32 s96, s96, 7\ns_cmp_lg_u32 s96, {o['padxcc']}\ns_cbranch_scc1 L_exit")
        a("L_pad:\ns_memrealtime s[96:97]\ns_waitcnt lgkmcnt(0)\ns_sub_u32 s96, s96, s98\ns_cmp_lt_u32 s96, s100\ns_cbranch_scc1 L_pad")
    a("L_exit:\ns_endpgm")
    for hf_ in range(2):
        for k_ in range(8*hf_, 8*hf_ + 8): a(f"L_obre{k_}:\ns_mov_b32 s{sT2}, {k_}\ns_branch L_scan{hf_}")
        a(f"L_scan{hf_}:\ns_waitcnt vmcnt({1 if (hf_ == 0 and o['obk'] == 8 and o['oal_blk'] >= 1) else 0})")
        if o["rsleep"]: a(f"s_sleep {o['rsleep']}")
        for k_ in range(8*hf_, 8*hf_ + 8):
            a(f"v_cmp_eq_u32 vcc, -1, v{ofr(k_)}\ns_cbranch_vccz L_sc{k_}\n{oload_ln(k_)}\nL_sc{k_}:")
        a(f"s_add_u32 s{sSPIN}, s{sSPIN}, 1\ns_cmp_gt_u32 s{sSPIN}, {SPIN_MAX}\ns_waitcnt vmcnt(0)\ns_cbranch_scc1 L_give{hf_}")
        for k_ in range(8*hf_, 8*hf_ + 7): a(f"s_cmp_eq_u32 s{sT2}, {k_}\ns_cbranch_scc1 L_ob{k_}")
        a(f"s_branch L_ob{8*hf_+7}\nL_give{hf_}:")
        for k_ in range(8*hf_, 8*hf_ + 7): a(f"s_cmp_eq_u32 s{sT2}, {k_}\ns_cbranch_scc1 L_obok{k_}")
        a(f"s_branch L_obok{8*hf_+7}")
    for s_ in stubs: a(s_)
    a("L_maxpath:")
    m, ninf, ak, d = vT, 4, 5, 6
    vNEG = vACC0
    a(f"v_mov_b32 v{ninf}, 0xff800000\nv_lshrrev_b32 v{d}, 5, v{vL}\nv_lshlrev_b32 v{d}, 2, v{d}\nv_and_b32 v{ak}, 31, v{vL}\nv_sub_u32 v{d}, v{ak}, v{d}")
    for ph in range(2):
        C = "0" if ph == 0 else vr(vNEG, 16)
        if ph == 0: a(f"v_mov_b32 v{m}, v{ninf}")
        else:
            for r_ in range(16): a(f"v_mov_b32 v{vO+r_}, 0")
        a(f"s_mov_b32 s{sT0}, 8\ns_min_u32 s{sT1}, s{sQB}, 8\ns_sub_u32 s{sT1}, 8, s{sT1}\nv_mov_b32 v{ak}, v{vAK8}\nv_lshl_add_u32 v{vAV}, v{vAVI}, 3, v{vAV0}")
        a(f"L_mx{ph}:\nds_read_b128 {vr(vKA,4)}, v{ak}")
        if ph: rdV(vVA, vAV)
        a("s_waitcnt lgkmcnt(0)")
        qk(vSA, vKA, C); a("s_nop 15")
        for (blk, op) in ((8, "gt"), (0, "le")):
            lab = only(f"s_cmp_eq_u32 s{sT0}, {blk}")
            for r_ in range(16):
                a(f"v_cmp_{op}_i32 vcc, {8*(r_//4) + r_ % 4}, v{d}\ns_nop 1\nv_cndmask_b32_e64 v{vSA+r_}, v{vSA+r_}, v{ninf}, vcc")
            a(f"{lab}:")
        if ph == 0:
            for r_ in range(0, 16, 2): a(f"v_max3_f32 v{m}, v{m}, v{vSA+r_}, v{vSA+r_+1}")
        else:
            for r_ in range(16): a(f"v_exp_f32 v{vSA+r_}, v{vSA+r_}")
            for i in range(8): a(f"v_cvt_pk_bf16_f32 v{vP+i}, v{vSA+2*i}, v{vSA+2*i+1}")
            a("s_nop 1"); pv(vVA, vP); pv(vVA+4, vP+4)
        a(f"v_subrev_u32 v{ak}, 8192, v{ak}\nv_sub_u32 v{vAV}, v{vAV}, v{vAVI}\ns_sub_u32 s{sT0}, s{sT0}, 1\ns_cmp_ge_i32 s{sT0}, s{sT1}\ns_cbranch_scc1 L_mx{ph}")
        if ph == 0:
            a(f"v_mov_b32 v{ak}, v{m}\ns_nop 1\nv_permlane32_swap_b32 v{m}, v{ak}\ns_nop 1\nv_max_f32 v{m}, v{m}, v{ak}")
            for r_ in range(16): a(f"v_sub_f32 v{vNEG+r_}, 0, v{m}")
    a(f"s_nop 15\nv_rcp_f32 v{vT}, v{vO+8}\ns_branch L_attn_ok")
    a("L_codeend:")
    return a, o

HDR = open("gated_mix__linear_kernel_hedgehog__sliding_block__prompt.s.ref").read().split("; Override launch")[0]
def full(a, o):
    names = "; stamps: " + ",".join(o.get("_names", [])) + "\n" if o["stamps"] else ""
    return (HDR + names + f"; @launch grid=(256,1,1) block=(512,1,1) lds={LDS_BYTES}\n"
            '.amdgcn_target "amdgcn-amd-amdhsa--gfx950"\n.text\n'
            f".globl {NAME}\n.p2align 8\n.type {NAME},@function\n{NAME}:\n" + a.text() +
            '.section .rodata,"a"\n.p2align 6\n'
            f".amdhsa_kernel {NAME}\n  .amdhsa_next_free_vgpr 256\n  .amdhsa_next_free_sgpr 102\n"
            "  .amdhsa_accum_offset 256\n  .amdhsa_group_segment_fixed_size 0\n  .amdhsa_kernarg_size 88\n"
            "  .amdhsa_user_sgpr_count 2\n  .amdhsa_user_sgpr_kernarg_segment_ptr 1\n"
            "  .amdhsa_system_sgpr_workgroup_id_x 1\n.end_amdhsa_kernel\n")
if __name__ == "__main__":
    out = sys.argv[1]
    opts = {}
    for kv in sys.argv[2:]:
        if "=" in kv:
            k, v = kv.split("="); opts[k] = int(v) if v.lstrip("-").isdigit() else v
        else: opts[kv] = True
    open(out, "w").write(full(*gen(opts)))
```
